```python
import torch

def _softmax(x, axis=-1):
    return torch.softmax(x, dim=axis)
def _gelu(x):
    return torch.nn.functional.gelu(x, approximate="tanh")
def _silu(x):
    return torch.nn.functional.silu(x)
def _sigmoid(x):
    return torch.sigmoid(x)
def _layernorm(x, axis=-1, eps=1e-5):
    m = x.mean(dim=axis, keepdim=True)
    v = x.var(dim=axis, keepdim=True, unbiased=False)
    return (x - m) / torch.sqrt(v + eps)
def _scatter_add(tgt, idx, src, axis=0):
    return tgt.clone().index_add_(axis, idx, src)
def _segment_sum(src, seg, n):
    out = torch.zeros((n,) + src.shape[1:], dtype=src.dtype)
    return out.index_add_(0, seg, src)
def _pad(x, pw):
    flat = tuple(v for pair in reversed(pw) for v in pair)
    return torch.nn.functional.pad(x, flat)

kernel_name = 'gated_mix__grouped_kv_mqa__grouped_kv_mqa__prompt'

def setup_inputs():

    _w = (lambda a: (lambda t: t.to(torch.bfloat16) if t.is_floating_point() else t)(torch.as_tensor(a)))
    def _A_setup():
        B, S, D, H = 1, 2048, 512, 32
        Dh = D // H
        return {
            "x": _w((lambda *s: torch.randn(*s, dtype=torch.bfloat16) * 0.05)(B, S, D)),
            "wq": _w((lambda *s: torch.randn(*s, dtype=torch.bfloat16) * 0.8)(D, H * Dh)),
            "wk": _w((lambda *s: torch.randn(*s, dtype=torch.bfloat16) * 0.8)(D, Dh)),
            "wv": _w((lambda *s: torch.randn(*s, dtype=torch.bfloat16) * 0.05)(D, Dh)),
            "wo": _w((lambda *s: torch.randn(*s, dtype=torch.bfloat16) * 0.05)(H * Dh, D)),
        }
    _A_in = _A_setup()

    def _B_setup():
        B, S, D, H = 1, 2048, 512, 32
        Dh = D // H
        return {
            "x": _w((lambda *s: torch.randn(*s, dtype=torch.bfloat16) * 0.05)(B, S, D)),
            "wq": _w((lambda *s: torch.randn(*s, dtype=torch.bfloat16) * 0.8)(D, H * Dh)),
            "wk": _w((lambda *s: torch.randn(*s, dtype=torch.bfloat16) * 0.8)(D, Dh)),
            "wv": _w((lambda *s: torch.randn(*s, dtype=torch.bfloat16) * 0.05)(D, Dh)),
            "wo": _w((lambda *s: torch.randn(*s, dtype=torch.bfloat16) * 0.05)(H * Dh, D)),
        }
    _B_in = _B_setup()

    return {
        "A_x": _A_in["x"],
        "A_wq": _A_in["wq"],
        "A_wk": _A_in["wk"],
        "A_wv": _A_in["wv"],
        "A_wo": _A_in["wo"],
        "B_x": _B_in["x"],
        "B_wq": _B_in["wq"],
        "B_wk": _B_in["wk"],
        "B_wv": _B_in["wv"],
        "B_wo": _B_in["wo"],
        "gate_w": _w((lambda *s: torch.randn(*s, dtype=torch.bfloat16) * 0.05)(512) * 16.0),
    }

def reference(A_x, A_wq, A_wk, A_wv, A_wo, B_x, B_wq, B_wk, B_wv, B_wo, gate_w):
    def _A_ref(x, wq, wk, wv, wo):
        B, S, D = x.shape
        H = 32
        Dh = D // H
        q = (lambda x, *d: x.permute(*d))((x @ wq).reshape(B, S, H, Dh), 0, 2, 1, 3)
        k = x @ wk
        v = x @ wv
        scores = torch.einsum("bhqd,bkd->bhqk", q, k) * (Dh ** -0.5)
        p = _softmax(scores, axis=-1)
        o = torch.einsum("bhqk,bkd->bhqd", p, v)
        return (lambda x, *d: x.permute(*d))(o, 0, 2, 1, 3).reshape(B, S, H * Dh) @ wo

    def _B_ref(x, wq, wk, wv, wo):
        B, S, D = x.shape
        H = 32
        Dh = D // H
        q = (lambda x, *d: x.permute(*d))((x @ wq).reshape(B, S, H, Dh), 0, 2, 1, 3)
        k = x @ wk
        v = x @ wv
        scores = torch.einsum("bhqd,bkd->bhqk", q, k) * (Dh ** -0.5)
        p = _softmax(scores, axis=-1)
        o = torch.einsum("bhqk,bkd->bhqd", p, v)
        return (lambda x, *d: x.permute(*d))(o, 0, 2, 1, 3).reshape(B, S, H * Dh) @ wo

    x = A_x
    g = _sigmoid((x * gate_w).sum(-1, keepdims=True))
    a = _A_ref(x, A_wq, A_wk, A_wv, A_wo)
    b = _B_ref(x, B_wq, B_wk, B_wv, B_wo)
    return g * a + (1 - g) * b
```

```python
import sys, os

NAME = "gated_mix__grouped_kv_mqa__grouped_kv_mqa__prompt"

OPT = dict(
    spin_limit=1 << 18,
    force_slow=False,
    stamps=False,
    T2=1600.0,
)
for a in sys.argv[1:]:
    if "=" in a:
        k, v = a.split("=", 1)
        if k in OPT:
            OPT[k] = type(OPT[k])(eval(v))

LDS_XT = 0
LDS_WK = 32768
LDS_WV = 49152
LDS_WQ = 65536
NSLOT = 5
LDS_GW = LDS_WQ + NSLOT * 16384
LDS_WOS = LDS_GW + 1024
LDS_GP = LDS_WOS + 4096
LDS_MISC = LDS_GP + 1024
LDS_TOTAL = LDS_MISC + 256
LDS_OG = 0
LDS_RED = 65536

WS_KV = 0
WS_FLAG = 0x40000
WS_KVF = WS_FLAG
WS_WOFF = WS_FLAG + 4096
WS_OFL = WS_FLAG + 8192
WS_W = WS_FLAG + 16384
WS_WOF = 0x80000
WS_OF = 0x200000
WS_SIZE = 0x600000

CSCALE = 0x3EB8AA3B
NLOG2E = 0xBFB8AA3B

S_X, S_WQ, S_WK, S_WV, S_WO, S_GW, S_OUT, S_WS = 32, 36, 40, 44, 48, 52, 56, 60
sWave, sRB, sM, sB, sHH, sRot, sNonce = 64, 65, 66, 67, 68, 69, 70
sT0, sT1, sT2, sT3, sT4, sT5 = 71, 72, 73, 74, 75, 76
sC, sLimW, sLimI, sSlotR, sSlotW, sIter = 77, 78, 79, 82, 83, 84
sVM = 80
sXbase = 85
sCnt = 86
sMA, sMB = 88, 90
sMC, sMD = 92, 94
sSt = 96
sLdA, sLdB = 98, 99

vLane, vL16, vGate, vT0, vT1, vT2, vT3 = 1, 2, 3, 4, 5, 6, 7
Qa, Qb = 8, 12
Oa, Ob = 16, 32
S0, S1 = 48, 64
KF = 80
V0, V1, V0b, V1b = 84, 88, 92, 96
IDX, AK, AV = 100, 101, 102
vNon = 103
vXB, vWA, vA, vB2 = 104, 105, 106, 107
vMa, vMb = 108, 109
vNa, vNb = 110, 111
vE0 = 112

L = []


def emit(*lines):
    for l in lines:
        L.append(l)


def lab(name):
    L.append(name + ":")


def vr(b, n):
    return f"v[{b}:{b + n - 1}]"


def ar(b, n):
    return f"a[{b}:{b + n - 1}]"


def sr(b, n):
    return f"s[{b}:{b + n - 1}]"


def cmt(s):
    L.append(f"; ---- {s}")


def stamp(i):
    if not OPT["stamps"]:
        return
    n = len(L)
    emit(f"s_memtime {sr(sSt, 2)}", "s_waitcnt lgkmcnt(0)",
         f"s_or_b32 {'s%d' % sT5}, s2, s{sWave}",
         f"s_cmp_eq_u32 s{sT5}, {OPT.get('stamp_wg', 0)}",
         f"s_cbranch_scc0 L_st{n}",
         f"v_mov_b32 v{vE0 + 14}, s{sSt}", f"v_mov_b32 v{vE0 + 15}, {4 * i}",
         f"global_store_dword v{vE0 + 15}, v{vE0 + 14}, s[28:29]")
    lab(f"L_st{n}")


def dma(vaddr, srd, soff, m0expr=None, imm=0, sc1=False):
    if m0expr is not None:
        emit(f"s_mov_b32 m0, {m0expr}", "s_nop 0")
    s = f"buffer_load_dwordx4 v{vaddr}, {sr(srd, 4)}, {soff} offen"
    if imm:
        s += f" offset:{imm}"
    if sc1:
        s += " sc1"
    emit(s + " lds")


def spin_fail(code):
    emit(f"v_mov_b32 v{vT0}, {code}", f"v_mov_b32 v{vT1}, 60", f"global_store_dword v{vT1}, v{vT0}, s[28:29]")


def prologue():
    cmt("prologue")
    emit("s_cmp_ge_u32 s2, 256", "s_cbranch_scc1 L_end",
         "s_load_dwordx16 s[4:19], s[0:1], 0",
         "s_load_dwordx8 s[20:27], s[0:1], 64",
         "s_load_dwordx4 s[28:31], s[0:1], 96",
         f"s_and_b32 s3, s2, 7",
         f"s_lshr_b32 s{sRB}, s2, 5",
         f"s_lshl_b32 s{sRot}, s{sRB}, 1",
         f"s_lshl_b32 s{sRB}, s{sRB}, 3",
         f"s_add_u32 s{sRB}, s{sRB}, s3",
         f"s_lshr_b32 s{sM}, s2, 3",
         f"s_and_b32 s{sM}, s{sM}, 3",
         f"s_and_b32 s{sB}, s{sM}, 1",
         f"s_lshr_b32 s{sHH}, s{sM}, 1",
         f"v_and_b32 v{vLane}, 63, v0",
         f"v_lshrrev_b32 v{vT0}, 6, v0",
         f"v_lshlrev_b32 v{vL16}, 4, v{vLane}",
         f"s_lshl_b32 s{sXbase}, s{sRB}, 15",
         f"v_readfirstlane_b32 s{sWave}, v{vT0}",
         f"s_mov_b32 s{sVM}, 0x0000ffff", f"s_mov_b32 s{sVM + 1}, 0x0000ffff",
         "s_waitcnt lgkmcnt(0)")
    emit(f"s_mov_b32 s{S_X}, s4", f"s_mov_b32 s{S_X + 1}, s5", f"s_mov_b32 s{S_X + 2}, 0x200000", f"s_mov_b32 s{S_X + 3}, 0x20000",
         f"s_mov_b32 s{S_WS}, s30", f"s_mov_b32 s{S_WS + 1}, s31", f"s_mov_b32 s{S_WS + 2}, {WS_SIZE}", f"s_mov_b32 s{S_WS + 3}, 0x20000",
         f"s_cmp_eq_u32 s{sB}, 0",
         f"s_cselect_b32 s{S_WK}, s8, s18", f"s_cselect_b32 s{S_WK + 1}, s9, s19",
         f"s_cselect_b32 s{S_WV}, s10, s20", f"s_cselect_b32 s{S_WV + 1}, s11, s21",
         f"s_cselect_b32 s{S_WQ}, s6, s16", f"s_cselect_b32 s{S_WQ + 1}, s7, s17",
         f"s_mov_b32 s{S_WK + 2}, 0x4000", f"s_mov_b32 s{S_WK + 3}, 0x20000",
         f"s_mov_b32 s{S_WV + 2}, 0x4000", f"s_mov_b32 s{S_WV + 3}, 0x20000",
         f"s_mov_b32 s{S_WQ + 2}, 0x80000", f"s_mov_b32 s{S_WQ + 3}, 0x20000")
    emit(f"v_mov_b32 v{vT1}, 0", f"s_mov_b32 s{sT0}, {WS_W}",
         f"buffer_load_dword v{vNon}, v{vT1}, {sr(S_WS, 4)}, s{sT0} offen sc1")


def xrow_load(srow):
    emit(f"s_and_b32 s{sT0}, s{srow}, 15",
         f"s_lshl_b32 s{sT0}, s{sT0}, 4",
         f"s_lshl_b32 s{sT1}, s{srow}, 10",
         f"v_xor_b32 v{vT0}, s{sT0}, v{vL16}",
         f"s_mov_b32 m0, s{sT1}",
         f"s_add_u32 s{sT2}, s{sT1}, s{sXbase}")
    dma(vT0, S_X, f"s{sT2}")


def group_a():
    cmt("group A loads: own K/V x rows, wk, wv")
    emit(f"s_lshl_b32 s{sT3}, s{sHH}, 4", f"s_lshl_b32 s{sT4}, s{sWave}, 1", f"s_add_u32 s{sT3}, s{sT3}, s{sT4}")
    xrow_load(sT3)
    emit(f"s_add_u32 s{sT3}, s{sT3}, 1")
    xrow_load(sT3)
    emit(f"s_lshr_b32 s{sT0}, s2, 4", f"s_add_u32 s{sT0}, s{sT0}, s{sWave}", f"s_and_b32 s{sT0}, s{sT0}, 7",
         f"s_lshl_b32 s{sT0}, s{sT0}, 11",
         f"s_add_u32 s{sT1}, s{sT0}, {LDS_WK}", f"s_mov_b32 m0, s{sT1}", f"s_add_u32 s{sT1}, s{sT0}, {LDS_WV}")
    dma(vL16, S_WK, f"s{sT0}")
    dma(vL16, S_WK, f"s{sT0}", imm=1024)
    emit(f"s_mov_b32 m0, s{sT1}", "s_nop 0")
    dma(vL16, S_WV, f"s{sT0}")
    dma(vL16, S_WV, f"s{sT0}", imm=1024)


def wq_chunk_load(scidx, sslot):
    emit(f"s_lshl_b32 s{sT0}, s{scidx}, 15",
         f"s_add_u32 s{sT0}, s{sT0}, s{sLdA}",
         f"s_add_u32 s{sT1}, s{sslot}, s{sLdB}")
    for i in range(4):
        emit(f"s_mov_b32 m0, s{sT1}")
        va = vA if i % 2 == 0 else vB2
        if i:
            pass
        emit(f"s_add_u32 s{sT1}, s{sT1}, 1024")
        dma(va, S_WQ, f"s{sT0}")
        if i < 3:
            emit(f"s_add_u32 s{sT0}, s{sT0}, 2048")


def front_loads():
    group_a()
    emit(f"s_mov_b32 s{S_GW}, s24", f"s_mov_b32 s{S_GW + 1}, s25", f"s_mov_b32 s{S_GW + 2}, 0x400", f"s_mov_b32 s{S_GW + 3}, 0x20000",
         f"s_mov_b32 s{S_OUT}, s26", f"s_mov_b32 s{S_OUT + 1}, s27", f"s_mov_b32 s{S_OUT + 2}, 0x200000", f"s_mov_b32 s{S_OUT + 3}, 0x20000",
         f"s_cmp_lt_u32 s2, 128",
         f"s_cselect_b32 s{S_WO}, s12, s22", f"s_cselect_b32 s{S_WO + 1}, s13, s23",
         f"s_mov_b32 s{S_WO + 2}, 0x80000", f"s_mov_b32 s{S_WO + 3}, 0x20000")
    emit(f"v_lshrrev_b32 v{vT0}, 5, v{vLane}",
         f"v_bfe_u32 v{vT1}, v{vLane}, 2, 3",
         f"v_xor_b32 v{vT1}, v{vT1}, v{vT0}",
         f"v_lshlrev_b32 v{vT1}, 6, v{vT1}",
         f"v_and_b32 v{vT2}, 3, v{vLane}", f"v_lshlrev_b32 v{vT2}, 4, v{vT2}",
         f"v_lshlrev_b32 v{vT0}, 10, v{vT0}",
         f"v_add3_u32 v{vA}, v{vT0}, v{vT1}, v{vT2}",
         f"v_xor_b32 v{vB2}, 128, v{vA}",
         f"s_and_b32 s{sLdB}, s{sWave}, 3",
         f"s_lshl_b32 s{sLdA}, s{sLdB}, 13", f"s_lshl_b32 s{sT0}, s{sHH}, 9", f"s_add_u32 s{sLdA}, s{sLdA}, s{sT0}",
         f"s_lshl_b32 s{sLdB}, s{sLdB}, 12")
    emit(f"s_mov_b32 s{sLimW}, 0", f"s_mov_b32 s{sLimI}, 0",
         f"s_cmp_ge_u32 s{sWave}, 4", "s_cbranch_scc1 L_role_wq",
         f"s_cmp_ge_u32 s{sWave}, 2", "s_cbranch_scc0 L_role_kv")
    emit(f"s_xor_b32 s{sT3}, s{sHH}, 1", f"s_lshl_b32 s{sT3}, s{sT3}, 4",
         f"s_sub_u32 s{sT4}, s{sWave}, 2", f"s_lshl_b32 s{sT4}, s{sT4}, 3", f"s_add_u32 s{sT3}, s{sT3}, s{sT4}",
         f"s_mov_b32 s{sCnt}, 8")
    lab("L_gb")
    xrow_load(sT3)
    emit(f"s_add_u32 s{sT3}, s{sT3}, 1", f"s_sub_u32 s{sCnt}, s{sCnt}, 1", f"s_cmp_lg_u32 s{sCnt}, 0", "s_cbranch_scc1 L_gb",
         f"s_cmp_eq_u32 s{sWave}, 3", "s_cbranch_scc1 L_role_wo")
    dma(vL16, S_GW, "0", m0expr=str(LDS_GW))
    emit("s_waitcnt vmcnt(9)", "s_branch L_bar1")
    lab("L_role_wo")
    emit(f"v_lshrrev_b32 v{vT0}, 4, v{vLane}", f"v_lshlrev_b32 v{vT0}, 10, v{vT0}",
         f"v_and_b32 v{vT1}, 15, v{vLane}", f"v_lshlrev_b32 v{vT1}, 4, v{vT1}", f"v_add_u32 v{vT0}, v{vT0}, v{vT1}",
         f"s_lshr_b32 s{sT0}, s2, 2", f"s_and_b32 s{sT0}, s{sT0}, 31", f"s_lshl_b32 s{sT0}, s{sT0}, 14",
         f"s_and_b32 s{sT1}, s2, 3", f"s_lshl_b32 s{sT1}, s{sT1}, 8", f"s_add_u32 s{sT0}, s{sT0}, s{sT1}")
    for i in range(4):
        dma(vT0, S_WO, f"s{sT0}", m0expr=str(LDS_WOS + i * 1024))
        if i < 3:
            emit(f"s_add_u32 s{sT0}, s{sT0}, 4096")
    emit("s_waitcnt vmcnt(12)", "s_branch L_bar1")
    lab("L_role_wq")
    emit(f"s_mov_b32 s{sLimW}, 13", f"s_mov_b32 s{sLimI}, 12",
         f"s_mov_b32 s{sC}, 0", f"s_mov_b32 s{sSlotW}, {LDS_WQ}")
    lab("L_wq0")
    emit(f"s_add_u32 s{sT3}, s{sC}, s{sRot}", f"s_and_b32 s{sT3}, s{sT3}, 15")
    wq_chunk_load(sT3, sSlotW)
    emit(f"s_add_u32 s{sSlotW}, s{sSlotW}, 16384", f"s_add_u32 s{sC}, s{sC}, 1", f"s_cmp_lt_u32 s{sC}, 4", "s_cbranch_scc1 L_wq0",
         "s_waitcnt vmcnt(16)", "s_branch L_bar1")
    lab("L_role_kv")
    emit("s_waitcnt vmcnt(0)")
    lab("L_bar1")
    emit("s_barrier")
    emit("s_nop 0", f"v_readfirstlane_b32 s{sNonce}, v{vNon}", "s_nop 3",
         f"s_mul_i32 s{sNonce}, s{sNonce}, 0x9E3779B1", f"s_add_u32 s{sNonce}, s{sNonce}, 0x7F4A7C15")


def kv_proj():
    cmt("K/V projection (waves 0,1)")
    emit(f"s_cmp_ge_u32 s{sWave}, 2", "s_cbranch_scc1 L_kv_done")
    XB = 112
    WA = 116
    ACC = 16
    FR = 20
    emit(f"v_and_b32 v{vT0}, 15, v{vLane}",
         f"v_lshrrev_b32 v{vT1}, 4, v{vLane}",
         f"v_xor_b32 v{vT2}, v{vT1}, v{vT0}",
         f"v_lshlrev_b32 v{vT2}, 4, v{vT2}",
         f"s_lshl_b32 s{sT0}, s{sHH}, 14",
         f"v_lshlrev_b32 v{vT3}, 10, v{vT0}",
         f"v_add3_u32 v{XB}, v{vT3}, v{vT2}, s{sT0}",
         f"v_xor_b32 v{XB + 1}, 64, v{XB}", f"v_xor_b32 v{XB + 2}, 128, v{XB}", f"v_xor_b32 v{XB + 3}, 0xc0, v{XB}",
         f"v_lshlrev_b32 v{vT1}, 8, v{vT1}", f"v_lshlrev_b32 v{vT0}, 3, v{vT0}",
         f"s_lshl_b32 s{sT0}, s{sWave}, 14",
         f"v_add3_u32 v{WA}, v{vT1}, v{vT0}, s{sT0}")

    def reads(s):
        f = FR + 8 * (s % 4)
        return [f"ds_read_b128 {vr(f, 4)}, v{XB + (s & 3)} offset:{LDS_XT + (s >> 2) * 256}",
                f"ds_read_b64_tr_b16 {vr(f + 4, 2)}, v{WA} offset:{LDS_WK + s * 1024}",
                f"ds_read_b64_tr_b16 {vr(f + 6, 2)}, v{WA} offset:{LDS_WK + s * 1024 + 128}"]

    for variant in ("K", "V"):
        if variant == "K":
            emit(f"s_cmp_eq_u32 s{sWave}, 1", "s_cbranch_scc1 L_vproj")
        else:
            lab("L_vproj")
        for s in range(4):
            emit(*reads(s))
        for s in range(16):
            f = FR + 8 * (s % 4)
            rem = min(3, 15 - s)
            emit(f"s_waitcnt lgkmcnt({3 * rem})")
            c = "0" if s == 0 else vr(ACC, 4)
            if variant == "K":
                emit(f"v_mfma_f32_16x16x32_bf16 {vr(ACC, 4)}, {vr(f + 4, 4)}, {vr(f, 4)}, {c}")
            else:
                emit(f"v_mfma_f32_16x16x32_bf16 {vr(ACC, 4)}, {vr(f, 4)}, {vr(f + 4, 4)}, {c}")
            if s + 4 < 16:
                emit(*reads(s + 4))
        emit("s_nop 7")
        P = 56
        if variant == "K":
            emit(f"s_mov_b32 s{sT0}, {CSCALE:#x}")
            for i in range(4):
                emit(f"v_mul_f32 v{ACC + i}, s{sT0}, v{ACC + i}")
            emit(f"v_mul_f32 v{vT0}, v{ACC}, v{ACC}")
            for i in range(1, 4):
                emit(f"v_fmac_f32 v{vT0}, v{ACC + i}, v{ACC + i}")
        else:
            emit(f"v_max_f32 v{vT0}, |v{ACC}|, |v{ACC + 1}|".replace("v_max_f32", "v_max_f32_e64"),
                 f"v_max3_f32 v{vT0}, |v{ACC + 2}|, |v{ACC + 3}|, v{vT0}")
        emit(f"v_cvt_pk_bf16_f32 v{P}, v{ACC}, v{ACC + 1}", f"v_cvt_pk_bf16_f32 v{P + 1}, v{ACC + 2}, v{ACC + 3}",
             f"v_mov_b32 v{vT1}, v{vT0}")
        if variant == "K":
            emit("s_nop 0",
                 f"v_permlane32_swap_b32 v{P}, v{P + 2}", f"v_permlane32_swap_b32 v{P + 1}, v{P + 3}",
                 f"v_permlane32_swap_b32 v{vT0}, v{vT1}", "s_nop 1",
                 f"v_add_f32 v{vT0}, v{vT0}, v{vT1}", "s_nop 0", f"v_mov_b32 v{vT1}, v{vT0}", "s_nop 1",
                 f"v_permlane16_swap_b32 v{vT0}, v{vT1}", "s_nop 1",
                 f"v_add_f32 v{vT0}, v{vT0}, v{vT1}")
            emit(f"v_and_b32 v{vT2}, 15, v{vLane}", f"v_bfe_u32 v{vT3}, v{vLane}, 4, 1",
                 f"v_lshlrev_b32 v{vT3}, 5, v{vT3}", f"v_add_u32 v{vT2}, v{vT2}, v{vT3}", f"v_lshlrev_b32 v{vT2}, 4, v{vT2}",
                 f"s_lshl_b32 s{sT0}, s{sB}, 17", f"s_lshl_b32 s{sT1}, s{sRB}, 11", f"s_add_u32 s{sT0}, s{sT0}, s{sT1}",
                 f"s_lshl_b32 s{sT1}, s{sHH}, 8", f"s_add_u32 s{sT0}, s{sT0}, s{sT1}",
                 "s_mov_b32 exec_hi, 0",
                 f"buffer_store_dwordx4 {vr(P, 4)}, v{vT2}, {sr(S_WS, 4)}, s{sT0} offen sc1",
                 "s_mov_b64 exec, -1")
        else:
            emit("s_nop 0",
                 f"v_permlane16_swap_b32 v{P}, v{P + 2}", f"v_permlane16_swap_b32 v{P + 1}, v{P + 3}",
                 f"v_permlane32_swap_b32 v{vT0}, v{vT1}", "s_nop 1",
                 f"v_max_f32 v{vT0}, v{vT0}, v{vT1}", "s_nop 0", f"v_mov_b32 v{vT1}, v{vT0}", "s_nop 1",
                 f"v_permlane16_swap_b32 v{vT0}, v{vT1}", "s_nop 1",
                 f"v_max_f32 v{vT0}, v{vT0}, v{vT1}")
            emit(f"v_and_b32 v{vT2}, 15, v{vLane}", f"v_lshrrev_b32 v{vT3}, 5, v{vLane}",
                 f"v_lshlrev_b32 v{vT2}, 4, v{vT2}", f"v_lshlrev_b32 v{vT3}, 8, v{vT3}", f"v_add_u32 v{vT2}, v{vT2}, v{vT3}",
                 f"s_lshl_b32 s{sT0}, s{sB}, 17", f"s_lshl_b32 s{sT1}, s{sRB}, 11", f"s_add_u32 s{sT0}, s{sT0}, s{sT1}",
                 f"s_lshl_b32 s{sT1}, s{sHH}, 9", f"s_add_u32 s{sT0}, s{sT0}, s{sT1}", f"s_add_u32 s{sT0}, s{sT0}, 1024",
                 f"s_mov_b64 exec, {sr(sVM, 2)}",
                 f"buffer_store_dwordx4 {vr(P, 4)}, v{vT2}, {sr(S_WS, 4)}, s{sT0} offen sc1",
                 "s_mov_b64 exec, -1")
        for r in (8, 4, 2, 1):
            emit("s_nop 1", f"v_max_f32_dpp v{vT0}, v{vT0}, v{vT0} row_ror:{r} row_mask:0xf bank_mask:0xf")
        emit(f"s_lshl_b32 s{sT0}, s{sRB}, 1", f"s_add_u32 s{sT0}, s{sT0}, s{sHH}", f"s_lshl_b32 s{sT0}, s{sT0}, 4",
             f"s_lshl_b32 s{sT1}, s{sB}, 11", f"s_add_u32 s{sT0}, s{sT0}, s{sT1}",
             f"s_add_u32 s{sT0}, s{sT0}, {WS_KVF + (0 if variant == 'K' else 8)}",
             f"v_mov_b32 v{P + 5}, v{vT0}", f"v_mov_b32 v{P + 4}, s{sNonce}", f"v_mov_b32 v{vT2}, 0",
             "s_waitcnt vmcnt(0)",
             "s_mov_b64 exec, 1",
             f"buffer_store_dwordx2 {vr(P + 4, 2)}, v{vT2}, {sr(S_WS, 4)}, s{sT0} offen sc1",
             "s_mov_b64 exec, -1")
        if variant == "K":
            emit("s_branch L_kv_done")
    lab("L_kv_done")


def q_proj():
    cmt("Q projection")
    ACC = S0
    FA = 80
    FB = 88
    emit(f"v_and_b32 v{vT0}, 31, v{vLane}", f"v_lshrrev_b32 v{vT1}, 5, v{vLane}",
         f"v_and_b32 v{vT2}, 15, v{vLane}", f"v_xor_b32 v{vT2}, v{vT2}, v{vT1}", f"v_lshlrev_b32 v{vT2}, 4, v{vT2}",
         f"v_lshlrev_b32 v{vT0}, 10, v{vT0}", f"v_add_u32 v{vXB}, v{vT0}, v{vT2}",
         f"v_bfe_u32 v{vT0}, v{vLane}, 2, 2",
         f"v_lshlrev_b32 v{vT2}, 3, v{vT1}", f"v_add_u32 v{vT2}, v{vT2}, v{vT0}", f"v_lshlrev_b32 v{vT2}, 9, v{vT2}",
         f"v_xor_b32 v{vT0}, s{sWave}, v{vT0}", f"v_lshlrev_b32 v{vT0}, 6, v{vT0}",
         f"v_bfe_u32 v{vT1}, v{vLane}, 4, 1", f"v_lshlrev_b32 v{vT1}, 5, v{vT1}",
         f"v_add3_u32 v{vT2}, v{vT2}, v{vT0}, v{vT1}",
         f"v_and_b32 v{vT0}, 3, v{vLane}", f"v_lshlrev_b32 v{vT0}, 3, v{vT0}",
         f"v_add_u32 v{vWA}, v{vT2}, v{vT0}")
    for i in range(16):
        emit(f"v_mov_b32 v{ACC + i}, 0")
    emit(f"s_mov_b32 s{sC}, 0", f"s_mov_b32 s{sSlotR}, {LDS_WQ}", f"s_mov_b32 s{sSlotW}, {LDS_WQ + 4 * 16384}")
    lab("L_qloop")
    emit(f"s_cmp_lt_u32 s{sC}, s{sLimW}", "s_cbranch_scc1 L_qw12", "s_waitcnt vmcnt(0)", "s_branch L_qwd")
    lab("L_qw12")
    emit("s_waitcnt vmcnt(12)")
    lab("L_qwd")
    emit("s_barrier")
    emit(f"s_add_u32 s{sT3}, s{sC}, s{sRot}", f"s_and_b32 s{sT3}, s{sT3}, 15",
         f"s_lshl_b32 s{sT2}, s{sT3}, 6",
         f"v_add_u32 v{vT0}, s{sSlotR}, v{vWA}",
         f"v_xor_b32 v{vT1}, s{sT2}, v{vXB}",
         f"ds_read_b64_tr_b16 {vr(FA, 2)}, v{vT0}",
         f"ds_read_b64_tr_b16 {vr(FA + 2, 2)}, v{vT0} offset:2048",
         f"v_xor_b32 v{vT2}, 32, v{vT1}",
         f"ds_read_b128 {vr(FB, 4)}, v{vT1}",
         f"ds_read_b64_tr_b16 {vr(FA + 4, 2)}, v{vT0} offset:8192",
         f"ds_read_b64_tr_b16 {vr(FA + 6, 2)}, v{vT0} offset:10240",
         f"ds_read_b128 {vr(FB + 4, 4)}, v{vT2}")
    emit(f"s_cmp_lt_u32 s{sC}, s{sLimI}", "s_cbranch_scc0 L_qnoload",
         f"s_add_u32 s{sT3}, s{sT3}, 4", f"s_and_b32 s{sT3}, s{sT3}, 15")
    wq_chunk_load(sT3, sSlotW)
    lab("L_qnoload")
    emit("s_waitcnt lgkmcnt(3)",
         f"v_mfma_f32_32x32x16_bf16 {vr(ACC, 16)}, {vr(FA, 4)}, {vr(FB, 4)}, {vr(ACC, 16)}",
         "s_waitcnt lgkmcnt(0)",
         f"v_mfma_f32_32x32x16_bf16 {vr(ACC, 16)}, {vr(FA + 4, 4)}, {vr(FB + 4, 4)}, {vr(ACC, 16)}",
         f"s_mov_b32 s{sSlotW}, s{sSlotR}",
         f"s_add_u32 s{sSlotR}, s{sSlotR}, 16384",
         f"s_cmp_eq_u32 s{sSlotR}, {LDS_WQ + NSLOT * 16384}",
         f"s_cselect_b32 s{sSlotR}, {LDS_WQ}, s{sSlotR}",
         f"s_add_u32 s{sC}, s{sC}, 1", f"s_cmp_lt_u32 s{sC}, 16", "s_cbranch_scc1 L_qloop")
    G = S1
    emit(f"s_lshl_b32 s{sT0}, s{sWave}, 7",
         f"v_xor_b32 v{vT0}, s{sT0}, v{vXB}",
         f"v_lshrrev_b32 v{vT1}, 5, v{vLane}", f"v_lshlrev_b32 v{vT1}, 4, v{vT1}",
         f"s_add_u32 s{sT0}, s{sT0}, {LDS_GW}",
         f"v_add_u32 v{vT1}, s{sT0}, v{vT1}")
    for i in range(4):
        emit(f"v_xor_b32 v{vT2}, {32 * i}, v{vT0}",
             f"ds_read_b128 {vr(80 + 4 * i, 4)}, v{vT1} offset:{32 * i}",
             f"ds_read_b128 {vr(112 + 4 * i, 4)}, v{vT2}")
    for i in range(4):
        emit(f"s_waitcnt lgkmcnt({6 - 2 * i})",
             f"v_mfma_f32_32x32x16_bf16 {vr(G, 16)}, {vr(80 + 4 * i, 4)}, {vr(112 + 4 * i, 4)}, {'0' if i == 0 else vr(G, 16)}")
    emit("s_nop 4")
    for i in range(4):
        emit(f"v_cvt_pk_bf16_f32 v{Qa + i}, v{ACC + 2 * i}, v{ACC + 2 * i + 1}")
    for i in range(4):
        emit(f"v_cvt_pk_bf16_f32 v{Qb + i}, v{ACC + 8 + 2 * i}, v{ACC + 8 + 2 * i + 1}")
    emit(f"v_mul_f32 v{vNa}, v{ACC}, v{ACC}", f"v_mul_f32 v{vNb}, v{ACC + 8}, v{ACC + 8}")
    for i in range(1, 8):
        emit(f"v_fmac_f32 v{vNa}, v{ACC + i}, v{ACC + i}", f"v_fmac_f32 v{vNb}, v{ACC + 8 + i}, v{ACC + 8 + i}")
    emit(f"v_max_f32 v{vNa}, v{vNa}, v{vNa}")
    emit(f"v_mov_b32 v{vT0}, v{vNa}", f"v_mov_b32 v{vT1}, v{vNb}", "s_nop 1",
         f"v_permlane32_swap_b32 v{vNa}, v{vT0}", f"v_permlane32_swap_b32 v{vNb}, v{vT1}", "s_nop 1",
         f"v_add_f32 v{vNa}, v{vNa}, v{vT0}", f"v_add_f32 v{vNb}, v{vNb}, v{vT1}",
         f"v_max_f32 v{vNa}, v{vNa}, v{vNb}")
    emit(f"v_and_b32 v{vT0}, 31, v{vLane}", f"v_lshlrev_b32 v{vT0}, 5, v{vT0}", f"s_lshl_b32 s{sT0}, s{sWave}, 2",
         f"s_add_u32 s{sT0}, s{sT0}, {LDS_GP}",
         f"v_add_u32 v{vT0}, s{sT0}, v{vT0}",
         f"ds_write_b32 v{vT0}, v{G}")


def wof_task():
    cmt("WOF task (wave 3): transpose 4 wo fragments, publish")
    emit(f"s_cmp_eq_u32 s{sWave}, 3", "s_cbranch_scc0 L_wof_done")
    emit(f"v_lshrrev_b32 v{vT0}, 5, v{vLane}", f"v_lshlrev_b32 v{vT0}, 2, v{vT0}",
         f"v_bfe_u32 v{vT1}, v{vLane}, 2, 2", f"v_add_u32 v{vT0}, v{vT0}, v{vT1}", f"v_lshlrev_b32 v{vT0}, 8, v{vT0}",
         f"v_bfe_u32 v{vT1}, v{vLane}, 4, 1", f"v_lshlrev_b32 v{vT1}, 5, v{vT1}",
         f"v_and_b32 v{vT2}, 3, v{vLane}", f"v_lshlrev_b32 v{vT2}, 3, v{vT2}",
         f"v_add3_u32 v{vT0}, v{vT0}, v{vT1}, v{vT2}", f"v_add_u32 v{vT0}, {LDS_WOS}, v{vT0}")
    F = 112
    for f in range(4):
        emit(f"ds_read_b64_tr_b16 {vr(F + 4 * f, 2)}, v{vT0} offset:{f * 64}",
             f"ds_read_b64_tr_b16 {vr(F + 4 * f + 2, 2)}, v{vT0} offset:{f * 64 + 2048}")
    emit(f"s_lshr_b32 s{sT0}, s2, 2", f"s_lshl_b32 s{sT0}, s{sT0}, 14", f"s_and_b32 s{sT1}, s2, 3", f"s_lshl_b32 s{sT1}, s{sT1}, 12",
         f"s_add_u32 s{sT0}, s{sT0}, s{sT1}", f"s_add_u32 s{sT0}, s{sT0}, {WS_WOF}",
         "s_waitcnt lgkmcnt(0)")
    for f in range(4):
        o = f" offset:{f * 1024}" if f else ""
        emit(f"buffer_store_dwordx4 {vr(F + 4 * f, 4)}, v{vL16}, {sr(S_WS, 4)}, s{sT0} offen{o} sc1")
    lab("L_wof_done")


def poll_kv():
    cmt("poll K/V flags (wave 0)")
    emit(f"s_cmp_eq_u32 s{sWave}, 0", "s_cbranch_scc0 L_pollkv_done",
         f"v_mov_b32 v{vT0}, 0", f"v_mov_b32 v{vT1}, {LDS_MISC}", f"ds_write_b32 v{vT1}, v{vT0}",
         f"ds_write_b32 v{vT1}, v{vT0} offset:4",
         f"s_lshl_b32 s{sT0}, s{sB}, 11", f"s_add_u32 s{sT0}, s{sT0}, {WS_KVF}",
         f"s_mov_b32 s{sCnt}, {OPT['spin_limit']}")
    F = 112
    lab("L_pollkv")
    emit(f"buffer_load_dwordx4 {vr(F, 4)}, v{vL16}, {sr(S_WS, 4)}, s{sT0} offen sc1",
         f"buffer_load_dwordx4 {vr(F + 4, 4)}, v{vL16}, {sr(S_WS, 4)}, s{sT0} offen offset:1024 sc1",
         "s_waitcnt vmcnt(0)",
         f"v_cmp_ne_u32_e64 {sr(sMA, 2)}, s{sNonce}, v{F}",
         f"v_cmp_ne_u32_e64 {sr(sMB, 2)}, s{sNonce}, v{F + 2}",
         f"v_cmp_ne_u32_e64 {sr(sMC, 2)}, s{sNonce}, v{F + 4}",
         f"v_cmp_ne_u32_e64 {sr(sMD, 2)}, s{sNonce}, v{F + 6}",
         "s_nop 3",
         f"s_or_b64 {sr(sMA, 2)}, {sr(sMA, 2)}, {sr(sMB, 2)}",
         f"s_or_b64 {sr(sMC, 2)}, {sr(sMC, 2)}, {sr(sMD, 2)}",
         f"s_or_b64 {sr(sMA, 2)}, {sr(sMA, 2)}, {sr(sMC, 2)}",
         "s_cbranch_scc0 L_pollkv_ok",
         "s_sleep 1",
         f"s_sub_u32 s{sCnt}, s{sCnt}, 1", f"s_cmp_lg_u32 s{sCnt}, 0", "s_cbranch_scc1 L_pollkv")
    spin_fail(1)
    lab("L_pollkv_ok")
    emit(f"v_max_u32 v{F + 1}, v{F + 1}, v{F + 5}", f"v_max_u32 v{F + 3}, v{F + 3}, v{F + 7}",
         f"v_mov_b32 v{vT1}, {LDS_MISC}",
         f"ds_max_u32 v{vT1}, v{F + 1}", f"ds_max_u32 v{vT1}, v{F + 3} offset:4")
    lab("L_pollkv_done")
    emit("s_waitcnt lgkmcnt(0)", "s_barrier")


def kv_dma_and_setup():
    cmt("K/V tiles -> LDS")
    emit(f"s_lshl_b32 s{sT0}, s{sB}, 17",
         f"s_lshl_b32 s{sT1}, s{sWave}, 11",
         f"s_add_u32 s{sT2}, s{sT0}, s{sT1}",
         f"s_mov_b32 m0, s{sT1}", "s_nop 0")
    dma(vL16, S_WS, f"s{sT2}", sc1=True)
    dma(vL16, S_WS, f"s{sT2}", imm=1024, sc1=True)
    emit(f"s_mul_i32 s{sT1}, s{sWave}, 14336", f"s_add_u32 s{sT1}, s{sT1}, 16384", f"s_add_u32 s{sT2}, s{sT0}, s{sT1}")
    for g in range(4):
        emit(f"s_mov_b32 m0, s{sT1}")
        if g < 3:
            emit(f"s_add_u32 s{sT1}, s{sT1}, 4096")
        else:
            emit("s_nop 0")
        for i in range(4 if g < 3 else 2):
            dma(vL16, S_WS, f"s{sT2}", imm=1024 * i, sc1=True)
        if g < 3:
            emit(f"s_add_u32 s{sT2}, s{sT2}, 4096")
    emit(f"v_and_b32 v{vT0}, 31, v{vLane}", f"v_lshlrev_b32 v{vT0}, 5, v{vT0}", f"v_add_u32 v{vT0}, {LDS_GP}, v{vT0}", f"v_mov_b32 v{vT1}, {LDS_MISC}",
         f"ds_read_b128 {vr(112, 4)}, v{vT0}", f"ds_read_b128 {vr(116, 4)}, v{vT0} offset:16",
         f"ds_read_b64 {vr(120, 2)}, v{vT1}")
    for i in range(32):
        emit(f"v_mov_b32 v{Oa + i}, 0")
    for i in range(8):
        emit(f"v_mov_b32 v{S1 + 8 + i}, 0")
    emit(f"v_and_b32 v{vT0}, 27, v{vLane}",
         f"v_cmp_eq_u32 vcc, 16, v{vT0}", f"v_mov_b32 v{vT1}, 0x3f803f80", "s_nop 0",
         f"v_cndmask_b32 v{V0}, 0, v{vT1}, vcc")
    for i in range(1, 16):
        emit(f"v_mov_b32 v{V0 + i}, v{V0}")
    emit(f"v_mov_b32 v{IDX}, 0xdddddddd",
         f"v_mov_b32 v{AK}, v{vL16}",
         f"v_lshrrev_b32 v{vT0}, 5, v{vLane}", f"v_lshlrev_b32 v{vT0}, 8, v{vT0}",
         f"v_and_b32 v{vT1}, 15, v{vLane}", f"v_lshlrev_b32 v{vT1}, 4, v{vT1}", f"v_add_u32 v{AV}, v{vT0}, v{vT1}",
         "s_waitcnt lgkmcnt(0)")
    emit(f"v_add_f32 v112, v112, v113", f"v_add_f32 v114, v114, v115", f"v_add_f32 v116, v116, v117", f"v_add_f32 v118, v118, v119",
         f"v_add_f32 v112, v112, v114", f"v_add_f32 v116, v116, v118", f"v_add_f32 v112, v112, v116",
         f"s_mov_b32 s{sT0}, {NLOG2E:#x}", f"s_xor_b32 s{sT1}, s{sT0}, 0x80000000", f"s_cmp_eq_u32 s{sB}, 0",
         f"s_cselect_b32 s{sT0}, s{sT0}, s{sT1}",
         f"v_mul_f32 v112, s{sT0}, v112", f"v_exp_f32 v112, v112", "s_nop 0", f"v_add_f32 v112, 1.0, v112",
         f"v_rcp_f32 v{vGate}, v112")
    import struct
    t2 = struct.unpack("<I", struct.pack("<f", OPT["T2"]))[0]
    emit(f"v_mul_f32 v{vT0}, v{vNa}, v120", f"s_mov_b32 s{sT0}, {t2:#x}",
         f"v_cmp_nle_f32_e64 {sr(sMA, 2)}, v{vT0}, s{sT0}",
         f"s_mov_b32 s{sT1}, 0x53800000",
         f"v_cmp_nle_f32_e64 {sr(sMB, 2)}, v121, s{sT1}",
         f"s_mov_b32 s{sT1}, 0x2b800000",
         f"v_cmp_nge_f32_e64 {sr(sMC, 2)}, v121, s{sT1}",
         "s_nop 3",
         f"s_or_b64 {sr(sMA, 2)}, {sr(sMA, 2)}, {sr(sMB, 2)}",
         f"s_or_b64 {sr(sMA, 2)}, {sr(sMA, 2)}, {sr(sMC, 2)}")
    if OPT["force_slow"]:
        emit(f"s_mov_b64 {sr(sMA, 2)}, -1")
    emit("s_waitcnt vmcnt(14)", "s_barrier")
    emit(f"s_cmp_lg_u64 {sr(sMA, 2)}, 0", "s_cbranch_scc1 L_slow")


def wof_flag():
    n = len(L)
    emit(f"s_cmp_eq_u32 s{sWave}, 3", f"s_cbranch_scc0 L_wf{n}",
         f"s_lshl_b32 s{sT0}, s2, 2", f"s_add_u32 s{sT0}, s{sT0}, {WS_WOFF}",
         f"v_mov_b32 v{vT0}, s{sNonce}", f"v_mov_b32 v{vT1}, 0", "s_mov_b64 exec, 1",
         f"buffer_store_dword v{vT0}, v{vT1}, {sr(S_WS, 4)}, s{sT0} offen sc1", "s_mov_b64 exec, -1")
    lab(f"L_wf{n}")


def wo_flag_load():
    emit(f"v_and_b32 v{vT0}, 31, v{vLane}", f"v_lshlrev_b32 v{vT0}, 4, v{vT0}",
         f"s_lshr_b32 s{sT0}, s{sWave}, 2", f"s_lshl_b32 s{sT0}, s{sT0}, 9", f"s_lshl_b32 s{sT1}, s{sM}, 2",
         f"s_add_u32 s{sT0}, s{sT0}, s{sT1}", f"s_add_u32 s{sT0}, s{sT0}, {WS_WOFF}",
         f"buffer_load_dword v{vE0}, v{vT0}, {sr(S_WS, 4)}, s{sT0} offen sc1")


def wo_prefetch(tag):
    emit(f"s_mov_b32 s{sCnt}, {OPT['spin_limit']}")
    lab(f"L_wochk_{tag}")
    emit("s_waitcnt vmcnt(0)",
         f"v_cmp_ne_u32_e64 {sr(sMA, 2)}, s{sNonce}, v{vE0}", "s_nop 3",
         f"s_cmp_eq_u64 {sr(sMA, 2)}, 0", f"s_cbranch_scc1 L_wook_{tag}", "s_sleep 1")
    wo_flag_load()
    emit(f"s_sub_u32 s{sCnt}, s{sCnt}, 1", f"s_cmp_lg_u32 s{sCnt}, 0", f"s_cbranch_scc1 L_wochk_{tag}")
    spin_fail(2)
    lab(f"L_wook_{tag}")
    emit(f"s_lshr_b32 s{sT0}, s{sWave}, 2", f"s_lshl_b32 s{sT0}, s{sT0}, 19",
         f"s_and_b32 s{sT1}, s{sWave}, 3", f"s_lshl_b32 s{sT2}, s{sM}, 2", f"s_add_u32 s{sT1}, s{sT1}, s{sT2}",
         f"s_lshl_b32 s{sT1}, s{sT1}, 10", f"s_add_u32 s{sT0}, s{sT0}, s{sT1}", f"s_add_u32 s{sT0}, s{sT0}, {WS_WOF}")
    for h in range(32):
        emit(f"buffer_load_dwordx4 {ar(4 * h, 4)}, v{vL16}, {sr(S_WS, 4)}, s{sT0} offen sc1")
        if h < 31:
            emit(f"s_add_u32 s{sT0}, s{sT0}, 16384")


TB = 2048
POS = (2, 5, 11)


def phase(X, Y, QY, OX, OY, sh0, sh1, sh2, VA0, VA1):
    for i in range(16):
        if i == POS[0]:
            emit(f"v_smfmac_f32_32x32x32_bf16 {vr(OY, 16)}, {vr(VA1, 4)}, {vr(Y + 8, 8)}, v{IDX}", *sh0)
        if i == POS[1]:
            emit(f"v_mfma_f32_32x32x16_bf16 {vr(Y, 16)}, {vr(KF, 4)}, {vr(QY, 4)}, 0", *sh1)
        if i == POS[2]:
            emit(f"v_smfmac_f32_32x32x32_bf16 {vr(OX, 16)}, {vr(VA0, 4)}, {vr(X, 8)}, v{IDX}", *sh2)
        emit(f"v_exp_f32 v{X + i}, v{X + i}")


def main_loop():
    cmt("attention, fast path")
    emit(f"ds_read_b128 {vr(KF, 4)}, v{AK}",
         f"s_mov_b64 exec, {sr(sVM, 2)}",
         f"ds_read_b128 {vr(V0, 4)}, v{AV} offset:1024", f"ds_read_b128 {vr(V1, 4)}, v{AV} offset:1536",
         "s_mov_b64 exec, -1",
         f"s_mov_b32 s{sIter}, 0",
         "s_waitcnt lgkmcnt(0)",
         f"v_mfma_f32_32x32x16_bf16 {vr(S0, 16)}, {vr(KF, 4)}, {vr(Qa, 4)}, 0",
         "s_nop 15")
    emit(".p2align 6")
    lab("L_main")
    emit(f"s_cmp_eq_u32 s{sIter}, 5", "s_cbranch_scc1 L_blk_flag", f"s_cmp_eq_u32 s{sIter}, 6", "s_cbranch_scc1 L_blk_wo")
    lab("L_main_go")
    for t in range(8):
        if t == 6:
            emit(f"s_cmp_eq_u32 s{sIter}, 0", "s_cbranch_scc1 L_blk_bar")
            lab("L_main_t6")
        c0, c1 = (V0, V1) if t % 2 == 0 else (V0b, V1b)
        n0, n1 = (V0b, V1b) if t % 2 == 0 else (V0, V1)
        both = [f"s_mov_b64 exec, {sr(sVM, 2)}",
                f"ds_read_b128 {vr(n0, 4)}, v{AV} offset:{(t + 1) * TB + 1024}",
                f"ds_read_b128 {vr(n1, 4)}, v{AV} offset:{(t + 1) * TB + 1536}",
                "s_mov_b64 exec, -1"]
        phase(S0, S1, Qb, Oa, Ob, both, [f"ds_read_b128 {vr(KF, 4)}, v{AK} offset:{(t + 1) * TB}"], [], c0, n1)
        sh2 = []
        if t == 7:
            sh2 = []
        phase(S1, S0, Qa, Ob, Oa, ["s_waitcnt lgkmcnt(0)"], [], sh2, c0, c1)
    emit(f"v_add_u32 v{AK}, 0x4000, v{AK}", f"v_add_u32 v{AV}, 0x4000, v{AV}",
         f"s_add_u32 s{sIter}, s{sIter}, 1", f"s_cmp_lt_u32 s{sIter}, 8", "s_cbranch_scc1 L_main")
    emit("s_nop 1", f"v_smfmac_f32_32x32x32_bf16 {vr(Ob, 16)}, {vr(V1b, 4)}, {vr(S1 + 8, 8)}, v{IDX}")
    lab("L_epi")


def main_blocks():
    lab("L_blk_flag")
    wo_flag_load()
    emit("s_branch L_main_go")
    lab("L_blk_wo")
    wo_prefetch("f")
    emit("s_branch L_main_go")
    lab("L_blk_bar")
    emit("s_waitcnt vmcnt(0)", "s_barrier")
    wof_flag()
    emit("s_branch L_main_t6")


def slow_path():
    cmt("attention, true-max path (online softmax)")
    lab("L_slow")
    emit(f"v_mov_b32 v{vMa}, 0xff800000", f"v_mov_b32 v{vMb}, 0xff800000", f"s_mov_b32 s{sIter}, 0")
    lab("L_slow_loop")
    emit(f"s_cmp_eq_u32 s{sIter}, 6", "s_cbranch_scc0 L_slow_nb", "s_waitcnt vmcnt(0)", "s_barrier")
    wof_flag()
    lab("L_slow_nb")
    emit(f"ds_read_b128 {vr(KF, 4)}, v{AK}",
         f"s_mov_b64 exec, {sr(sVM, 2)}",
         f"ds_read_b128 {vr(V0, 4)}, v{AV} offset:1024", f"ds_read_b128 {vr(V1, 4)}, v{AV} offset:1536",
         "s_mov_b64 exec, -1", "s_waitcnt lgkmcnt(0)")
    for (Q, O, M) in ((Qa, Oa, vMa), (Qb, Ob, vMb)):
        emit(f"v_mfma_f32_32x32x16_bf16 {vr(S0, 16)}, {vr(KF, 4)}, {vr(Q, 4)}, 0", "s_nop 15",
             f"v_max3_f32 v{vT0}, v{S0}, v{S0 + 1}, v{S0 + 2}")
        for i in range(3, 15, 2):
            emit(f"v_max3_f32 v{vT0}, v{vT0}, v{S0 + i}, v{S0 + i + 1}")
        emit(f"v_max_f32 v{vT0}, v{vT0}, v{S0 + 15}", "s_nop 0", f"v_mov_b32 v{vT1}, v{vT0}", "s_nop 1",
             f"v_permlane32_swap_b32 v{vT0}, v{vT1}", "s_nop 1",
             f"v_max3_f32 v{vT0}, v{vT0}, v{vT1}, v{M}",
             f"v_sub_f32 v{vT1}, v{M}, v{vT0}", f"v_exp_f32 v{vT1}, v{vT1}", f"v_mov_b32 v{M}, v{vT0}")
        for i in range(9):
            emit(f"v_mul_f32 v{O + i}, v{vT1}, v{O + i}")
        for i in range(16):
            emit(f"v_sub_f32 v{S0 + i}, v{S0 + i}, v{vT0}")
        for i in range(16):
            emit(f"v_exp_f32 v{S0 + i}, v{S0 + i}")
        emit("s_nop 1",
             f"v_smfmac_f32_32x32x32_bf16 {vr(O, 16)}, {vr(V0, 4)}, {vr(S0, 8)}, v{IDX}",
             f"v_smfmac_f32_32x32x32_bf16 {vr(O, 16)}, {vr(V1, 4)}, {vr(S0 + 8, 8)}, v{IDX}")
    emit(f"v_add_u32 v{AK}, {TB}, v{AK}", f"v_add_u32 v{AV}, {TB}, v{AV}",
         f"s_add_u32 s{sIter}, s{sIter}, 1", f"s_cmp_lt_u32 s{sIter}, 64", "s_cbranch_scc1 L_slow_loop")
    wo_flag_load()
    wo_prefetch("s")
    emit("s_branch L_epi")


def tail():
    cmt("normalise, gate, publish O fragments")
    emit("s_nop 15")
    P = 112
    for k, O in enumerate((Oa, Ob)):
        emit(f"v_rcp_f32 v{vT0}, v{O + 8}", "s_nop 0", f"v_mul_f32 v{vT0}, v{vT0}, v{vGate}")
        for i in range(8):
            emit(f"v_mul_f32 v{O + i}, v{vT0}, v{O + i}")
        for i in range(4):
            emit(f"v_cvt_pk_bf16_f32 v{P + 4 * k + i}, v{O + 2 * i}, v{O + 2 * i + 1}")
    emit(f"s_lshl_b32 s{sT0}, s{sRB}, 16", f"s_lshl_b32 s{sT1}, s{sB}, 15", f"s_add_u32 s{sT0}, s{sT0}, s{sT1}",
         f"s_lshl_b32 s{sT1}, s{sHH}, 14", f"s_add_u32 s{sT0}, s{sT0}, s{sT1}",
         f"s_lshl_b32 s{sT1}, s{sWave}, 11", f"s_add_u32 s{sT0}, s{sT0}, s{sT1}", f"s_add_u32 s{sT0}, s{sT0}, {WS_OF}",
         f"buffer_store_dwordx4 {vr(P, 4)}, v{vL16}, {sr(S_WS, 4)}, s{sT0} offen sc1",
         f"buffer_store_dwordx4 {vr(P + 4, 4)}, v{vL16}, {sr(S_WS, 4)}, s{sT0} offen offset:1024 sc1",
         "s_waitcnt vmcnt(0)", "s_barrier")
    stamp(6)
    emit(f"s_cmp_eq_u32 s{sWave}, 0", "s_cbranch_scc0 L_ofl_done",
         f"s_lshl_b32 s{sT0}, s{sRB}, 6", f"s_add_u32 s{sT0}, s{sT0}, {WS_OFL}",
         f"s_lshl_b32 s{sT1}, s{sM}, 2", f"s_add_u32 s{sT1}, s{sT1}, s{sT0}",
         f"v_mov_b32 v{vT0}, s{sNonce}", f"v_mov_b32 v{vT1}, 0", "s_mov_b64 exec, 1",
         f"buffer_store_dword v{vT0}, v{vT1}, {sr(S_WS, 4)}, s{sT1} offen sc1", "s_mov_b64 exec, -1",
         f"v_and_b32 v{vT1}, 3, v{vLane}", f"v_lshlrev_b32 v{vT1}, 2, v{vT1}",
         f"s_mov_b32 s{sCnt}, {OPT['spin_limit']}")
    lab("L_ofl")
    emit(f"buffer_load_dword v{vT2}, v{vT1}, {sr(S_WS, 4)}, s{sT0} offen sc1", "s_waitcnt vmcnt(0)",
         f"v_cmp_ne_u32_e64 {sr(sMA, 2)}, s{sNonce}, v{vT2}", "s_nop 3",
         f"s_cmp_eq_u64 {sr(sMA, 2)}, 0", "s_cbranch_scc1 L_ofl_done", "s_sleep 1",
         f"s_sub_u32 s{sCnt}, s{sCnt}, 1", f"s_cmp_lg_u32 s{sCnt}, 0", "s_cbranch_scc1 L_ofl")
    spin_fail(3)
    lab("L_ofl_done")
    emit("s_barrier")
    stamp(7)
    emit(f"s_lshl_b32 s{sT0}, s{sRB}, 16", f"s_lshl_b32 s{sT1}, s{sWave}, 13", f"s_add_u32 s{sT0}, s{sT0}, s{sT1}",
         f"s_add_u32 s{sT0}, s{sT0}, {WS_OF}")
    for g in range(2):
        emit(f"s_mov_b32 m0, s{sT1}", f"s_add_u32 s{sT1}, s{sT1}, 4096")
        for i in range(4):
            dma(vL16, S_WS, f"s{sT0}", imm=1024 * i, sc1=True)
        if g == 0:
            emit(f"s_add_u32 s{sT0}, s{sT0}, 4096")
    emit(f"s_lshr_b32 s{sT0}, s{sWave}, 2", f"s_lshl_b32 s{sT0}, s{sT0}, 15", f"v_add_u32 v{vT0}, s{sT0}, v{vL16}",
         "s_waitcnt vmcnt(0)", "s_barrier")
    stamp(8)
    ACC = 16
    FR = 48
    for h in range(8):
        emit(f"ds_read_b128 {vr(FR + 4 * h, 4)}, v{vT0} offset:{h * 1024}")
    for h in range(32):
        rem = min(7, 31 - h)
        emit(f"s_waitcnt lgkmcnt({rem})",
             f"v_mfma_f32_32x32x16_bf16 {vr(ACC, 16)}, {ar(4 * h, 4)}, {vr(FR + 4 * (h % 8), 4)}, {'0' if h == 0 else vr(ACC, 16)}")
        if h + 8 < 32:
            emit(f"ds_read_b128 {vr(FR + 4 * (h % 8), 4)}, v{vT0} offset:{(h + 8) * 1024}")
    emit(f"s_and_b32 s{sT0}, s{sWave}, 3", f"s_lshl_b32 s{sT0}, s{sT0}, 12", f"s_add_u32 s{sT0}, s{sT0}, {LDS_RED}",
         f"v_add_u32 v{vT0}, s{sT0}, v{vL16}",
         "s_nop 15",
         f"s_cmp_ge_u32 s{sWave}, 4", "s_cbranch_scc0 L_red_lo")
    for q in range(4):
        emit(f"ds_write_b128 v{vT0}, {vr(ACC + 4 * q, 4)} offset:{q * 1024}")
    emit("s_waitcnt lgkmcnt(0)", "s_barrier", "s_branch L_fin")
    lab("L_red_lo")
    emit("s_barrier")
    for q in range(4):
        emit(f"ds_read_b128 {vr(48 + 4 * q, 4)}, v{vT0} offset:{q * 1024}")
    emit(f"v_and_b32 v{vT1}, 31, v{vLane}", f"v_lshlrev_b32 v{vT1}, 10, v{vT1}",
         f"v_lshrrev_b32 v{vT2}, 5, v{vLane}", f"v_lshlrev_b32 v{vT2}, 3, v{vT2}", f"v_add_u32 v{vT1}, v{vT1}, v{vT2}",
         f"s_lshl_b32 s{sT0}, s{sM}, 8", f"s_and_b32 s{sT1}, s{sWave}, 3", f"s_lshl_b32 s{sT1}, s{sT1}, 6",
         f"s_add_u32 s{sT0}, s{sT0}, s{sT1}", f"s_add_u32 s{sT0}, s{sT0}, s{sXbase}",
         "s_waitcnt lgkmcnt(0)")
    for i in range(16):
        emit(f"v_add_f32 v{ACC + i}, v{ACC + i}, v{48 + i}")
    for i in range(8):
        emit(f"v_cvt_pk_bf16_f32 v{64 + i}, v{ACC + 2 * i}, v{ACC + 2 * i + 1}")
    for q in range(4):
        o = f" offset:{q * 16}" if q else ""
        emit(f"buffer_store_dwordx2 {vr(64 + 2 * q, 2)}, v{vT1}, {sr(S_OUT, 4)}, s{sT0} offen{o}")
    emit(f"s_or_b32 s{sT0}, s2, s{sWave}", f"s_cmp_eq_u32 s{sT0}, 0", "s_cbranch_scc0 L_fin",
         f"v_mov_b32 v{vT0}, s{sNonce}", f"v_mov_b32 v{vT1}, 0", f"s_mov_b32 s{sT0}, {WS_W}", "s_mov_b64 exec, 1",
         f"buffer_store_dword v{vT0}, v{vT1}, {sr(S_WS, 4)}, s{sT0} offen sc1")
    lab("L_fin")
    stamp(9)
    emit("s_waitcnt vmcnt(0)")
    lab("L_end")
    emit("s_endpgm")


def build():
    prologue()
    stamp(0)
    front_loads()
    stamp(1)
    kv_proj()
    q_proj()
    stamp(2)
    wof_task()
    poll_kv()
    stamp(3)
    kv_dma_and_setup()
    stamp(4)
    main_loop()
    stamp(5)
    tail()
    main_blocks()
    slow_path()


HEADER = open(os.path.join(os.path.dirname(os.path.abspath(__file__)), "cdna_kernels", NAME + ".s.ref")).read().split("; Override launch")[0]


def render():
    build()
    out = [HEADER.rstrip("\n"),
           "; Override launch geometry by editing the next line (default: block=256,",
           "; grid=ceil(out_elems/256), lds=0). Harness parses it; keep it on one line.",
           f"; @launch grid=(256,1,1) block=(512,1,1) lds={LDS_TOTAL}",
           '.amdgcn_target "amdgcn-amd-amdhsa--gfx950"', ".text", f".globl {NAME}_kernel", ".p2align 8",
           f".type {NAME}_kernel,@function", f"{NAME}_kernel:"]
    for l in L:
        if l.endswith(":") or l.startswith(";") or l.startswith("."):
            out.append(l)
        else:
            out.append("    " + l)
    out += ['.section .rodata,"a"', ".p2align 6", f".amdhsa_kernel {NAME}_kernel",
            "  .amdhsa_next_free_vgpr 256", "  .amdhsa_next_free_sgpr 102", "  .amdhsa_accum_offset 128",
            "  .amdhsa_group_segment_fixed_size 0", "  .amdhsa_kernarg_size 112", "  .amdhsa_user_sgpr_count 2",
            "  .amdhsa_user_sgpr_kernarg_segment_ptr 1", "  .amdhsa_system_sgpr_workgroup_id_x 1",
            ".end_amdhsa_kernel", ""]
    return "\n".join(out)


if __name__ == "__main__":
    dst = os.environ.get("OUT", os.path.join(os.path.dirname(os.path.abspath(__file__)), "cdna_kernels", NAME + ".s"))
    open(dst, "w").write(render())
    print("wrote", dst, len(L), "lines")
```

```python
import sys, os, struct

NAME = "gated_mix__grouped_kv_mqa__grouped_kv_mqa__prompt"

OPT = dict(
    spin_limit=1 << 18,
    force_slow=False,
    stamps=False,
    ld_sc1=False,
    q_exp=0,
    T2=1600.0,
    prio_front=2,
    prio_g1=0,
    prio_g2=1,
    g2_drop=7,
)
for a in sys.argv[1:]:
    if "=" in a:
        k, v = a.split("=", 1)
        if k in OPT:
            OPT[k] = type(OPT[k])(eval(v))
        else:
            raise SystemExit("unknown option " + k)

LDS_WK = 0
LDS_WV = 16384
LDS_WQ = 32768
LDS_XT = 98304
LDS_GW = 131072
LDS_WOS = LDS_GW + 1024
LDS_GP = LDS_WOS + 4096
LDS_MISC = LDS_GP + 1024
LDS_DUMMY = LDS_MISC + 256
LDS_TOTAL = LDS_DUMMY + 1024
LDS_OG = 0
LDS_RED = 65536
M_KMAX, M_VMAX, M_FKV, M_FXB, M_FQG1, M_FQD, M_RD = 0, 4, 8, 12, 16, 20, 32

WS_KV = 0
WS_FLAG = 0x40000
WS_KVF = WS_FLAG
WS_WOFF = WS_FLAG + 4096
WS_OFL = WS_FLAG + 8192
WS_W = WS_FLAG + 16384
WS_WOF = 0x80000
WS_OF = 0x200000
WS_SIZE = 0x600000

CSCALE = 0x3EB8AA3B
NLOG2E = 0xBFB8AA3B

S_X, S_WQ, S_WK, S_WV, S_WO, S_GW, S_OUT, S_WS = 32, 36, 40, 44, 48, 52, 56, 60
sWave, sRB, sM, sB, sHH, sRot, sNonce = 64, 65, 66, 67, 68, 69, 70
sT0, sT1, sT2, sT3, sT4, sT5 = 71, 72, 73, 74, 75, 76
sS, sK, sSl, sRing, sQoff, sIter = 77, 78, 79, 82, 83, 84
sVM = 80
sXbase = 85
sCnt = 86
sRD = 87
sI1, sI2 = 98, 99
sMA, sMB = 88, 90
sMC, sMD = 92, 94
sSt = 96

vLane, vL16, vGate, vT0, vT1, vT2, vT3 = 1, 2, 3, 4, 5, 6, 7
Qa, Qb = 8, 12
Oa, Ob = 16, 32
S0, S1 = 48, 64
KF = 80
V0, V1, V0b, V1b = 84, 88, 92, 96
IDX, AK, AV = 100, 101, 102
vNon = 103
vXB, vWA, vA, vMisc = 104, 105, 106, 107
vMa, vMb = 108, 109
vNa, vNb = 110, 111
vE0 = 112
vRDa, vRDv = 122, 123

L = []
_uid = [0]


def uid():
    _uid[0] += 1
    return _uid[0]


def emit(*lines):
    for l in lines:
        L.append(l)


def lab(name):
    L.append(name + ":")


def vr(b, n):
    return f"v[{b}:{b + n - 1}]"


def ar(b, n):
    return f"a[{b}:{b + n - 1}]"


def sr(b, n):
    return f"s[{b}:{b + n - 1}]"


def cmt(s):
    L.append(f"; ---- {s}")


def stamp(i):
    if not OPT["stamps"]:
        return

    def one(instr, slot):
        emit(f"{instr} {sr(sSt, 2)}", "s_waitcnt lgkmcnt(0)",
             f"s_lshl_b32 s{sSt + 1}, s2, 3", f"s_add_u32 s{sSt + 1}, s{sSt + 1}, s{sWave}", f"s_lshl_b32 s{sSt + 1}, s{sSt + 1}, 7",
             f"s_add_u32 s{sSt + 1}, s{sSt + 1}, {0x700000 + 4 * slot}",
             f"v_mov_b32 v{vE0 + 14}, s{sSt}", f"v_mov_b32 v{vE0 + 15}, s{sSt + 1}",
             f"global_store_dword v{vE0 + 15}, v{vE0 + 14}, s[30:31]")
    one("s_memrealtime", i)
    if i in (0, 9):
        one("s_memtime", 14 if i == 0 else 15)


def stamp_iter():
    if not OPT["stamps"]:
        return
    emit(f"s_memrealtime {sr(sSt, 2)}", "s_waitcnt lgkmcnt(0)",
         f"s_lshl_b32 s{sSt + 1}, s2, 3", f"s_add_u32 s{sSt + 1}, s{sSt + 1}, s{sWave}", f"s_lshl_b32 s{sSt + 1}, s{sSt + 1}, 5",
         f"s_add_u32 s{sSt + 1}, s{sSt + 1}, s{sIter}", f"s_lshl_b32 s{sSt + 1}, s{sSt + 1}, 2",
         f"s_add_u32 s{sSt + 1}, s{sSt + 1}, {0x700000 + 64}",
         f"v_mov_b32 v{vE0 + 14}, s{sSt}", f"v_mov_b32 v{vE0 + 15}, s{sSt + 1}",
         f"global_store_dword v{vE0 + 15}, v{vE0 + 14}, s[30:31]")


def dma(vaddr, srd, soff, m0expr=None, imm=0, sc1=False):
    if m0expr is not None:
        emit(f"s_mov_b32 m0, {m0expr}", "s_nop 0")
    s = f"buffer_load_dwordx4 v{vaddr}, {sr(srd, 4)}, {soff} offen"
    if imm:
        s += f" offset:{imm}"
    if sc1:
        s += " sc1"
    emit(s + " lds")


def spin_fail(code):
    emit(f"v_mov_b32 v{vT0}, {code}", f"v_mov_b32 v{vT1}, 60", f"global_store_dword v{vT1}, v{vT0}, s[28:29]")


def lds_wait(off, val, addr=None):
    n = uid()
    a = f"v{vMisc} offset:{off}" if addr is None else f"v{addr}"
    emit(f"s_mov_b32 s{sCnt}, {OPT['spin_limit']}")
    lab(f"L_lw{n}")
    emit(f"ds_read_b32 v{vT2}, {a}", "s_waitcnt lgkmcnt(0)", f"v_readfirstlane_b32 s{sT5}, v{vT2}", "s_nop 1",
         f"s_cmp_ge_u32 s{sT5}, {val}", f"s_cbranch_scc1 L_lwd{n}", "s_sleep 1",
         f"s_sub_u32 s{sCnt}, s{sCnt}, 1", f"s_cmp_lg_u32 s{sCnt}, 0", f"s_cbranch_scc1 L_lw{n}")
    spin_fail(8 + off)
    lab(f"L_lwd{n}")


def lds_add(off, val, addr=None):
    a = f"v{vMisc}, v{vT2} offset:{off}" if addr is None else f"v{addr}, v{vT2}"
    emit(f"v_mov_b32 v{vT2}, {val}", "s_mov_b64 exec, 1", f"ds_add_u32 {a}", "s_mov_b64 exec, -1")


def prologue():
    cmt("prologue")
    emit("s_cmp_ge_u32 s2, 256", "s_cbranch_scc1 L_end",
         "s_load_dwordx16 s[4:19], s[0:1], 0",
         "s_load_dwordx8 s[20:27], s[0:1], 64",
         "s_load_dwordx4 s[28:31], s[0:1], 96",
         f"s_and_b32 s3, s2, 7",
         f"s_lshr_b32 s{sRB}, s2, 5",
         f"s_lshl_b32 s{sRot}, s{sRB}, 2",
         f"s_lshl_b32 s{sRB}, s{sRB}, 3",
         f"s_add_u32 s{sRB}, s{sRB}, s3",
         f"s_lshr_b32 s{sM}, s2, 3",
         f"s_and_b32 s{sM}, s{sM}, 3",
         f"s_and_b32 s{sB}, s{sM}, 1",
         f"s_lshr_b32 s{sHH}, s{sM}, 1",
         f"v_and_b32 v{vLane}, 63, v0",
         f"v_lshrrev_b32 v{vT0}, 6, v0",
         f"v_lshlrev_b32 v{vL16}, 4, v{vLane}",
         f"s_lshl_b32 s{sXbase}, s{sRB}, 15",
         f"v_readfirstlane_b32 s{sWave}, v{vT0}",
         f"s_mov_b32 s{sVM}, 0x0000ffff", f"s_mov_b32 s{sVM + 1}, 0x0000ffff",
         f"v_mov_b32 v{vMisc}, {LDS_MISC}",
         "s_waitcnt lgkmcnt(0)")
    emit(f"s_mov_b32 s{S_X}, s4", f"s_mov_b32 s{S_X + 1}, s5", f"s_mov_b32 s{S_X + 2}, 0x200000", f"s_mov_b32 s{S_X + 3}, 0x20000",
         f"s_mov_b32 s{S_WS}, s30", f"s_mov_b32 s{S_WS + 1}, s31", f"s_mov_b32 s{S_WS + 2}, {WS_SIZE}", f"s_mov_b32 s{S_WS + 3}, 0x20000",
         f"s_cmp_eq_u32 s{sB}, 0",
         f"s_cselect_b32 s{S_WK}, s8, s18", f"s_cselect_b32 s{S_WK + 1}, s9, s19",
         f"s_cselect_b32 s{S_WV}, s10, s20", f"s_cselect_b32 s{S_WV + 1}, s11, s21",
         f"s_cselect_b32 s{S_WQ}, s6, s16", f"s_cselect_b32 s{S_WQ + 1}, s7, s17",
         f"s_mov_b32 s{S_WK + 2}, 0x4000", f"s_mov_b32 s{S_WK + 3}, 0x20000",
         f"s_mov_b32 s{S_WV + 2}, 0x4000", f"s_mov_b32 s{S_WV + 3}, 0x20000",
         f"s_mov_b32 s{S_WQ + 2}, 0x80000", f"s_mov_b32 s{S_WQ + 3}, 0x20000")
    emit(f"v_mov_b32 v{vT1}, 0", f"s_mov_b32 s{sT0}, {WS_W}",
         f"buffer_load_dword v{vNon}, v{vT1}, {sr(S_WS, 4)}, s{sT0} offen sc1")


def xrow_load(srow):
    emit(f"s_and_b32 s{sT0}, s{srow}, 15",
         f"s_lshl_b32 s{sT0}, s{sT0}, 4",
         f"s_lshl_b32 s{sT1}, s{srow}, 10",
         f"v_xor_b32 v{vT0}, s{sT0}, v{vL16}",
         f"s_add_u32 m0, s{sT1}, {LDS_XT}",
         f"s_add_u32 s{sT2}, s{sT1}, s{sXbase}")
    dma(vT0, S_X, f"s{sT2}")


def group_a():
    cmt("group A loads: own K/V x rows, wk, wv")
    emit(f"s_lshl_b32 s{sT3}, s{sHH}, 4", f"s_lshl_b32 s{sT4}, s{sWave}, 1", f"s_add_u32 s{sT3}, s{sT3}, s{sT4}")
    xrow_load(sT3)
    emit(f"s_add_u32 s{sT3}, s{sT3}, 1")
    xrow_load(sT3)
    emit(f"s_lshr_b32 s{sT0}, s2, 4", f"s_add_u32 s{sT0}, s{sT0}, s{sWave}", f"s_and_b32 s{sT0}, s{sT0}, 7",
         f"s_lshl_b32 s{sT0}, s{sT0}, 11",
         f"s_add_u32 s{sT1}, s{sT0}, {LDS_WK}", f"s_mov_b32 m0, s{sT1}", f"s_add_u32 s{sT1}, s{sT0}, {LDS_WV}")
    dma(vL16, S_WK, f"s{sT0}")
    dma(vL16, S_WK, f"s{sT0}", imm=1024)
    emit(f"s_mov_b32 m0, s{sT1}", "s_nop 0")
    dma(vL16, S_WV, f"s{sT0}")
    dma(vL16, S_WV, f"s{sT0}", imm=1024)


def wq_prefill(tag):
    emit(f"s_mov_b32 s{sK}, s{sRot}", f"s_mov_b32 s{sSl}, s{sRing}", f"s_mov_b32 s{sCnt}, 16")
    lab(f"L_pf_{tag}")
    emit(f"s_lshl_b32 s{sT0}, s{sK}, 14", f"s_mov_b32 m0, s{sSl}", f"s_add_u32 s{sT0}, s{sT0}, s{sQoff}")
    dma(vA, S_WQ, f"s{sT0}")
    emit(f"s_add_u32 s{sK}, s{sK}, 1", f"s_and_b32 s{sK}, s{sK}, 31", f"s_add_u32 s{sSl}, s{sSl}, 1024",
         f"s_sub_u32 s{sCnt}, s{sCnt}, 1", f"s_cmp_lg_u32 s{sCnt}, 0", f"s_cbranch_scc1 L_pf_{tag}")


def nonce():
    emit("s_nop 0", f"v_readfirstlane_b32 s{sNonce}, v{vNon}", "s_nop 3",
         f"s_mul_i32 s{sNonce}, s{sNonce}, 0x9E3779B1", f"s_add_u32 s{sNonce}, s{sNonce}, 0x7F4A7C15")


def group_b(half):
    n = uid()
    emit(f"s_xor_b32 s{sT3}, s{sHH}, 1", f"s_lshl_b32 s{sT3}, s{sT3}, 4", f"s_add_u32 s{sT3}, s{sT3}, {8 * half}",
         f"s_mov_b32 s{sCnt}, 8")
    lab(f"L_gb{n}")
    xrow_load(sT3)
    emit(f"s_add_u32 s{sT3}, s{sT3}, 1", f"s_sub_u32 s{sCnt}, s{sCnt}, 1", f"s_cmp_lg_u32 s{sCnt}, 0", f"s_cbranch_scc1 L_gb{n}")


def front():
    group_a()
    emit(f"s_mov_b32 s{S_GW}, s24", f"s_mov_b32 s{S_GW + 1}, s25", f"s_mov_b32 s{S_GW + 2}, 0x400", f"s_mov_b32 s{S_GW + 3}, 0x20000",
         f"s_mov_b32 s{S_OUT}, s26", f"s_mov_b32 s{S_OUT + 1}, s27", f"s_mov_b32 s{S_OUT + 2}, 0x200000", f"s_mov_b32 s{S_OUT + 3}, 0x20000",
         f"s_cmp_lt_u32 s2, 128",
         f"s_cselect_b32 s{S_WO}, s12, s22", f"s_cselect_b32 s{S_WO + 1}, s13, s23",
         f"s_mov_b32 s{S_WO + 2}, 0x80000", f"s_mov_b32 s{S_WO + 3}, 0x20000")
    emit(f"v_lshrrev_b32 v{vT0}, 2, v{vLane}", f"v_lshlrev_b32 v{vT0}, 10, v{vT0}",
         f"v_and_b32 v{vT1}, 3, v{vLane}", f"v_lshlrev_b32 v{vT1}, 4, v{vT1}",
         f"v_add_u32 v{vA}, v{vT0}, v{vT1}",
         f"s_lshl_b32 s{sQoff}, s{sHH}, 9", f"s_lshl_b32 s{sT0}, s{sWave}, 6", f"s_add_u32 s{sQoff}, s{sQoff}, s{sT0}",
         f"s_and_b32 s{sRing}, s{sWave}, 3", f"s_lshl_b32 s{sRing}, s{sRing}, 14", f"s_add_u32 s{sRing}, s{sRing}, {LDS_WQ}")
    emit(f"s_cmp_ge_u32 s{sWave}, 4", "s_cbranch_scc1 L_role_g2")
    wq_prefill("g1")
    emit(f"s_cmp_eq_u32 s{sWave}, 0", "s_cbranch_scc0 L_noinit",
         f"v_cmp_eq_u32 vcc, 16, v{vLane}", f"v_lshl_add_u32 v{vT0}, v{vLane}, 2, v{vMisc}", "s_nop 0",
         f"v_cndmask_b32 v{vT1}, 0, 2, vcc", f"ds_write_b32 v{vT0}, v{vT1}", "s_waitcnt lgkmcnt(0)")
    lab("L_noinit")
    emit("s_waitcnt vmcnt(16)", "s_barrier")
    stamp(10)
    nonce()
    lds_wait(M_FXB, 2)
    emit("s_branch L_qstart")

    lab("L_role_g2")
    if OPT["prio_front"]:
        emit(f"s_setprio {OPT['prio_front']}")
    emit(f"s_cmp_ge_u32 s{sWave}, 6", "s_cbranch_scc0 L_role_kv", f"s_cmp_eq_u32 s{sWave}, 7", "s_cbranch_scc1 L_role_poll")
    group_b(0)
    dma(vL16, S_GW, "0", m0expr=str(LDS_GW))
    emit(f"v_lshrrev_b32 v{vT0}, 4, v{vLane}", f"v_lshlrev_b32 v{vT0}, 10, v{vT0}",
         f"v_and_b32 v{vT1}, 15, v{vLane}", f"v_lshlrev_b32 v{vT1}, 4, v{vT1}", f"v_add_u32 v{vT0}, v{vT0}, v{vT1}",
         f"s_lshr_b32 s{sT0}, s2, 2", f"s_and_b32 s{sT0}, s{sT0}, 31", f"s_lshl_b32 s{sT0}, s{sT0}, 14",
         f"s_and_b32 s{sT1}, s2, 3", f"s_lshl_b32 s{sT1}, s{sT1}, 8", f"s_add_u32 s{sT0}, s{sT0}, s{sT1}")
    for i in range(4):
        dma(vT0, S_WO, f"s{sT0}", m0expr=str(LDS_WOS + i * 1024))
        if i < 3:
            emit(f"s_add_u32 s{sT0}, s{sT0}, 4096")
    emit("s_waitcnt vmcnt(13)", "s_barrier")
    nonce()
    emit("s_waitcnt vmcnt(4)")
    lds_add(M_FXB, 1)
    emit("s_waitcnt vmcnt(0)")
    wof_task()
    emit("s_branch L_g2_wait")

    lab("L_role_poll")
    group_b(1)
    emit("s_waitcnt vmcnt(8)", "s_barrier")
    nonce()
    emit("s_waitcnt vmcnt(0)")
    lds_add(M_FXB, 1)
    lds_wait(M_FQG1, 4)
    poll_kv()
    emit("s_branch L_g2_wait")

    lab("L_role_kv")
    emit("s_waitcnt vmcnt(0)", "s_barrier")
    nonce()
    kv_proj()

    lab("L_g2_wait")
    stamp(12)
    lds_wait(M_FKV, 1)
    lds_wait(M_FQD, 4)
    wq_prefill("g2")
    lab("L_qstart")


def kv_proj():
    cmt("K/V projection (waves 4,5)")
    XB = 112
    WA = 116
    ACC = 16
    FR = 20
    emit(f"v_and_b32 v{vT0}, 15, v{vLane}",
         f"v_lshrrev_b32 v{vT1}, 4, v{vLane}",
         f"v_xor_b32 v{vT2}, v{vT1}, v{vT0}",
         f"v_lshlrev_b32 v{vT2}, 4, v{vT2}",
         f"s_lshl_b32 s{sT0}, s{sHH}, 14", f"s_add_u32 s{sT0}, s{sT0}, {LDS_XT}",
         f"v_lshlrev_b32 v{vT3}, 10, v{vT0}",
         f"v_add3_u32 v{XB}, v{vT3}, v{vT2}, s{sT0}",
         f"v_xor_b32 v{XB + 1}, 64, v{XB}", f"v_xor_b32 v{XB + 2}, 128, v{XB}", f"v_xor_b32 v{XB + 3}, 0xc0, v{XB}",
         f"v_lshlrev_b32 v{vT1}, 8, v{vT1}", f"v_lshlrev_b32 v{vT0}, 3, v{vT0}",
         f"s_and_b32 s{sT0}, s{sWave}, 1", f"s_lshl_b32 s{sT0}, s{sT0}, 14",
         f"v_add3_u32 v{WA}, v{vT1}, v{vT0}, s{sT0}")

    def reads(s):
        f = FR + 8 * (s % 4)
        return [f"ds_read_b128 {vr(f, 4)}, v{XB + (s & 3)} offset:{(s >> 2) * 256}",
                f"ds_read_b64_tr_b16 {vr(f + 4, 2)}, v{WA} offset:{LDS_WK + s * 1024}",
                f"ds_read_b64_tr_b16 {vr(f + 6, 2)}, v{WA} offset:{LDS_WK + s * 1024 + 128}"]

    for variant in ("K", "V"):
        if variant == "K":
            emit(f"s_cmp_eq_u32 s{sWave}, 5", "s_cbranch_scc1 L_vproj")
        else:
            lab("L_vproj")
        for s in range(4):
            emit(*reads(s))
        for s in range(16):
            f = FR + 8 * (s % 4)
            rem = min(3, 15 - s)
            emit(f"s_waitcnt lgkmcnt({3 * rem})")
            c = "0" if s == 0 else vr(ACC, 4)
            if variant == "K":
                emit(f"v_mfma_f32_16x16x32_bf16 {vr(ACC, 4)}, {vr(f + 4, 4)}, {vr(f, 4)}, {c}")
            else:
                emit(f"v_mfma_f32_16x16x32_bf16 {vr(ACC, 4)}, {vr(f, 4)}, {vr(f + 4, 4)}, {c}")
            if s + 4 < 16:
                emit(*reads(s + 4))
        P = 56
        AD = 62
        if variant == "K":
            emit(f"v_and_b32 v{vT2}, 15, v{vLane}", f"v_bfe_u32 v{vT3}, v{vLane}, 4, 1",
                 f"v_lshlrev_b32 v{vT3}, 5, v{vT3}", f"v_add_u32 v{vT2}, v{vT2}, v{vT3}", f"v_lshlrev_b32 v{AD}, 4, v{vT2}",
                 f"s_lshl_b32 s{sT0}, s{sB}, 17", f"s_lshl_b32 s{sT1}, s{sRB}, 11", f"s_add_u32 s{sT0}, s{sT0}, s{sT1}",
                 f"s_lshl_b32 s{sT1}, s{sHH}, 8", f"s_add_u32 s{sT0}, s{sT0}, s{sT1}",
                 f"s_mov_b32 s{sT2}, {CSCALE:#x}")
            for i in range(4):
                emit(f"v_mul_f32 v{ACC + i}, s{sT2}, v{ACC + i}")
        else:
            emit(f"v_and_b32 v{vT2}, 15, v{vLane}", f"v_lshrrev_b32 v{vT3}, 5, v{vLane}",
                 f"v_lshlrev_b32 v{vT2}, 4, v{vT2}", f"v_lshlrev_b32 v{vT3}, 8, v{vT3}", f"v_add_u32 v{AD}, v{vT2}, v{vT3}",
                 f"s_lshl_b32 s{sT0}, s{sB}, 17", f"s_lshl_b32 s{sT1}, s{sRB}, 11", f"s_add_u32 s{sT0}, s{sT0}, s{sT1}",
                 f"s_lshl_b32 s{sT1}, s{sHH}, 9", f"s_add_u32 s{sT0}, s{sT0}, s{sT1}", f"s_add_u32 s{sT0}, s{sT0}, 1024")
        emit(f"v_cvt_pk_bf16_f32 v{P}, v{ACC}, v{ACC + 1}", f"v_cvt_pk_bf16_f32 v{P + 1}, v{ACC + 2}, v{ACC + 3}", "s_nop 1")
        if variant == "K":
            emit(f"v_permlane32_swap_b32 v{P}, v{P + 2}", f"v_permlane32_swap_b32 v{P + 1}, v{P + 3}",
                 "s_mov_b32 exec_hi, 0",
                 f"buffer_store_dwordx4 {vr(P, 4)}, v{AD}, {sr(S_WS, 4)}, s{sT0} offen sc1",
                 "s_mov_b64 exec, -1")
            emit(f"v_mul_f32 v{vT0}, v{ACC}, v{ACC}")
            for i in range(1, 4):
                emit(f"v_fmac_f32 v{vT0}, v{ACC + i}, v{ACC + i}")
            red = "v_add_f32"
        else:
            emit(f"v_permlane16_swap_b32 v{P}, v{P + 2}", f"v_permlane16_swap_b32 v{P + 1}, v{P + 3}",
                 f"s_mov_b64 exec, {sr(sVM, 2)}",
                 f"buffer_store_dwordx4 {vr(P, 4)}, v{AD}, {sr(S_WS, 4)}, s{sT0} offen sc1",
                 "s_mov_b64 exec, -1")
            emit(f"v_max_f32_e64 v{vT0}, |v{ACC}|, |v{ACC + 1}|", f"v_max3_f32 v{vT0}, |v{ACC + 2}|, |v{ACC + 3}|, v{vT0}")
            red = "v_max_f32"
        emit(f"v_mov_b32 v{vT1}, v{vT0}", "s_nop 1",
             f"v_permlane32_swap_b32 v{vT0}, v{vT1}", "s_nop 1",
             f"{red} v{vT0}, v{vT0}, v{vT1}", "s_nop 0", f"v_mov_b32 v{vT1}, v{vT0}", "s_nop 1",
             f"v_permlane16_swap_b32 v{vT0}, v{vT1}", "s_nop 1",
             f"{red} v{vT0}, v{vT0}, v{vT1}")
        for r in (8, 4, 2, 1):
            emit("s_nop 1", f"v_max_f32_dpp v{vT0}, v{vT0}, v{vT0} row_ror:{r} row_mask:0xf bank_mask:0xf")
        emit(f"s_lshl_b32 s{sT0}, s{sRB}, 1", f"s_add_u32 s{sT0}, s{sT0}, s{sHH}", f"s_lshl_b32 s{sT0}, s{sT0}, 4",
             f"s_lshl_b32 s{sT1}, s{sB}, 11", f"s_add_u32 s{sT0}, s{sT0}, s{sT1}",
             f"s_add_u32 s{sT0}, s{sT0}, {WS_KVF + (0 if variant == 'K' else 8)}",
             f"v_mov_b32 v{P + 5}, v{vT0}", f"v_mov_b32 v{P + 4}, s{sNonce}", f"v_mov_b32 v{vT2}, 0")
        stamp(11)
        emit("s_waitcnt vmcnt(0)",
             "s_mov_b64 exec, 1",
             f"buffer_store_dwordx2 {vr(P + 4, 2)}, v{vT2}, {sr(S_WS, 4)}, s{sT0} offen sc1",
             "s_mov_b64 exec, -1")
        if variant == "K":
            emit("s_branch L_g2_wait")


def wof_task():
    cmt("WOF task: transpose 4 wo fragments, publish, flag")
    emit(f"v_lshrrev_b32 v{vT0}, 5, v{vLane}", f"v_lshlrev_b32 v{vT0}, 2, v{vT0}",
         f"v_bfe_u32 v{vT1}, v{vLane}, 2, 2", f"v_add_u32 v{vT0}, v{vT0}, v{vT1}", f"v_lshlrev_b32 v{vT0}, 8, v{vT0}",
         f"v_bfe_u32 v{vT1}, v{vLane}, 4, 1", f"v_lshlrev_b32 v{vT1}, 5, v{vT1}",
         f"v_and_b32 v{vT2}, 3, v{vLane}", f"v_lshlrev_b32 v{vT2}, 3, v{vT2}",
         f"v_add3_u32 v{vT0}, v{vT0}, v{vT1}, v{vT2}", f"v_add_u32 v{vT0}, {LDS_WOS}, v{vT0}")
    F = 112
    for f in range(4):
        emit(f"ds_read_b64_tr_b16 {vr(F + 4 * f, 2)}, v{vT0} offset:{f * 64}",
             f"ds_read_b64_tr_b16 {vr(F + 4 * f + 2, 2)}, v{vT0} offset:{f * 64 + 2048}")
    emit(f"s_lshr_b32 s{sT0}, s2, 2", f"s_lshl_b32 s{sT0}, s{sT0}, 14", f"s_and_b32 s{sT1}, s2, 3", f"s_lshl_b32 s{sT1}, s{sT1}, 12",
         f"s_add_u32 s{sT0}, s{sT0}, s{sT1}", f"s_add_u32 s{sT0}, s{sT0}, {WS_WOF}",
         "s_waitcnt lgkmcnt(0)")
    for f in range(4):
        o = f" offset:{f * 1024}" if f else ""
        emit(f"buffer_store_dwordx4 {vr(F + 4 * f, 4)}, v{vL16}, {sr(S_WS, 4)}, s{sT0} offen{o} sc1")
    emit(f"s_lshl_b32 s{sT0}, s2, 2", f"s_add_u32 s{sT0}, s{sT0}, {WS_WOFF}",
         f"v_mov_b32 v{vT0}, s{sNonce}", f"v_mov_b32 v{vT1}, 0",
         "s_waitcnt vmcnt(0)", "s_mov_b64 exec, 1",
         f"buffer_store_dword v{vT0}, v{vT1}, {sr(S_WS, 4)}, s{sT0} offen sc1", "s_mov_b64 exec, -1")


def poll_kv():
    cmt("poll K/V flags, fetch key chunks 0 and 1")
    emit(f"s_lshl_b32 s{sT0}, s{sB}, 11", f"s_add_u32 s{sT0}, s{sT0}, {WS_KVF}",
         f"s_mov_b32 s{sCnt}, {OPT['spin_limit']}")
    F = 112
    lab("L_pollkv")
    emit(f"buffer_load_dwordx4 {vr(F, 4)}, v{vL16}, {sr(S_WS, 4)}, s{sT0} offen sc1",
         f"buffer_load_dwordx4 {vr(F + 4, 4)}, v{vL16}, {sr(S_WS, 4)}, s{sT0} offen offset:1024 sc1",
         "s_waitcnt vmcnt(0)",
         f"v_cmp_ne_u32_e64 {sr(sMA, 2)}, s{sNonce}, v{F}",
         f"v_cmp_ne_u32_e64 {sr(sMB, 2)}, s{sNonce}, v{F + 2}",
         f"v_cmp_ne_u32_e64 {sr(sMC, 2)}, s{sNonce}, v{F + 4}",
         f"v_cmp_ne_u32_e64 {sr(sMD, 2)}, s{sNonce}, v{F + 6}",
         "s_nop 3",
         f"s_or_b64 {sr(sMA, 2)}, {sr(sMA, 2)}, {sr(sMB, 2)}",
         f"s_or_b64 {sr(sMC, 2)}, {sr(sMC, 2)}, {sr(sMD, 2)}",
         f"s_or_b64 {sr(sMA, 2)}, {sr(sMA, 2)}, {sr(sMC, 2)}",
         "s_cbranch_scc0 L_pollkv_ok",
         "s_sleep 4",
         f"s_sub_u32 s{sCnt}, s{sCnt}, 1", f"s_cmp_lg_u32 s{sCnt}, 0", "s_cbranch_scc1 L_pollkv")
    spin_fail(1)
    lab("L_pollkv_ok")
    stamp(13)
    emit(f"s_lshl_b32 s{sT0}, s{sB}, 17", f"s_mov_b32 s{sT1}, 0")
    for g in range(8):
        emit(f"s_mov_b32 m0, s{sT1}", f"s_add_u32 s{sT1}, s{sT1}, 4096")
        for i in range(4):
            dma(vL16, S_WS, f"s{sT0}", imm=1024 * i, sc1=OPT['ld_sc1'])
        if g < 7:
            emit(f"s_add_u32 s{sT0}, s{sT0}, 4096")
        if g == 3:
            emit(f"v_max_u32 v{F + 1}, v{F + 1}, v{F + 5}", f"v_max_u32 v{F + 3}, v{F + 3}, v{F + 7}",
                 f"ds_max_u32 v{vMisc}, v{F + 1} offset:{M_KMAX}", f"ds_max_u32 v{vMisc}, v{F + 3} offset:{M_VMAX}",
                 "s_waitcnt lgkmcnt(0)")
            lds_add(M_FKV, 1)
    emit("s_waitcnt vmcnt(16)")
    lds_add(M_RD + 0, 2)
    emit("s_waitcnt vmcnt(0)")
    lds_add(M_RD + 4, 2)


def q_proj():
    cmt("Q projection (per-wave ring, no barriers)")
    ACC = S0
    emit(f"v_and_b32 v{vT0}, 31, v{vLane}", f"v_lshrrev_b32 v{vT1}, 5, v{vLane}",
         f"v_and_b32 v{vT2}, 15, v{vLane}", f"v_xor_b32 v{vT2}, v{vT2}, v{vT1}", f"v_lshlrev_b32 v{vT2}, 4, v{vT2}",
         f"v_lshlrev_b32 v{vT0}, 10, v{vT0}", f"v_add_u32 v{vXB}, v{vT0}, v{vT2}", f"v_add_u32 v{vXB}, {LDS_XT}, v{vXB}",
         f"v_bfe_u32 v{vT0}, v{vLane}, 2, 2",
         f"v_lshlrev_b32 v{vT2}, 3, v{vT1}", f"v_add_u32 v{vT2}, v{vT2}, v{vT0}", f"v_lshlrev_b32 v{vT2}, 6, v{vT2}",
         f"v_bfe_u32 v{vT1}, v{vLane}, 4, 1", f"v_lshlrev_b32 v{vT1}, 5, v{vT1}",
         f"v_and_b32 v{vT0}, 3, v{vLane}", f"v_lshlrev_b32 v{vT0}, 3, v{vT0}",
         f"v_add3_u32 v{vT2}, v{vT2}, v{vT0}, v{vT1}",
         f"v_add_u32 v{vWA}, s{sRing}, v{vT2}")
    for i in range(16):
        emit(f"v_mov_b32 v{ACC + i}, 0")
    XB4 = 112
    XT4 = 116
    SETS = (16, 64)
    emit(f"v_mov_b32 v{XB4}, v{vXB}")
    for i in range(1, 4):
        emit(f"v_xor_b32 v{XB4 + i}, {32 * i}, v{vXB}")

    vWB = 120

    def stage_reads(setbase, base, half):
        emit(f"s_lshl_b32 s{sT0}, s{sK}, 7")
        for i in range(4):
            emit(f"v_xor_b32 v{XT4 + i}, s{sT0}, v{XB4 + i}")
        for i in range(4 if not (OPT["q_exp"] & 1) else 0):
            f = setbase + 8 * i
            emit(f"ds_read_b64_tr_b16 {vr(f, 2)}, v{base} offset:{half * 4096 + i * 1024}",
                 f"ds_read_b64_tr_b16 {vr(f + 2, 2)}, v{base} offset:{half * 4096 + i * 1024 + 256}",
                 f"ds_read_b128 {vr(f + 4, 4)}, v{XT4 + i}")

    emit(f"s_lshr_b32 s{sK}, s{sRot}, 2", f"s_mov_b32 s{sS}, 0", f"s_mov_b32 s{sSl}, 0", f"v_mov_b32 v{vWB}, v{vWA}",
         "s_waitcnt vmcnt(12)")
    stamp(24)
    stage_reads(SETS[0], vWB, 0)
    lab("L_qloop")
    for par in range(2):
        emit(f"s_add_u32 s{sT1}, s{sK}, 4", f"s_and_b32 s{sT1}, s{sT1}, 7", f"s_lshl_b32 s{sT1}, s{sT1}, 16", f"s_add_u32 s{sT1}, s{sT1}, s{sQoff}",
             f"s_add_u32 s{sT2}, s{sRing}, s{sSl}", f"s_add_u32 s{sT2}, s{sT2}, {par * 4096}",
             f"s_cmp_lt_u32 s{sS}, 4", f"s_cselect_b32 s{sT1}, s{sT1}, 0x100000", f"s_cselect_b32 s{sT2}, s{sT2}, {LDS_DUMMY}",
             f"s_cselect_b32 s{sT3}, 1024, 0",
             f"s_add_u32 s{sK}, s{sK}, 1", f"s_and_b32 s{sK}, s{sK}, 7")
        if par == 1:
            emit(f"s_xor_b32 s{sSl}, s{sSl}, 8192", f"v_xor_b32 v{vWB}, 0x2000, v{vWB}")
        emit("s_waitcnt vmcnt(8) lgkmcnt(0)" if not (OPT["q_exp"] & 2) else "s_waitcnt lgkmcnt(0)")
        stage_reads(SETS[1 - par], vWB, 1 - par)
        for i in range(4):
            f = SETS[par] + 8 * i
            if not (OPT["q_exp"] & 4):
                emit(f"v_mfma_f32_32x32x16_bf16 {vr(ACC, 16)}, {vr(f, 4)}, {vr(f + 4, 4)}, {vr(ACC, 16)}")
            emit(f"s_mov_b32 m0, s{sT2}", f"s_add_u32 s{sT2}, s{sT2}, s{sT3}")
            if not (OPT["q_exp"] & 2):
                dma(vA, S_WQ, f"s{sT1}")
            if i < 3:
                emit(f"s_add_u32 s{sT1}, s{sT1}, 16384")
        if par == 1:
            n = uid()
            emit(f"s_cmp_eq_u32 s{sS}, 3", f"s_cbranch_scc0 L_nr{n}", f"s_cmp_lt_u32 s{sWave}, 4", f"s_cbranch_scc0 L_nr{n}")
            lds_add(M_FQG1, 1)
            lab(f"L_nr{n}")
        emit(f"s_add_u32 s{sS}, s{sS}, 1")
    emit(f"s_cmp_lt_u32 s{sS}, 8", "s_cbranch_scc1 L_qloop", "s_waitcnt lgkmcnt(0)")
    stamp(25)
    G = S1
    emit(f"s_lshl_b32 s{sT0}, s{sWave}, 7",
         f"v_xor_b32 v{vT0}, s{sT0}, v{vXB}",
         f"v_lshrrev_b32 v{vT1}, 5, v{vLane}", f"v_lshlrev_b32 v{vT1}, 4, v{vT1}",
         f"s_add_u32 s{sT0}, s{sT0}, {LDS_GW}",
         f"v_add_u32 v{vT1}, s{sT0}, v{vT1}")
    for i in range(4):
        emit(f"v_xor_b32 v{vT2}, {32 * i}, v{vT0}",
             f"ds_read_b128 {vr(80 + 4 * i, 4)}, v{vT1} offset:{32 * i}",
             f"ds_read_b128 {vr(112 + 4 * i, 4)}, v{vT2}")
    for i in range(4):
        emit(f"s_waitcnt lgkmcnt({6 - 2 * i})",
             f"v_mfma_f32_32x32x16_bf16 {vr(G, 16)}, {vr(80 + 4 * i, 4)}, {vr(112 + 4 * i, 4)}, {'0' if i == 0 else vr(G, 16)}")
    stamp(26)
    emit("s_nop 4")
    for i in range(4):
        emit(f"v_cvt_pk_bf16_f32 v{Qa + i}, v{ACC + 2 * i}, v{ACC + 2 * i + 1}")
    for i in range(4):
        emit(f"v_cvt_pk_bf16_f32 v{Qb + i}, v{ACC + 8 + 2 * i}, v{ACC + 8 + 2 * i + 1}")
    emit(f"v_mul_f32 v{vNa}, v{ACC}, v{ACC}", f"v_mul_f32 v{vNb}, v{ACC + 8}, v{ACC + 8}")
    for i in range(1, 8):
        emit(f"v_fmac_f32 v{vNa}, v{ACC + i}, v{ACC + i}", f"v_fmac_f32 v{vNb}, v{ACC + 8 + i}, v{ACC + 8 + i}")
    emit(f"v_and_b32 v{vT0}, 31, v{vLane}", f"v_lshlrev_b32 v{vT0}, 5, v{vT0}", f"s_lshl_b32 s{sT0}, s{sWave}, 2",
         f"s_add_u32 s{sT0}, s{sT0}, {LDS_GP}",
         f"v_add_u32 v{vT0}, s{sT0}, v{vT0}",
         f"ds_write_b32 v{vT0}, v{G}",
         f"v_mov_b32 v{vT0}, v{vNa}", f"v_mov_b32 v{vT1}, v{vNb}", "s_waitcnt lgkmcnt(0)",
         f"v_mov_b32 v{vT2}, 1", "s_mov_b64 exec, 1",
         f"ds_add_rtn_u32 v{vT3}, v{vMisc}, v{vT2} offset:{M_FQD}", "s_mov_b64 exec, -1",
         f"v_permlane32_swap_b32 v{vNa}, v{vT0}", f"v_permlane32_swap_b32 v{vNb}, v{vT1}", "s_nop 1",
         f"v_add_f32 v{vNa}, v{vNa}, v{vT0}", f"v_add_f32 v{vNb}, v{vNb}, v{vT1}",
         f"v_max_f32 v{vNa}, v{vNa}, v{vNb}")


def reg_init():
    cmt("main-loop register init")
    for i in range(32):
        emit(f"v_mov_b32 v{Oa + i}, 0")
    for i in range(8):
        emit(f"v_mov_b32 v{S1 + 8 + i}, 0")
    emit(f"v_and_b32 v{vT0}, 27, v{vLane}",
         f"v_cmp_eq_u32 vcc, 16, v{vT0}", f"v_mov_b32 v{vT1}, 0x3f803f80", "s_nop 0",
         f"v_cndmask_b32 v{V0}, 0, v{vT1}, vcc")
    for i in range(1, 16):
        emit(f"v_mov_b32 v{V0 + i}, v{V0}")
    emit(f"v_mov_b32 v{IDX}, 0xdddddddd",
         f"v_mov_b32 v{AK}, v{vL16}",
         f"v_lshrrev_b32 v{vT0}, 5, v{vLane}", f"v_lshlrev_b32 v{vT0}, 8, v{vT0}",
         f"v_and_b32 v{vT1}, 15, v{vLane}", f"v_lshlrev_b32 v{vT1}, 4, v{vT1}", f"v_add_u32 v{AV}, v{vT0}, v{vT1}",
         f"v_add_u32 v{vRDa}, {M_RD + 4}, v{vMisc}")


def kv_own_loads():
    cmt("waves 4..7: key chunk 2+p into the ring (and, for the last wave out, chunks 6,7 into the x tile); wo prefetch")
    emit(f"s_cmp_ge_u32 s{sWave}, 4", "s_cbranch_scc0 L_kvown_done")
    emit("s_waitcnt lgkmcnt(0)", f"v_readfirstlane_b32 s{sT4}, v{vT3}",
         f"s_lshl_b32 s{sT0}, s{sB}, 17", f"s_add_u32 s{sT0}, s{sT0}, s{sRing}", f"s_mov_b32 s{sT1}, s{sRing}")
    for g in range(4):
        emit(f"s_mov_b32 m0, s{sT1}", f"s_add_u32 s{sT1}, s{sT1}, 4096")
        for i in range(4):
            dma(vL16, S_WS, f"s{sT0}", imm=1024 * i, sc1=OPT['ld_sc1'])
        if g < 3:
            emit(f"s_add_u32 s{sT0}, s{sT0}, 4096")
    emit(f"s_cmp_eq_u32 s{sT4}, 7", "s_cbranch_scc0 L_notlast",
         f"s_lshl_b32 s{sT0}, s{sB}, 17", f"s_add_u32 s{sT0}, s{sT0}, {LDS_XT}", f"s_mov_b32 s{sT1}, {LDS_XT}", f"s_mov_b32 s{sCnt}, 8")
    lab("L_xtl")
    emit(f"s_mov_b32 m0, s{sT1}", f"s_add_u32 s{sT1}, s{sT1}, 4096")
    for i in range(4):
        dma(vL16, S_WS, f"s{sT0}", imm=1024 * i, sc1=OPT['ld_sc1'])
    emit(f"s_add_u32 s{sT0}, s{sT0}, 4096", f"s_sub_u32 s{sCnt}, s{sCnt}, 1", f"s_cmp_lg_u32 s{sCnt}, 0", "s_cbranch_scc1 L_xtl",
         "s_waitcnt vmcnt(0)")
    lds_add(M_RD + 24, 2)
    lds_add(M_RD + 28, 2)
    lab("L_notlast")
    wo_flag_load()
    emit("s_waitcnt vmcnt(0)")
    mark_own()
    wo_prefetch("g2")
    lab("L_kvown_done")


def mark_own():
    emit(f"s_and_b32 s{sT0}, s{sWave}, 3", f"s_lshl_b32 s{sT0}, s{sT0}, 2", f"s_add_u32 s{sT0}, s{sT0}, {LDS_MISC + M_RD + 8}",
         f"v_mov_b32 v{vT1}, s{sT0}")
    lds_add(0, 2, addr=vT1)


def start_attention():
    cmt("path decision, first key tile")
    lds_wait(M_RD + 0, 2)
    emit(f"ds_read_b64 {vr(120, 2)}, v{vMisc}",
         f"ds_read_b128 {vr(KF, 4)}, v{AK}",
         f"s_mov_b64 exec, {sr(sVM, 2)}",
         f"ds_read_b128 {vr(V0, 4)}, v{AV} offset:1024", f"ds_read_b128 {vr(V1, 4)}, v{AV} offset:1536",
         "s_mov_b64 exec, -1",
         "s_waitcnt lgkmcnt(0)",
         f"v_mfma_f32_32x32x16_bf16 {vr(S0, 16)}, {vr(KF, 4)}, {vr(Qa, 4)}, 0")
    t2 = struct.unpack("<I", struct.pack("<f", OPT["T2"]))[0]
    emit(f"v_mul_f32 v{vT0}, v{vNa}, v120", f"s_mov_b32 s{sT0}, {t2:#x}",
         f"v_cmp_nle_f32_e64 {sr(sMA, 2)}, v{vT0}, s{sT0}",
         f"s_mov_b32 s{sT1}, 0x53800000",
         f"v_cmp_nle_f32_e64 {sr(sMB, 2)}, v121, s{sT1}",
         f"s_mov_b32 s{sT1}, 0x2b800000",
         f"v_cmp_nge_f32_e64 {sr(sMC, 2)}, v121, s{sT1}",
         "s_nop 3",
         f"s_or_b64 {sr(sMA, 2)}, {sr(sMA, 2)}, {sr(sMB, 2)}",
         f"s_or_b64 {sr(sMA, 2)}, {sr(sMA, 2)}, {sr(sMC, 2)}")
    if OPT["force_slow"]:
        emit(f"s_mov_b64 {sr(sMA, 2)}, -1")
    emit(f"s_cmp_ge_u32 s{sWave}, 4", "s_cbranch_scc1 L_prio_g2", f"s_setprio {OPT['prio_g1']}",
         f"s_mov_b32 s{sI1}, 5", f"s_mov_b32 s{sI2}, 6", "s_branch L_prio_done")
    lab("L_prio_g2")
    emit(f"s_setprio {OPT['prio_g2']}", f"s_mov_b32 s{sI1}, 2", f"s_mov_b32 s{sI2}, {OPT['g2_drop']}")
    lab("L_prio_done")
    emit(f"s_cmp_lg_u64 {sr(sMA, 2)}, 0", "s_cbranch_scc1 L_slow")


def gate_factor():
    emit(f"v_and_b32 v{vT0}, 31, v{vLane}", f"v_lshlrev_b32 v{vT0}, 5, v{vT0}", f"v_add_u32 v{vT0}, {LDS_GP}, v{vT0}",
         f"ds_read_b128 {vr(112, 4)}, v{vT0}", f"ds_read_b128 {vr(116, 4)}, v{vT0} offset:16",
         f"s_mov_b32 s{sT0}, {NLOG2E:#x}", f"s_xor_b32 s{sT1}, s{sT0}, 0x80000000", f"s_cmp_eq_u32 s{sB}, 0",
         f"s_cselect_b32 s{sT0}, s{sT0}, s{sT1}",
         "s_waitcnt lgkmcnt(0)",
         f"v_add_f32 v112, v112, v113", f"v_add_f32 v114, v114, v115", f"v_add_f32 v116, v116, v117", f"v_add_f32 v118, v118, v119",
         f"v_add_f32 v112, v112, v114", f"v_add_f32 v116, v116, v118", f"v_add_f32 v112, v112, v116",
         f"v_mul_f32 v112, s{sT0}, v112", f"v_exp_f32 v112, v112", "s_nop 0", f"v_add_f32 v112, 1.0, v112",
         f"v_rcp_f32 v{vGate}, v112")


def wo_flag_load():
    emit(f"v_bfe_u32 v{vT0}, v{vLane}, 3, 2", f"v_xor_b32 v{vT0}, s{sM}, v{vT0}",
         f"v_and_b32 v{vT1}, 1, v{vT0}", f"v_lshlrev_b32 v{vT1}, 7, v{vT1}",
         f"v_lshrrev_b32 v{vT0}, 1, v{vT0}", f"v_lshlrev_b32 v{vT0}, 6, v{vT0}",
         f"v_and_b32 v{vT2}, 7, v{vLane}", f"v_lshlrev_b32 v{vT2}, 2, v{vT2}",
         f"v_add3_u32 v{vT0}, v{vT0}, v{vT1}, v{vT2}",
         f"s_lshr_b32 s{sT0}, s{sWave}, 2", f"s_lshl_b32 s{sT0}, s{sT0}, 5", f"s_add_u32 s{sT0}, s{sT0}, s{sM}",
         f"s_lshl_b32 s{sT0}, s{sT0}, 2", f"s_add_u32 s{sT0}, s{sT0}, {WS_WOFF}",
         f"v_lshlrev_b32 v{vT0}, 2, v{vT0}",
         f"buffer_load_dword v{vE0 + 12}, v{vT0}, {sr(S_WS, 4)}, s{sT0} offen sc1")


def wo_prefetch(tag):
    emit(f"s_mov_b32 s{sCnt}, {OPT['spin_limit']}")
    lab(f"L_wochk_{tag}")
    emit("s_waitcnt vmcnt(0)",
         f"v_cmp_ne_u32_e64 {sr(sMA, 2)}, s{sNonce}, v{vE0 + 12}", "s_nop 3",
         f"s_cmp_eq_u64 {sr(sMA, 2)}, 0", f"s_cbranch_scc1 L_wook_{tag}", "s_sleep 1")
    wo_flag_load()
    emit(f"s_sub_u32 s{sCnt}, s{sCnt}, 1", f"s_cmp_lg_u32 s{sCnt}, 0", f"s_cbranch_scc1 L_wochk_{tag}")
    spin_fail(2)
    lab(f"L_wook_{tag}")
    emit(f"s_and_b32 s{sT1}, s{sWave}, 3", f"s_lshl_b32 s{sT2}, s{sM}, 2", f"s_add_u32 s{sT1}, s{sT1}, s{sT2}",
         f"s_lshl_b32 s{sT1}, s{sT1}, 10",
         f"s_lshr_b32 s{sT2}, s{sWave}, 2", f"s_lshl_b32 s{sT2}, s{sT2}, 17",
         f"s_add_u32 s{sT1}, s{sT1}, s{sT2}", f"s_add_u32 s{sT1}, s{sT1}, {WS_WOF}")
    for j in range(4):
        emit(f"s_xor_b32 s{sT2}, s{sM}, {j}", f"s_and_b32 s{sT3}, s{sT2}, 1", f"s_lshl_b32 s{sT3}, s{sT3}, 19",
             f"s_lshr_b32 s{sT2}, s{sT2}, 1", f"s_lshl_b32 s{sT2}, s{sT2}, 18",
             f"s_add_u32 s{sT0}, s{sT1}, s{sT2}", f"s_add_u32 s{sT0}, s{sT0}, s{sT3}")
        for i in range(8):
            emit(f"buffer_load_dwordx4 {ar(4 * (8 * j + i), 4)}, v{vL16}, {sr(S_WS, 4)}, s{sT0} offen" + (" sc1" if OPT['ld_sc1'] else ""))
            if i < 7:
                emit(f"s_add_u32 s{sT0}, s{sT0}, 16384")


TB = 2048
POS = (2, 5, 11)


def phase(X, Y, QY, OX, OY, sh0, sh1, sh2, VA0, VA1, extra=None):
    for i in range(16):
        if i == POS[0]:
            emit(f"v_smfmac_f32_32x32x32_bf16 {vr(OY, 16)}, {vr(VA1, 4)}, {vr(Y + 8, 8)}, v{IDX}", *sh0)
        if i == POS[1]:
            emit(f"v_mfma_f32_32x32x16_bf16 {vr(Y, 16)}, {vr(KF, 4)}, {vr(QY, 4)}, 0", *sh1)
        if i == POS[2]:
            emit(f"v_smfmac_f32_32x32x32_bf16 {vr(OX, 16)}, {vr(VA0, 4)}, {vr(X, 8)}, v{IDX}", *sh2)
        if extra and i in extra:
            emit(*extra[i])
        emit(f"v_exp_f32 v{X + i}, v{X + i}")


def main_loop():
    cmt("attention, fast path")
    emit(f"s_mov_b32 s{sIter}, 0")
    emit(".p2align 6")
    lab("L_main")
    stamp_iter()
    emit(f"s_cmp_eq_u32 s{sIter}, s{sI1}", "s_cbranch_scc1 L_blk_1", f"s_cmp_eq_u32 s{sIter}, s{sI2}", "s_cbranch_scc1 L_blk_2")
    lab("L_main_go")
    for t in range(8):
        if t == 7:
            emit(f"s_cmp_ge_u32 s{sRD}, 2", "s_cbranch_scc0 L_blk_rd")
            lab("L_main_t7")
        c0, c1 = (V0, V1) if t % 2 == 0 else (V0b, V1b)
        n0, n1 = (V0b, V1b) if t % 2 == 0 else (V0, V1)
        both = [f"s_mov_b64 exec, {sr(sVM, 2)}",
                f"ds_read_b128 {vr(n0, 4)}, v{AV} offset:{(t + 1) * TB + 1024}",
                f"ds_read_b128 {vr(n1, 4)}, v{AV} offset:{(t + 1) * TB + 1536}",
                "s_mov_b64 exec, -1"]
        sh1 = [f"ds_read_b128 {vr(KF, 4)}, v{AK} offset:{(t + 1) * TB}"]
        exb = None
        if t == 6:
            sh1.append(f"ds_read_b32 v{vRDv}, v{vRDa}")
            exb = {8: [f"v_readfirstlane_b32 s{sRD}, v{vRDv}"]}
        phase(S0, S1, Qb, Oa, Ob, both, sh1, [], c0, n1)
        phase(S1, S0, Qa, Ob, Oa, ["s_waitcnt lgkmcnt(0)"], [], [], c0, c1, extra=exb)
    emit(f"v_add_u32 v{AK}, 0x4000, v{AK}", f"v_add_u32 v{AV}, 0x4000, v{AV}", f"v_add_u32 v{vRDa}, 4, v{vRDa}",
         f"s_add_u32 s{sIter}, s{sIter}, 1", f"s_cmp_lt_u32 s{sIter}, 8", "s_cbranch_scc1 L_main")
    emit("s_nop 1", f"v_smfmac_f32_32x32x32_bf16 {vr(Ob, 16)}, {vr(V1b, 4)}, {vr(S1 + 8, 8)}, v{IDX}")
    lab("L_epi")


def main_blocks():
    lab("L_blk_1")
    emit(f"s_cmp_ge_u32 s{sWave}, 4", "s_cbranch_scc1 L_blk_1b")
    wo_flag_load()
    emit("s_branch L_main_go")
    lab("L_blk_1b")
    lds_wait(M_FQD, 8)
    gate_factor()
    emit("s_branch L_main_go")
    lab("L_blk_2")
    emit(f"s_cmp_ge_u32 s{sWave}, 4", "s_cbranch_scc1 L_blk_2b")
    gate_factor()
    wo_prefetch("f")
    emit("s_branch L_main_go")
    lab("L_blk_2b")
    emit("s_setprio 0", "s_branch L_main_go")
    lab("L_blk_rd")
    emit("s_waitcnt lgkmcnt(0)")
    lds_wait(0, 2, addr=vRDa)
    emit("s_branch L_main_t7")


def slow_path():
    cmt("attention, true-max path (online softmax)")
    lab("L_slow")
    emit(f"v_mov_b32 v{vMa}, 0xff800000", f"v_mov_b32 v{vMb}, 0xff800000", f"s_mov_b32 s{sIter}, 0",
         f"v_add_u32 v{vRDa}, {M_RD}, v{vMisc}")
    lab("L_slow_loop")
    emit(f"s_and_b32 s{sT0}, s{sIter}, 7", f"s_cmp_eq_u32 s{sT0}, 0", "s_cbranch_scc0 L_slow_nb")
    lds_wait(0, 2, addr=vRDa)
    emit(f"v_add_u32 v{vRDa}, 4, v{vRDa}")
    lab("L_slow_nb")
    emit(f"ds_read_b128 {vr(KF, 4)}, v{AK}",
         f"s_mov_b64 exec, {sr(sVM, 2)}",
         f"ds_read_b128 {vr(V0, 4)}, v{AV} offset:1024", f"ds_read_b128 {vr(V1, 4)}, v{AV} offset:1536",
         "s_mov_b64 exec, -1", "s_waitcnt lgkmcnt(0)")
    for (Q, O, M) in ((Qa, Oa, vMa), (Qb, Ob, vMb)):
        emit(f"v_mfma_f32_32x32x16_bf16 {vr(S0, 16)}, {vr(KF, 4)}, {vr(Q, 4)}, 0", "s_nop 15",
             f"v_max3_f32 v{vT0}, v{S0}, v{S0 + 1}, v{S0 + 2}")
        for i in range(3, 15, 2):
            emit(f"v_max3_f32 v{vT0}, v{vT0}, v{S0 + i}, v{S0 + i + 1}")
        emit(f"v_max_f32 v{vT0}, v{vT0}, v{S0 + 15}", "s_nop 0", f"v_mov_b32 v{vT1}, v{vT0}", "s_nop 1",
             f"v_permlane32_swap_b32 v{vT0}, v{vT1}", "s_nop 1",
             f"v_max3_f32 v{vT0}, v{vT0}, v{vT1}, v{M}",
             f"v_sub_f32 v{vT1}, v{M}, v{vT0}", f"v_exp_f32 v{vT1}, v{vT1}", f"v_mov_b32 v{M}, v{vT0}")
        for i in range(9):
            emit(f"v_mul_f32 v{O + i}, v{vT1}, v{O + i}")
        for i in range(16):
            emit(f"v_sub_f32 v{S0 + i}, v{S0 + i}, v{vT0}")
        for i in range(16):
            emit(f"v_exp_f32 v{S0 + i}, v{S0 + i}")
        emit("s_nop 1",
             f"v_smfmac_f32_32x32x32_bf16 {vr(O, 16)}, {vr(V0, 4)}, {vr(S0, 8)}, v{IDX}",
             f"v_smfmac_f32_32x32x32_bf16 {vr(O, 16)}, {vr(V1, 4)}, {vr(S0 + 8, 8)}, v{IDX}")
    emit(f"v_add_u32 v{AK}, {TB}, v{AK}", f"v_add_u32 v{AV}, {TB}, v{AV}",
         f"s_add_u32 s{sIter}, s{sIter}, 1", f"s_cmp_lt_u32 s{sIter}, 64", "s_cbranch_scc1 L_slow_loop")
    gate_factor()
    emit(f"s_cmp_ge_u32 s{sWave}, 4", "s_cbranch_scc1 L_epi")
    wo_flag_load()
    wo_prefetch("s")
    emit("s_branch L_epi")


def tail():
    cmt("normalise, gate, publish O fragments (global for the partners, LDS for ourselves)")
    emit("s_nop 15")
    P = 112
    for k, O in enumerate((Oa, Ob)):
        emit(f"v_rcp_f32 v{vT0}, v{O + 8}", "s_nop 0", f"v_mul_f32 v{vT0}, v{vT0}, v{vGate}")
        for i in range(8):
            emit(f"v_mul_f32 v{O + i}, v{vT0}, v{O + i}")
        for i in range(4):
            emit(f"v_cvt_pk_bf16_f32 v{P + 4 * k + i}, v{O + 2 * i}, v{O + 2 * i + 1}")
    emit(f"s_lshl_b32 s{sT1}, s{sB}, 15", f"s_lshl_b32 s{sT2}, s{sHH}, 14", f"s_add_u32 s{sT1}, s{sT1}, s{sT2}",
         f"s_lshl_b32 s{sT2}, s{sWave}, 11", f"s_add_u32 s{sT1}, s{sT1}, s{sT2}",
         f"s_lshl_b32 s{sT0}, s{sRB}, 16", f"s_add_u32 s{sT0}, s{sT0}, s{sT1}", f"s_add_u32 s{sT0}, s{sT0}, {WS_OF}",
         f"buffer_store_dwordx4 {vr(P, 4)}, v{vL16}, {sr(S_WS, 4)}, s{sT0} offen sc1",
         f"buffer_store_dwordx4 {vr(P + 4, 4)}, v{vL16}, {sr(S_WS, 4)}, s{sT0} offen offset:1024 sc1",
         f"v_add_u32 v{vT0}, s{sT1}, v{vL16}",
         "s_barrier",
         f"ds_write_b128 v{vT0}, {vr(P, 4)}", f"ds_write_b128 v{vT0}, {vr(P + 4, 4)} offset:1024",
         "s_waitcnt vmcnt(0) lgkmcnt(0)", "s_barrier")
    stamp(6)
    ACC = 16
    FR = 48
    emit(f"s_lshl_b32 s{sT4}, s{sRB}, 6", f"s_add_u32 s{sT4}, s{sT4}, {WS_OFL}",
         f"s_cmp_eq_u32 s{sWave}, 0", "s_cbranch_scc0 L_ofl_sent",
         f"s_lshl_b32 s{sT1}, s{sM}, 2", f"s_add_u32 s{sT1}, s{sT1}, s{sT4}",
         f"v_mov_b32 v{vT0}, s{sNonce}", f"v_mov_b32 v{vT1}, 0", "s_mov_b64 exec, 1",
         f"buffer_store_dword v{vT0}, v{vT1}, {sr(S_WS, 4)}, s{sT1} offen sc1", "s_mov_b64 exec, -1")
    lab("L_ofl_sent")

    def bbase(j, dst):
        emit(f"s_xor_b32 s{sT2}, s{sM}, {j}", f"s_and_b32 s{sT3}, s{sT2}, 1", f"s_lshl_b32 s{sT3}, s{sT3}, 15",
             f"s_lshr_b32 s{sT2}, s{sT2}, 1", f"s_lshl_b32 s{sT2}, s{sT2}, 14", f"s_add_u32 s{sT2}, s{sT2}, s{sT3}",
             f"s_lshr_b32 s{sT3}, s{sWave}, 2", f"s_lshl_b32 s{sT3}, s{sT3}, 13", f"s_add_u32 s{sT2}, s{sT2}, s{sT3}",
             f"v_add_u32 v{dst}, s{sT2}, v{vL16}")

    def mm8(j, addr):
        for i in range(8):
            emit(f"ds_read_b128 {vr(FR + 4 * i, 4)}, v{addr} offset:{i * 1024}")
        for i in range(8):
            emit(f"s_waitcnt lgkmcnt({7 - i})",
                 f"v_mfma_f32_32x32x16_bf16 {vr(ACC, 16)}, {ar(4 * (8 * j + i), 4)}, {vr(FR + 4 * i, 4)}, {'0' if (j == 0 and i == 0) else vr(ACC, 16)}")

    for j in range(4):
        bbase(j, 80 + j)
    mm8(0, 80)
    emit(f"s_cmp_eq_u32 s{sWave}, 0", "s_cbranch_scc0 L_ofl_done",
         f"v_and_b32 v{vT1}, 3, v{vLane}", f"v_lshlrev_b32 v{vT1}, 2, v{vT1}",
         f"s_mov_b32 s{sCnt}, {OPT['spin_limit']}")
    lab("L_ofl")
    emit(f"buffer_load_dword v{vT2}, v{vT1}, {sr(S_WS, 4)}, s{sT4} offen sc1", "s_waitcnt vmcnt(0)",
         f"v_cmp_ne_u32_e64 {sr(sMA, 2)}, s{sNonce}, v{vT2}", "s_nop 3",
         f"s_cmp_eq_u64 {sr(sMA, 2)}, 0", "s_cbranch_scc1 L_ofl_done",
         f"s_sub_u32 s{sCnt}, s{sCnt}, 1", f"s_cmp_lg_u32 s{sCnt}, 0", "s_cbranch_scc1 L_ofl")
    spin_fail(3)
    lab("L_ofl_done")
    emit("s_barrier")
    stamp(7)
    for j in range(1, 4):
        emit(f"s_xor_b32 s{sT2}, s{sM}, {j}", f"s_and_b32 s{sT3}, s{sT2}, 1", f"s_lshl_b32 s{sT3}, s{sT3}, 15",
             f"s_lshr_b32 s{sT2}, s{sT2}, 1", f"s_lshl_b32 s{sT2}, s{sT2}, 14", f"s_add_u32 s{sT2}, s{sT2}, s{sT3}",
             f"s_lshl_b32 s{sT3}, s{sWave}, 11", f"s_add_u32 s{sT2}, s{sT2}, s{sT3}",
             f"s_mov_b32 m0, s{sT2}",
             f"s_lshl_b32 s{sT0}, s{sRB}, 16", f"s_add_u32 s{sT0}, s{sT0}, s{sT2}", f"s_add_u32 s{sT0}, s{sT0}, {WS_OF}")
        dma(vL16, S_WS, f"s{sT0}", sc1=OPT['ld_sc1'])
        dma(vL16, S_WS, f"s{sT0}", imm=1024, sc1=OPT['ld_sc1'])
    for j in range(1, 4):
        emit(f"s_waitcnt vmcnt({2 * (3 - j)})", "s_barrier")
        mm8(j, 80 + j)
    stamp(8)
    emit(f"s_lshl_b32 s{sT0}, s{sWave}, 11", f"s_add_u32 s{sT0}, s{sT0}, {LDS_RED}",
         f"s_xor_b32 s{sT1}, s{sWave}, 4", f"s_lshl_b32 s{sT1}, s{sT1}, 11", f"s_add_u32 s{sT1}, s{sT1}, {LDS_RED}",
         f"v_add_u32 v{vT0}, s{sT0}, v{vL16}", f"v_add_u32 v{vT3}, s{sT1}, v{vL16}",
         f"v_and_b32 v{vT1}, 31, v{vLane}", f"v_lshlrev_b32 v{vT1}, 10, v{vT1}",
         f"v_lshrrev_b32 v{vT2}, 5, v{vLane}", f"v_lshlrev_b32 v{vT2}, 3, v{vT2}", f"v_add_u32 v{vT1}, v{vT1}, v{vT2}",
         f"s_lshl_b32 s{sT0}, s{sM}, 8", f"s_and_b32 s{sT1}, s{sWave}, 3", f"s_lshl_b32 s{sT1}, s{sT1}, 6",
         f"s_add_u32 s{sT0}, s{sT0}, s{sT1}", f"s_add_u32 s{sT0}, s{sT0}, s{sXbase}",
         "s_nop 7",
         f"s_cmp_ge_u32 s{sWave}, 4", "s_cbranch_scc1 L_red_hi")
    for hi in (0, 1):
        if hi:
            lab("L_red_hi")
        give = 8 if hi == 0 else 0
        keep = 0 if hi == 0 else 8
        emit(f"ds_write_b128 v{vT0}, {vr(ACC + give, 4)}", f"ds_write_b128 v{vT0}, {vr(ACC + give + 4, 4)} offset:1024",
             "s_waitcnt lgkmcnt(0)", "s_barrier",
             f"ds_read_b128 {vr(48, 4)}, v{vT3}", f"ds_read_b128 {vr(52, 4)}, v{vT3} offset:1024",
             "s_waitcnt lgkmcnt(0)")
        for i in range(8):
            emit(f"v_add_f32 v{ACC + keep + i}, v{ACC + keep + i}, v{48 + i}")
        for i in range(4):
            emit(f"v_cvt_pk_bf16_f32 v{64 + i}, v{ACC + keep + 2 * i}, v{ACC + keep + 2 * i + 1}")
        for q in range(2):
            o = (keep // 4 + q) * 16
            emit(f"buffer_store_dwordx2 {vr(64 + 2 * q, 2)}, v{vT1}, {sr(S_OUT, 4)}, s{sT0} offen" + (f" offset:{o}" if o else ""))
        if hi == 0:
            emit(f"s_or_b32 s{sT0}, s2, s{sWave}", f"s_cmp_eq_u32 s{sT0}, 0", "s_cbranch_scc0 L_fin",
                 f"v_mov_b32 v{vT0}, s{sNonce}", f"v_mov_b32 v{vT1}, 0", f"s_mov_b32 s{sT0}, {WS_W}", "s_mov_b64 exec, 1",
                 f"buffer_store_dword v{vT0}, v{vT1}, {sr(S_WS, 4)}, s{sT0} offen sc1", "s_mov_b64 exec, -1", "s_branch L_fin")
    lab("L_fin")
    stamp(9)
    emit("s_waitcnt vmcnt(0)")
    lab("L_end")
    emit("s_endpgm")


def build():
    prologue()
    stamp(0)
    front()
    stamp(1)
    q_proj()
    reg_init()
    stamp(2)
    kv_own_loads()
    stamp(3)
    start_attention()
    stamp(4)
    main_loop()
    stamp(5)
    tail()
    main_blocks()
    slow_path()


HEADER = open(os.path.join(os.path.dirname(os.path.abspath(__file__)), "cdna_kernels", NAME + ".s.ref")).read().split("; Override launch")[0]


def render():
    build()
    out = [HEADER.rstrip("\n"),
           "; Override launch geometry by editing the next line (default: block=256,",
           "; grid=ceil(out_elems/256), lds=0). Harness parses it; keep it on one line.",
           f"; @launch grid=(256,1,1) block=(512,1,1) lds={LDS_TOTAL}",
           '.amdgcn_target "amdgcn-amd-amdhsa--gfx950"', ".text", f".globl {NAME}_kernel", ".p2align 8",
           f".type {NAME}_kernel,@function", f"{NAME}_kernel:"]
    for l in L:
        if l.endswith(":") or l.startswith(";") or l.startswith("."):
            out.append(l)
        else:
            out.append("    " + l)
    out += ['.section .rodata,"a"', ".p2align 6", f".amdhsa_kernel {NAME}_kernel",
            "  .amdhsa_next_free_vgpr 256", "  .amdhsa_next_free_sgpr 102", "  .amdhsa_accum_offset 128",
            "  .amdhsa_group_segment_fixed_size 0", "  .amdhsa_kernarg_size 112", "  .amdhsa_user_sgpr_count 2",
            "  .amdhsa_user_sgpr_kernarg_segment_ptr 1", "  .amdhsa_system_sgpr_workgroup_id_x 1",
            ".end_amdhsa_kernel", ""]
    return "\n".join(out)


if __name__ == "__main__":
    dst = os.environ.get("OUT", os.path.join(os.path.dirname(os.path.abspath(__file__)), "cdna_kernels", NAME + ".s"))
    open(dst, "w").write(render())
    print("wrote", dst, len(L), "lines")
```

```python
import sys, os, struct

NAME = "gated_mix__grouped_kv_mqa__grouped_kv_mqa__prompt"

OPT = dict(
    spin_limit=1 << 18,
    force_slow=False,
    stamps=False,
    ld_sc1=False,
    q_exp=0,
    out_pol='',
    T2=1600.0,
    prio_g1=0,
    prio_g2=1,
    g2_drop=6,
    g2_drop_tile=5,
)
for a in sys.argv[1:]:
    if "=" in a:
        k, v = a.split("=", 1)
        if k in OPT:
            OPT[k] = type(OPT[k])(eval(v))
        else:
            raise SystemExit("unknown option " + k)

LDS_WK = 0
LDS_WV = 16384
LDS_WQ = 32768
LDS_XT = 98304
LDS_GW = 131072
LDS_WOS = LDS_GW + 1024
LDS_GP = LDS_WOS + 4096
LDS_MISC = LDS_GP + 1024
LDS_DUMMY = LDS_MISC + 256
LDS_TOTAL = LDS_DUMMY + 1024
LDS_OG = 0
LDS_RED = 65536
M_KMAX, M_VMAX, M_FKV, M_FXB, M_FQG1, M_FQD, M_RD = 0, 4, 8, 12, 16, 20, 32

WS_KV = 0
WS_FLAG = 0x40000
WS_KVF = WS_FLAG
WS_WOFF = WS_FLAG + 4096
WS_OFL = WS_FLAG + 8192
WS_W = WS_FLAG + 16384
WS_WOF = 0x80000
WS_OF = 0x200000
WS_SIZE = 0x600000

CSCALE = 0x3EB8AA3B
NLOG2E = 0xBFB8AA3B

S_X, S_WQ, S_WK, S_WV, S_WO, S_GW, S_OUT, S_WS = 32, 36, 40, 44, 48, 52, 56, 60
sWave, sRB, sM, sB, sHH, sRot, sNonce = 64, 65, 66, 67, 68, 69, 70
sT0, sT1, sT2, sT3, sT4, sT5 = 71, 72, 73, 74, 75, 76
sS, sK, sSl, sRing, sQoff, sIter = 77, 78, 79, 82, 83, 84
sVM = 80
sXbase = 85
sCnt = 86
sRD = 87
sI1, sI2 = 98, 99
sMA, sMB = 88, 90
sMC, sMD = 92, 94
sSt = 96

vLane, vL16, vGate, vT0, vT1, vT2, vT3 = 1, 2, 3, 4, 5, 6, 7
Qa, Qb = 8, 12
Oa, Ob = 16, 32
S0, S1 = 48, 64
KF = 80
V0, V1, V0b, V1b = 84, 88, 92, 96
IDX, AK, AV = 100, 101, 102
vNon = 103
vXB, vWA, vA, vMisc = 104, 105, 106, 107
vMa, vMb = 108, 109
vNa, vNb = 110, 111
vGA = 108
vE0 = 112
vRDa, vRDv = 122, 123

L = []
_uid = [0]


def uid():
    _uid[0] += 1
    return _uid[0]


def emit(*lines):
    for l in lines:
        L.append(l)


def lab(name):
    L.append(name + ":")


def vr(b, n):
    return f"v[{b}:{b + n - 1}]"


def ar(b, n):
    return f"a[{b}:{b + n - 1}]"


def sr(b, n):
    return f"s[{b}:{b + n - 1}]"


def cmt(s):
    L.append(f"; ---- {s}")


def stamp(i):
    if not OPT["stamps"]:
        return

    def one(instr, slot):
        emit(f"{instr} {sr(sSt, 2)}", "s_waitcnt lgkmcnt(0)",
             f"s_lshl_b32 s{sSt + 1}, s2, 3", f"s_add_u32 s{sSt + 1}, s{sSt + 1}, s{sWave}", f"s_lshl_b32 s{sSt + 1}, s{sSt + 1}, 7",
             f"s_add_u32 s{sSt + 1}, s{sSt + 1}, {0x700000 + 4 * slot}",
             f"v_mov_b32 v{vE0 + 14}, s{sSt}", f"v_mov_b32 v{vE0 + 15}, s{sSt + 1}",
             f"global_store_dword v{vE0 + 15}, v{vE0 + 14}, s[30:31]")
    one("s_memrealtime", i)
    if i in (0, 9):
        one("s_memtime", 14 if i == 0 else 15)


def stamp_iter():
    if not OPT["stamps"]:
        return
    emit(f"s_memrealtime {sr(sSt, 2)}", "s_waitcnt lgkmcnt(0)",
         f"s_lshl_b32 s{sSt + 1}, s2, 3", f"s_add_u32 s{sSt + 1}, s{sSt + 1}, s{sWave}", f"s_lshl_b32 s{sSt + 1}, s{sSt + 1}, 5",
         f"s_add_u32 s{sSt + 1}, s{sSt + 1}, s{sIter}", f"s_lshl_b32 s{sSt + 1}, s{sSt + 1}, 2",
         f"s_add_u32 s{sSt + 1}, s{sSt + 1}, {0x700000 + 64}",
         f"v_mov_b32 v{vE0 + 14}, s{sSt}", f"v_mov_b32 v{vE0 + 15}, s{sSt + 1}",
         f"global_store_dword v{vE0 + 15}, v{vE0 + 14}, s[30:31]")


def dma(vaddr, srd, soff, m0expr=None, imm=0, sc1=False):
    if m0expr is not None:
        emit(f"s_mov_b32 m0, {m0expr}", "s_nop 0")
    s = f"buffer_load_dwordx4 v{vaddr}, {sr(srd, 4)}, {soff} offen"
    if imm:
        s += f" offset:{imm}"
    if sc1:
        s += " sc1"
    emit(s + " lds")


def spin_fail(code):
    emit(f"v_mov_b32 v{vT0}, {code}", f"v_mov_b32 v{vT1}, 60", f"global_store_dword v{vT1}, v{vT0}, s[28:29]")


def lds_wait(off, val, addr=None):
    n = uid()
    a = f"v{vMisc} offset:{off}" if addr is None else f"v{addr}"
    emit(f"s_mov_b32 s{sCnt}, {OPT['spin_limit']}")
    lab(f"L_lw{n}")
    emit(f"ds_read_b32 v{vT2}, {a}", "s_waitcnt lgkmcnt(0)", f"v_readfirstlane_b32 s{sT5}, v{vT2}", "s_nop 1",
         f"s_cmp_ge_u32 s{sT5}, {val}", f"s_cbranch_scc1 L_lwd{n}", "s_sleep 1",
         f"s_sub_u32 s{sCnt}, s{sCnt}, 1", f"s_cmp_lg_u32 s{sCnt}, 0", f"s_cbranch_scc1 L_lw{n}")
    spin_fail(8 + off)
    lab(f"L_lwd{n}")


def lds_add(off, val, addr=None):
    a = f"v{vMisc}, v{vT2} offset:{off}" if addr is None else f"v{addr}, v{vT2}"
    emit(f"v_mov_b32 v{vT2}, {val}", "s_mov_b64 exec, 1", f"ds_add_u32 {a}", "s_mov_b64 exec, -1")


def prologue():
    cmt("prologue")
    emit("s_cmp_ge_u32 s2, 256", "s_cbranch_scc1 L_end",
         "s_load_dwordx16 s[4:19], s[0:1], 0",
         "s_load_dwordx8 s[20:27], s[0:1], 64",
         "s_load_dwordx4 s[28:31], s[0:1], 96",
         f"s_and_b32 s3, s2, 7",
         f"s_lshr_b32 s{sRB}, s2, 5",
         f"s_lshl_b32 s{sRot}, s{sRB}, 2",
         f"s_lshl_b32 s{sRB}, s{sRB}, 3",
         f"s_add_u32 s{sRB}, s{sRB}, s3",
         f"s_lshr_b32 s{sM}, s2, 3",
         f"s_and_b32 s{sM}, s{sM}, 3",
         f"s_and_b32 s{sB}, s{sM}, 1",
         f"s_lshr_b32 s{sHH}, s{sM}, 1",
         f"v_and_b32 v{vLane}, 63, v0",
         f"v_lshrrev_b32 v{vT0}, 6, v0",
         f"v_lshlrev_b32 v{vL16}, 4, v{vLane}",
         f"s_lshl_b32 s{sXbase}, s{sRB}, 15",
         f"v_readfirstlane_b32 s{sWave}, v{vT0}",
         f"s_mov_b32 s{sVM}, 0x0000ffff", f"s_mov_b32 s{sVM + 1}, 0x0000ffff",
         f"v_mov_b32 v{vMisc}, {LDS_MISC}",
         "s_waitcnt lgkmcnt(0)")
    emit(f"s_mov_b32 s{S_X}, s4", f"s_mov_b32 s{S_X + 1}, s5", f"s_mov_b32 s{S_X + 2}, 0x200000", f"s_mov_b32 s{S_X + 3}, 0x20000",
         f"s_mov_b32 s{S_WS}, s30", f"s_mov_b32 s{S_WS + 1}, s31", f"s_mov_b32 s{S_WS + 2}, {WS_SIZE}", f"s_mov_b32 s{S_WS + 3}, 0x20000",
         f"s_cmp_eq_u32 s{sB}, 0",
         f"s_cselect_b32 s{S_WK}, s8, s18", f"s_cselect_b32 s{S_WK + 1}, s9, s19",
         f"s_cselect_b32 s{S_WV}, s10, s20", f"s_cselect_b32 s{S_WV + 1}, s11, s21",
         f"s_cselect_b32 s{S_WQ}, s6, s16", f"s_cselect_b32 s{S_WQ + 1}, s7, s17",
         f"s_mov_b32 s{S_WK + 2}, 0x4000", f"s_mov_b32 s{S_WK + 3}, 0x20000",
         f"s_mov_b32 s{S_WV + 2}, 0x4000", f"s_mov_b32 s{S_WV + 3}, 0x20000",
         f"s_mov_b32 s{S_WQ + 2}, 0x80000", f"s_mov_b32 s{S_WQ + 3}, 0x20000")
    emit(f"v_mov_b32 v{vT1}, 0", f"s_mov_b32 s{sT0}, {WS_W}",
         f"buffer_load_dword v{vNon}, v{vT1}, {sr(S_WS, 4)}, s{sT0} offen sc1")


def xrow_load(srow):
    emit(f"s_and_b32 s{sT0}, s{srow}, 15",
         f"s_lshl_b32 s{sT0}, s{sT0}, 4",
         f"s_lshl_b32 s{sT1}, s{srow}, 10",
         f"v_xor_b32 v{vT0}, s{sT0}, v{vL16}",
         f"s_add_u32 m0, s{sT1}, {LDS_XT}",
         f"s_add_u32 s{sT2}, s{sT1}, s{sXbase}")
    dma(vT0, S_X, f"s{sT2}")


def group_a():
    cmt("group A loads: own K/V x rows, wk, wv")
    emit(f"s_lshl_b32 s{sT3}, s{sHH}, 4", f"s_lshl_b32 s{sT4}, s{sWave}, 1", f"s_add_u32 s{sT3}, s{sT3}, s{sT4}")
    xrow_load(sT3)
    emit(f"s_add_u32 s{sT3}, s{sT3}, 1")
    xrow_load(sT3)
    emit(f"s_lshr_b32 s{sT0}, s2, 4", f"s_add_u32 s{sT0}, s{sT0}, s{sWave}", f"s_and_b32 s{sT0}, s{sT0}, 7",
         f"s_lshl_b32 s{sT0}, s{sT0}, 11",
         f"s_add_u32 s{sT1}, s{sT0}, {LDS_WK}", f"s_mov_b32 m0, s{sT1}", f"s_add_u32 s{sT1}, s{sT0}, {LDS_WV}")
    dma(vL16, S_WK, f"s{sT0}")
    dma(vL16, S_WK, f"s{sT0}", imm=1024)
    emit(f"s_mov_b32 m0, s{sT1}", "s_nop 0")
    dma(vL16, S_WV, f"s{sT0}")
    dma(vL16, S_WV, f"s{sT0}", imm=1024)


def wq_prefill(tag):
    emit(f"s_mov_b32 s{sK}, s{sRot}", f"s_mov_b32 s{sSl}, s{sRing}", f"s_mov_b32 s{sCnt}, 8")
    lab(f"L_pf_{tag}")
    emit(f"s_lshl_b32 s{sT0}, s{sK}, 14", f"s_mov_b32 m0, s{sSl}", f"s_add_u32 s{sT0}, s{sT0}, s{sQoff}")
    dma(vA, S_WQ, f"s{sT0}")
    emit(f"s_add_u32 s{sK}, s{sK}, 1", f"s_and_b32 s{sK}, s{sK}, 31", f"s_add_u32 s{sSl}, s{sSl}, 1024",
         f"s_sub_u32 s{sCnt}, s{sCnt}, 1", f"s_cmp_lg_u32 s{sCnt}, 0", f"s_cbranch_scc1 L_pf_{tag}")


def nonce():
    emit("s_nop 0", f"v_readfirstlane_b32 s{sNonce}, v{vNon}", "s_nop 3",
         f"s_mul_i32 s{sNonce}, s{sNonce}, 0x9E3779B1", f"s_add_u32 s{sNonce}, s{sNonce}, 0x7F4A7C15")


def group_b(half):
    n = uid()
    emit(f"s_xor_b32 s{sT3}, s{sHH}, 1", f"s_lshl_b32 s{sT3}, s{sT3}, 4", f"s_add_u32 s{sT3}, s{sT3}, {8 * half}",
         f"s_mov_b32 s{sCnt}, 8")
    lab(f"L_gb{n}")
    xrow_load(sT3)
    emit(f"s_add_u32 s{sT3}, s{sT3}, 1", f"s_sub_u32 s{sCnt}, s{sCnt}, 1", f"s_cmp_lg_u32 s{sCnt}, 0", f"s_cbranch_scc1 L_gb{n}")


def front():
    group_a()
    emit(f"s_mov_b32 s{S_GW}, s24", f"s_mov_b32 s{S_GW + 1}, s25", f"s_mov_b32 s{S_GW + 2}, 0x400", f"s_mov_b32 s{S_GW + 3}, 0x20000",
         f"s_mov_b32 s{S_OUT}, s26", f"s_mov_b32 s{S_OUT + 1}, s27", f"s_mov_b32 s{S_OUT + 2}, 0x200000", f"s_mov_b32 s{S_OUT + 3}, 0x20000",
         f"s_cmp_lt_u32 s2, 128",
         f"s_cselect_b32 s{S_WO}, s12, s22", f"s_cselect_b32 s{S_WO + 1}, s13, s23",
         f"s_mov_b32 s{S_WO + 2}, 0x80000", f"s_mov_b32 s{S_WO + 3}, 0x20000")
    emit(f"v_lshrrev_b32 v{vT0}, 2, v{vLane}", f"v_lshlrev_b32 v{vT0}, 10, v{vT0}",
         f"v_and_b32 v{vT1}, 3, v{vLane}", f"v_lshlrev_b32 v{vT1}, 4, v{vT1}",
         f"v_add_u32 v{vA}, v{vT0}, v{vT1}",
         f"s_lshl_b32 s{sQoff}, s{sHH}, 9", f"s_lshl_b32 s{sT0}, s{sWave}, 6", f"s_add_u32 s{sQoff}, s{sQoff}, s{sT0}",
         f"s_lshl_b32 s{sRing}, s{sWave}, 13", f"s_add_u32 s{sRing}, s{sRing}, {LDS_WQ}")
    emit(f"s_cmp_ge_u32 s{sWave}, 4", "s_cbranch_scc1 L_role_wq",
         f"s_cmp_ge_u32 s{sWave}, 2", "s_cbranch_scc0 L_role_wq", f"s_cmp_eq_u32 s{sWave}, 3", "s_cbranch_scc1 L_role_wo")
    group_b(0)
    dma(vL16, S_GW, "0", m0expr=str(LDS_GW))
    emit("s_branch L_role_wq")
    lab("L_role_wo")
    group_b(1)
    emit(f"v_lshrrev_b32 v{vT0}, 4, v{vLane}", f"v_lshlrev_b32 v{vT0}, 10, v{vT0}",
         f"v_and_b32 v{vT1}, 15, v{vLane}", f"v_lshlrev_b32 v{vT1}, 4, v{vT1}", f"v_add_u32 v{vT0}, v{vT0}, v{vT1}",
         f"s_lshr_b32 s{sT0}, s2, 2", f"s_and_b32 s{sT0}, s{sT0}, 31", f"s_lshl_b32 s{sT0}, s{sT0}, 14",
         f"s_and_b32 s{sT1}, s2, 3", f"s_lshl_b32 s{sT1}, s{sT1}, 8", f"s_add_u32 s{sT0}, s{sT0}, s{sT1}")
    emit(f"s_mov_b32 s{sT4}, s{sT0}")
    wq_prefill("b")
    for i in range(4):
        dma(vT0, S_WO, f"s{sT4}", m0expr=str(LDS_WOS + i * 1024))
        if i < 3:
            emit(f"s_add_u32 s{sT4}, s{sT4}, 4096")
    reg_init()
    q_setup()
    emit("s_waitcnt vmcnt(12)", "s_branch L_bar1")
    lab("L_role_wq")
    wq_prefill("c")
    reg_init()
    q_setup()
    emit("s_waitcnt vmcnt(8)")
    lab("L_bar1")
    emit("s_barrier")
    stamp(10)
    nonce()
    emit(f"s_cmp_ge_u32 s{sWave}, {2 if not (OPT['q_exp'] & 8) else 0}", "s_cbranch_scc1 L_qstart")
    kv_proj()
    lab("L_kv_done")
    stamp(12)
    lab("L_qstart")


def kv_proj():
    cmt("K/V projection (waves 0,1)")
    XB = 112
    WA = 116
    ACC = 64
    FR = 0
    emit(f"v_and_b32 v{vT0}, 15, v{vLane}",
         f"v_lshrrev_b32 v{vT1}, 4, v{vLane}",
         f"v_xor_b32 v{vT2}, v{vT1}, v{vT0}",
         f"v_lshlrev_b32 v{vT2}, 4, v{vT2}",
         f"s_lshl_b32 s{sT0}, s{sHH}, 14", f"s_add_u32 s{sT0}, s{sT0}, {LDS_XT}",
         f"v_lshlrev_b32 v{vT3}, 10, v{vT0}",
         f"v_add3_u32 v{XB}, v{vT3}, v{vT2}, s{sT0}",
         f"v_xor_b32 v{XB + 1}, 64, v{XB}", f"v_xor_b32 v{XB + 2}, 128, v{XB}", f"v_xor_b32 v{XB + 3}, 0xc0, v{XB}",
         f"v_lshlrev_b32 v{vT1}, 8, v{vT1}", f"v_lshlrev_b32 v{vT0}, 3, v{vT0}",
         f"s_and_b32 s{sT0}, s{sWave}, 1", f"s_lshl_b32 s{sT0}, s{sT0}, 14",
         f"v_add3_u32 v{WA}, v{vT1}, v{vT0}, s{sT0}")

    def reads(s):
        f = FR + 8 * (s % 4)
        f += 32
        return [f"ds_read_b128 {ar(f, 4)}, v{XB + (s & 3)} offset:{(s >> 2) * 256}",
                f"ds_read_b64_tr_b16 {ar(f + 4, 2)}, v{WA} offset:{LDS_WK + s * 1024}",
                f"ds_read_b64_tr_b16 {ar(f + 6, 2)}, v{WA} offset:{LDS_WK + s * 1024 + 128}"]

    for variant in ("K", "V"):
        if variant == "K":
            emit(f"s_cmp_eq_u32 s{sWave}, 1", "s_cbranch_scc1 L_vproj")
        else:
            lab("L_vproj")
        for s in range(4):
            emit(*reads(s))
        for s in range(16):
            f = 32 + 8 * (s % 4)
            rem = min(3, 15 - s)
            emit(f"s_waitcnt lgkmcnt({3 * rem})")
            acc = ACC + 4 * (s & 1)
            c = "0" if s < 2 else vr(acc, 4)
            if variant == "K":
                emit(f"v_mfma_f32_16x16x32_bf16 {vr(acc, 4)}, {ar(f + 4, 4)}, {ar(f, 4)}, {c}")
            else:
                emit(f"v_mfma_f32_16x16x32_bf16 {vr(acc, 4)}, {ar(f, 4)}, {ar(f + 4, 4)}, {c}")
            if s + 4 < 16:
                emit(*reads(s + 4))
        P = 120
        AD = 117
        if variant == "K":
            emit(f"v_and_b32 v{vT2}, 15, v{vLane}", f"v_bfe_u32 v{vT3}, v{vLane}, 4, 1",
                 f"v_lshlrev_b32 v{vT3}, 5, v{vT3}", f"v_add_u32 v{vT2}, v{vT2}, v{vT3}", f"v_lshlrev_b32 v{AD}, 4, v{vT2}",
                 f"s_lshl_b32 s{sT0}, s{sB}, 17", f"s_lshl_b32 s{sT1}, s{sRB}, 11", f"s_add_u32 s{sT0}, s{sT0}, s{sT1}",
                 f"s_lshl_b32 s{sT1}, s{sHH}, 8", f"s_add_u32 s{sT0}, s{sT0}, s{sT1}",
                 f"s_mov_b32 s{sT2}, {CSCALE:#x}")
            for i in range(4):
                emit(f"v_add_f32 v{ACC + i}, v{ACC + i}, v{ACC + 4 + i}")
            for i in range(4):
                emit(f"v_mul_f32 v{ACC + i}, s{sT2}, v{ACC + i}")
        else:
            emit(f"v_and_b32 v{vT2}, 15, v{vLane}", f"v_lshrrev_b32 v{vT3}, 5, v{vLane}",
                 f"v_lshlrev_b32 v{vT2}, 4, v{vT2}", f"v_lshlrev_b32 v{vT3}, 8, v{vT3}", f"v_add_u32 v{AD}, v{vT2}, v{vT3}",
                 f"s_lshl_b32 s{sT0}, s{sB}, 17", f"s_lshl_b32 s{sT1}, s{sRB}, 11", f"s_add_u32 s{sT0}, s{sT0}, s{sT1}",
                 f"s_lshl_b32 s{sT1}, s{sHH}, 9", f"s_add_u32 s{sT0}, s{sT0}, s{sT1}", f"s_add_u32 s{sT0}, s{sT0}, 1024")
            for i in range(4):
                emit(f"v_add_f32 v{ACC + i}, v{ACC + i}, v{ACC + 4 + i}")
        emit(f"v_cvt_pk_bf16_f32 v{P}, v{ACC}, v{ACC + 1}", f"v_cvt_pk_bf16_f32 v{P + 1}, v{ACC + 2}, v{ACC + 3}", "s_nop 1")
        if variant == "K":
            emit(f"v_permlane32_swap_b32 v{P}, v{P + 2}", f"v_permlane32_swap_b32 v{P + 1}, v{P + 3}",
                 "s_mov_b32 exec_hi, 0",
                 f"buffer_store_dwordx4 {vr(P, 4)}, v{AD}, {sr(S_WS, 4)}, s{sT0} offen sc1",
                 "s_mov_b64 exec, -1")
            emit(f"v_mul_f32 v{vT0}, v{ACC}, v{ACC}")
            for i in range(1, 4):
                emit(f"v_fmac_f32 v{vT0}, v{ACC + i}, v{ACC + i}")
            red = "v_add_f32"
        else:
            emit(f"v_permlane16_swap_b32 v{P}, v{P + 2}", f"v_permlane16_swap_b32 v{P + 1}, v{P + 3}",
                 f"s_mov_b64 exec, {sr(sVM, 2)}",
                 f"buffer_store_dwordx4 {vr(P, 4)}, v{AD}, {sr(S_WS, 4)}, s{sT0} offen sc1",
                 "s_mov_b64 exec, -1")
            emit(f"v_max_f32_e64 v{vT0}, |v{ACC}|, |v{ACC + 1}|", f"v_max3_f32 v{vT0}, |v{ACC + 2}|, |v{ACC + 3}|, v{vT0}")
            red = "v_max_f32"
        emit(f"v_mov_b32 v{vT1}, v{vT0}", "s_nop 1",
             f"v_permlane32_swap_b32 v{vT0}, v{vT1}", "s_nop 1",
             f"{red} v{vT0}, v{vT0}, v{vT1}", "s_nop 0", f"v_mov_b32 v{vT1}, v{vT0}", "s_nop 1",
             f"v_permlane16_swap_b32 v{vT0}, v{vT1}", "s_nop 1",
             f"{red} v{vT0}, v{vT0}, v{vT1}")
        for r in (8, 4, 2, 1):
            emit("s_nop 1", f"v_max_f32_dpp v{vT0}, v{vT0}, v{vT0} row_ror:{r} row_mask:0xf bank_mask:0xf")
        emit(f"s_lshl_b32 s{sT0}, s{sRB}, 1", f"s_add_u32 s{sT0}, s{sT0}, s{sHH}", f"s_lshl_b32 s{sT0}, s{sT0}, 4",
             f"s_lshl_b32 s{sT1}, s{sB}, 11", f"s_add_u32 s{sT0}, s{sT0}, s{sT1}",
             f"s_add_u32 s{sT0}, s{sT0}, {WS_KVF + (0 if variant == 'K' else 8)}",
             f"v_mov_b32 v{P + 5}, v{vT0}", f"v_mov_b32 v{P + 4}, s{sNonce}", f"v_mov_b32 v{vT2}, 0")
        stamp(11)
        emit("s_waitcnt vmcnt(0)",
             "s_mov_b64 exec, 1",
             f"buffer_store_dwordx2 {vr(P + 4, 2)}, v{vT2}, {sr(S_WS, 4)}, s{sT0} offen sc1",
             "s_mov_b64 exec, -1")
        if variant == "K":
            emit("s_branch L_kv_done")


def wof_task():
    cmt("WOF task (wave 3): transpose 4 wo fragments, publish")
    emit(f"s_cmp_eq_u32 s{sWave}, 3", "s_cbranch_scc0 L_wof_done")
    emit(f"v_lshrrev_b32 v{vT0}, 5, v{vLane}", f"v_lshlrev_b32 v{vT0}, 2, v{vT0}",
         f"v_bfe_u32 v{vT1}, v{vLane}, 2, 2", f"v_add_u32 v{vT0}, v{vT0}, v{vT1}", f"v_lshlrev_b32 v{vT0}, 8, v{vT0}",
         f"v_bfe_u32 v{vT1}, v{vLane}, 4, 1", f"v_lshlrev_b32 v{vT1}, 5, v{vT1}",
         f"v_and_b32 v{vT2}, 3, v{vLane}", f"v_lshlrev_b32 v{vT2}, 3, v{vT2}",
         f"v_add3_u32 v{vT0}, v{vT0}, v{vT1}, v{vT2}", f"v_add_u32 v{vT0}, {LDS_WOS}, v{vT0}")
    F = 112
    for f in range(4):
        emit(f"ds_read_b64_tr_b16 {vr(F + 4 * f, 2)}, v{vT0} offset:{f * 64}",
             f"ds_read_b64_tr_b16 {vr(F + 4 * f + 2, 2)}, v{vT0} offset:{f * 64 + 2048}")
    emit(f"s_lshr_b32 s{sT0}, s2, 2", f"s_lshl_b32 s{sT0}, s{sT0}, 14", f"s_and_b32 s{sT1}, s2, 3", f"s_lshl_b32 s{sT1}, s{sT1}, 12",
         f"s_add_u32 s{sT0}, s{sT0}, s{sT1}", f"s_add_u32 s{sT0}, s{sT0}, {WS_WOF}",
         "s_waitcnt lgkmcnt(0)")
    for f in range(4):
        o = f" offset:{f * 1024}" if f else ""
        emit(f"buffer_store_dwordx4 {vr(F + 4 * f, 4)}, v{vL16}, {sr(S_WS, 4)}, s{sT0} offen{o} sc1")
    lab("L_wof_done")


def wof_flag():
    n = uid()
    emit(f"s_cmp_eq_u32 s{sWave}, 3", f"s_cbranch_scc0 L_wf{n}",
         f"s_lshl_b32 s{sT0}, s2, 2", f"s_add_u32 s{sT0}, s{sT0}, {WS_WOFF}",
         f"v_mov_b32 v{vT0}, s{sNonce}", f"v_mov_b32 v{vT1}, 0", "s_mov_b64 exec, 1",
         f"buffer_store_dword v{vT0}, v{vT1}, {sr(S_WS, 4)}, s{sT0} offen sc1", "s_mov_b64 exec, -1")
    lab(f"L_wf{n}")


PF = 112


def poll_issue():
    emit(f"s_lshl_b32 s{sT0}, s{sB}, 11", f"s_add_u32 s{sT0}, s{sT0}, {WS_KVF}",
         f"buffer_load_dwordx4 {ar(16, 4)}, v{vL16}, {sr(S_WS, 4)}, s{sT0} offen sc1",
         f"buffer_load_dwordx4 {ar(20, 4)}, v{vL16}, {sr(S_WS, 4)}, s{sT0} offen offset:1024 sc1")


def poll_kv():
    cmt("wave 7: check the K/V flags (first sample was requested inside the Q loop), fetch key tiles 0..7")
    F = PF
    emit(f"s_cmp_eq_u32 s{sWave}, 7", "s_cbranch_scc0 L_pollkv_done",
         f"v_mov_b32 v{vT0}, 0", f"ds_write_b32 v{vMisc}, v{vT0} offset:{M_KMAX}", f"ds_write_b32 v{vMisc}, v{vT0} offset:{M_VMAX}",
         f"s_mov_b32 s{sCnt}, {OPT['spin_limit']}")
    lab("L_pollkv")
    emit("s_waitcnt vmcnt(0)")
    for i in range(8):
        emit(f"v_accvgpr_read_b32 v{F + i}, a{16 + i}")
    emit(f"v_cmp_ne_u32_e64 {sr(sMA, 2)}, s{sNonce}, v{F}",
         f"v_cmp_ne_u32_e64 {sr(sMB, 2)}, s{sNonce}, v{F + 2}",
         f"v_cmp_ne_u32_e64 {sr(sMC, 2)}, s{sNonce}, v{F + 4}",
         f"v_cmp_ne_u32_e64 {sr(sMD, 2)}, s{sNonce}, v{F + 6}",
         "s_nop 3",
         f"s_or_b64 {sr(sMA, 2)}, {sr(sMA, 2)}, {sr(sMB, 2)}",
         f"s_or_b64 {sr(sMC, 2)}, {sr(sMC, 2)}, {sr(sMD, 2)}",
         f"s_or_b64 {sr(sMA, 2)}, {sr(sMA, 2)}, {sr(sMC, 2)}",
         "s_cbranch_scc0 L_pollkv_ok")
    poll_issue()
    emit(f"s_sub_u32 s{sCnt}, s{sCnt}, 1", f"s_cmp_lg_u32 s{sCnt}, 0", "s_cbranch_scc1 L_pollkv")
    spin_fail(1)
    lab("L_pollkv_ok")
    stamp(13)
    emit(f"s_lshl_b32 s{sT0}, s{sB}, 17", f"s_mov_b32 s{sT1}, 0")
    for g in range(4):
        emit(f"s_mov_b32 m0, s{sT1}", f"s_add_u32 s{sT1}, s{sT1}, 4096")
        for i in range(4):
            dma(vL16, S_WS, f"s{sT0}", imm=1024 * i, sc1=OPT['ld_sc1'])
        if g < 3:
            emit(f"s_add_u32 s{sT0}, s{sT0}, 4096")
    emit(f"v_max_u32 v{F + 1}, v{F + 1}, v{F + 5}", f"v_max_u32 v{F + 3}, v{F + 3}, v{F + 7}",
         f"ds_max_u32 v{vMisc}, v{F + 1} offset:{M_KMAX}", f"ds_max_u32 v{vMisc}, v{F + 3} offset:{M_VMAX}")
    lab("L_pollkv_done")


def barrier_a():
    emit(f"s_cmp_eq_u32 s{sWave}, 7", "s_cbranch_scc0 L_bara", "s_waitcnt vmcnt(0)")
    lab("L_bara")
    emit("s_waitcnt lgkmcnt(0)", "s_barrier")


XB4 = 112
XT4 = 116
QSETS = (32, 64)
GACC = 96


def q_setup():
    cmt("Q projection: addresses, accumulators")
    ACC = S0
    emit(f"v_and_b32 v{vT0}, 31, v{vLane}", f"v_lshrrev_b32 v{vT1}, 5, v{vLane}",
         f"v_and_b32 v{vT2}, 15, v{vLane}", f"v_xor_b32 v{vT2}, v{vT2}, v{vT1}", f"v_lshlrev_b32 v{vT2}, 4, v{vT2}",
         f"v_lshlrev_b32 v{vT0}, 10, v{vT0}", f"v_add_u32 v{vXB}, v{vT0}, v{vT2}", f"v_add_u32 v{vXB}, {LDS_XT}, v{vXB}",
         f"v_bfe_u32 v{vT0}, v{vLane}, 2, 2",
         f"v_lshlrev_b32 v{vT2}, 3, v{vT1}", f"v_add_u32 v{vT2}, v{vT2}, v{vT0}", f"v_lshlrev_b32 v{vT2}, 6, v{vT2}",
         f"v_bfe_u32 v{vT1}, v{vLane}, 4, 1", f"v_lshlrev_b32 v{vT1}, 5, v{vT1}",
         f"v_and_b32 v{vT0}, 3, v{vLane}", f"v_lshlrev_b32 v{vT0}, 3, v{vT0}",
         f"v_add3_u32 v{vT2}, v{vT2}, v{vT0}, v{vT1}",
         f"v_add_u32 v{vWA}, s{sRing}, v{vT2}")
    for i in range(16):
        emit(f"v_mov_b32 v{ACC + i}, 0")
    for i in range(16):
        emit(f"v_accvgpr_write_b32 a{i}, 0")
    emit(f"v_lshrrev_b32 v{vT1}, 5, v{vLane}", f"v_lshlrev_b32 v{vT1}, 4, v{vT1}",
         f"s_lshl_b32 s{sT0}, s{sWave}, 7", f"s_add_u32 s{sT0}, s{sT0}, {LDS_GW}",
         f"v_add_u32 v{vGA}, s{sT0}, v{vT1}")


def q_proj():
    cmt("Q projection (per-wave ring, no barriers)")
    ACC = S0
    QS = (32, 48)
    GF = 64
    for i in range(4):
        emit(f"ds_read_b128 {ar(GF + 4 * i, 4)}, v{vGA} offset:{32 * i}")

    def reads(setbase, slot, i):
        f = setbase + 8 * i
        return [f"v_xor_b32 v{XT4 + i}, s{sK}, v{vXB}",
                f"ds_read_b64_tr_b16 {ar(f, 2)}, v{vWA} offset:{slot * 2048 + i * 1024}",
                f"ds_read_b64_tr_b16 {ar(f + 2, 2)}, v{vWA} offset:{slot * 2048 + i * 1024 + 256}",
                f"ds_read_b128 {ar(f + 4, 4)}, v{XT4 + i}",
                f"s_add_u32 s{sK}, s{sK}, 32", f"s_and_b32 s{sK}, s{sK}, 1023"]

    def stage(j, last_group):
        cur, nxt = QS[j & 1], QS[(j + 1) & 1]
        final = last_group and j == 3
        if last_group:
            w = {0: 4, 1: 2, 2: 0, 3: None}[j]
        else:
            w = 4
        emit(f"s_waitcnt vmcnt({w}) lgkmcnt(0)" if w is not None else "s_waitcnt lgkmcnt(0)")
        if j % 2 == 0:
            emit(f"s_cmp_eq_u32 s{sS}, s{sWave}", "s_cselect_b64 vcc, -1, 0",
                 f"s_add_u32 s{sS}, s{sS}, 1", f"s_and_b32 s{sS}, s{sS}, 7")
        if last_group and j == 2:
            n = uid()
            emit(f"s_cmp_eq_u32 s{sWave}, 7", f"s_cbranch_scc0 L_np{n}")
            poll_issue()
            lab(f"L_np{n}")
        for i in range(2):
            f = cur + 8 * i
            acc = vr(ACC, 16) if i == 0 else ar(0, 16)
            if not (OPT["q_exp"] & 4):
                emit(f"v_mfma_f32_32x32x16_bf16 {acc}, {ar(f, 4)}, {ar(f + 4, 4)}, {acc}")
            if not final and not (OPT["q_exp"] & 1):
                emit(*reads(nxt, (j + 1) & 3, i))
            if not last_group:
                emit(f"s_add_u32 m0, s{sRing}, {j * 2048 + i * 1024}", f"s_add_u32 s{sSl}, s{sSl}, 16384")
                if not (OPT["q_exp"] & 2):
                    pass
                emit(f"s_and_b32 s{sSl}, s{sSl}, 0x7ffff")
                if not (OPT["q_exp"] & 2):
                    dma(vA, S_WQ, f"s{sSl}")
            n = uid()
            gi = 2 * (j & 1) + i
            emit(f"s_cbranch_vccz L_ng{n}",
                 f"v_mfma_f32_32x32x16_bf16 {ar(GACC, 16)}, {ar(GF + 4 * gi, 4)}, {ar(f + 4, 4)}, {'0' if gi == 0 else ar(GACC, 16)}")
            lab(f"L_ng{n}")

    emit(f"s_add_u32 s{sSl}, s{sRot}, 7", f"s_and_b32 s{sSl}, s{sSl}, 31", f"s_lshl_b32 s{sSl}, s{sSl}, 14", f"s_add_u32 s{sSl}, s{sSl}, s{sQoff}",
         f"s_lshl_b32 s{sK}, s{sRot}, 5", f"s_lshr_b32 s{sS}, s{sRot}, 2", f"s_mov_b32 s{sCnt}, 3",
         "s_waitcnt vmcnt(6)")
    stamp(24)
    emit(*reads(QS[0], 0, 0))
    emit(*reads(QS[0], 0, 1))
    lab("L_qloop")
    for j in range(4):
        stage(j, False)
    emit(f"s_sub_u32 s{sCnt}, s{sCnt}, 1", f"s_cmp_lg_u32 s{sCnt}, 0", "s_cbranch_scc1 L_qloop")
    for j in range(4):
        stage(j, True)
    stamp(25)


def q_finish():
    cmt("Q frags + norms, gate partials")
    ACC = S0
    emit(f"v_and_b32 v{vT0}, 31, v{vLane}", f"v_lshlrev_b32 v{vT0}, 5, v{vT0}", f"s_lshl_b32 s{sT0}, s{sWave}, 2",
         f"s_add_u32 s{sT0}, s{sT0}, {LDS_GP}",
         f"v_add_u32 v{vT0}, s{sT0}, v{vT0}",
         "s_nop 7", f"v_accvgpr_read_b32 v{vT1}, a{GACC}")
    emit(f"ds_write_b32 v{vT0}, v{vT1}")
    for i in range(16):
        emit(f"v_accvgpr_read_b32 v{112 + i}, a{i}")
    for i in range(16):
        emit(f"v_add_f32 v{ACC + i}, v{ACC + i}, v{112 + i}")
    for i in range(4):
        emit(f"v_cvt_pk_bf16_f32 v{Qa + i}, v{ACC + 2 * i}, v{ACC + 2 * i + 1}")
    for i in range(4):
        emit(f"v_cvt_pk_bf16_f32 v{Qb + i}, v{ACC + 8 + 2 * i}, v{ACC + 8 + 2 * i + 1}")
    emit(f"v_mul_f32 v{vNa}, v{ACC}, v{ACC}", f"v_mul_f32 v{vNb}, v{ACC + 8}, v{ACC + 8}")
    for i in range(1, 8):
        emit(f"v_fmac_f32 v{vNa}, v{ACC + i}, v{ACC + i}", f"v_fmac_f32 v{vNb}, v{ACC + 8 + i}, v{ACC + 8 + i}")
    emit(f"v_mov_b32 v{vT0}, v{vNa}", f"v_mov_b32 v{vT1}, v{vNb}", "s_nop 1",
         f"v_permlane32_swap_b32 v{vNa}, v{vT0}", f"v_permlane32_swap_b32 v{vNb}, v{vT1}", "s_nop 1",
         f"v_add_f32 v{vNa}, v{vNa}, v{vT0}", f"v_add_f32 v{vNb}, v{vNb}, v{vT1}",
         f"v_max_f32 v{vNa}, v{vNa}, v{vNb}")


def reg_init():
    cmt("main-loop register init")
    for i in range(32):
        emit(f"v_mov_b32 v{Oa + i}, 0")
    for i in range(8):
        emit(f"v_mov_b32 v{S1 + 8 + i}, 0")
    emit(f"v_and_b32 v{vT0}, 27, v{vLane}",
         f"v_cmp_eq_u32 vcc, 16, v{vT0}", f"v_mov_b32 v{vT1}, 0x3f803f80", "s_nop 0",
         f"v_cndmask_b32 v{V0}, 0, v{vT1}, vcc")
    for i in range(1, 16):
        emit(f"v_mov_b32 v{V0 + i}, v{V0}")
    emit(f"v_mov_b32 v{IDX}, 0xdddddddd",
         f"v_mov_b32 v{AK}, v{vL16}",
         f"v_lshrrev_b32 v{vT0}, 5, v{vLane}", f"v_lshlrev_b32 v{vT0}, 8, v{vT0}",
         f"v_and_b32 v{vT1}, 15, v{vLane}", f"v_lshlrev_b32 v{vT1}, 4, v{vT1}", f"v_add_u32 v{AV}, v{vT0}, v{vT1}",
         "s_nop 0")


def kv_rest_loads():
    cmt("first key tile fragments; remaining K/V tiles -> LDS (waves 0..3: linear range 16384 + wave*28672)")
    emit(f"ds_read_b64 {vr(120, 2)}, v{vMisc}",
         f"ds_read_b128 {vr(KF, 4)}, v{AK}",
         f"s_mov_b64 exec, {sr(sVM, 2)}",
         f"ds_read_b128 {vr(V0, 4)}, v{AV} offset:1024", f"ds_read_b128 {vr(V1, 4)}, v{AV} offset:1536",
         "s_mov_b64 exec, -1")
    emit(f"s_cmp_ge_u32 s{sWave}, 4", "s_cbranch_scc1 L_rest_done",
         f"s_lshl_b32 s{sT0}, s{sB}, 17",
         f"s_mul_i32 s{sT1}, s{sWave}, 28672", f"s_add_u32 s{sT1}, s{sT1}, 16384", f"s_add_u32 s{sT2}, s{sT0}, s{sT1}",
         f"s_mov_b32 s{sCnt}, 7")
    lab("L_rest")
    emit(f"s_mov_b32 m0, s{sT1}", f"s_add_u32 s{sT1}, s{sT1}, 4096")
    for i in range(4):
        dma(vL16, S_WS, f"s{sT2}", imm=1024 * i, sc1=OPT['ld_sc1'])
    emit(f"s_add_u32 s{sT2}, s{sT2}, 4096", f"s_sub_u32 s{sCnt}, s{sCnt}, 1", f"s_cmp_lg_u32 s{sCnt}, 0", "s_cbranch_scc1 L_rest")
    lab("L_rest_done")


def start_attention():
    cmt("path decision, first key tile")
    emit("s_waitcnt lgkmcnt(0)",
         f"v_mfma_f32_32x32x16_bf16 {vr(S0, 16)}, {vr(KF, 4)}, {vr(Qa, 4)}, 0")
    t2 = struct.unpack("<I", struct.pack("<f", OPT["T2"]))[0]
    emit(f"v_mul_f32 v{vT0}, v{vNa}, v120", f"s_mov_b32 s{sT0}, {t2:#x}",
         f"v_cmp_nle_f32_e64 {sr(sMA, 2)}, v{vT0}, s{sT0}",
         f"s_mov_b32 s{sT1}, 0x53800000",
         f"v_cmp_nle_f32_e64 {sr(sMB, 2)}, v121, s{sT1}",
         f"s_mov_b32 s{sT1}, 0x2b800000",
         f"v_cmp_nge_f32_e64 {sr(sMC, 2)}, v121, s{sT1}",
         "s_nop 3",
         f"s_or_b64 {sr(sMA, 2)}, {sr(sMA, 2)}, {sr(sMB, 2)}",
         f"s_or_b64 {sr(sMA, 2)}, {sr(sMA, 2)}, {sr(sMC, 2)}")
    if OPT["force_slow"]:
        emit(f"s_mov_b64 {sr(sMA, 2)}, -1")
    emit(f"s_cmp_ge_u32 s{sWave}, 4", "s_cbranch_scc1 L_prio_g2", f"s_setprio {OPT['prio_g1']}",
         f"s_mov_b32 s{sI1}, 99", "s_branch L_prio_done")
    lab("L_prio_g2")
    emit(f"s_setprio {OPT['prio_g2']}", f"s_mov_b32 s{sI1}, {OPT['g2_drop']}")
    lab("L_prio_done")
    emit(f"s_cmp_lg_u64 {sr(sMA, 2)}, 0", "s_cbranch_scc1 L_slow")


def gate_factor():
    emit(f"v_and_b32 v{vT0}, 31, v{vLane}", f"v_lshlrev_b32 v{vT0}, 5, v{vT0}", f"v_add_u32 v{vT0}, {LDS_GP}, v{vT0}",
         f"ds_read_b128 {vr(112, 4)}, v{vT0}", f"ds_read_b128 {vr(116, 4)}, v{vT0} offset:16",
         f"s_mov_b32 s{sT0}, {NLOG2E:#x}", f"s_xor_b32 s{sT1}, s{sT0}, 0x80000000", f"s_cmp_eq_u32 s{sB}, 0",
         f"s_cselect_b32 s{sT0}, s{sT0}, s{sT1}",
         "s_waitcnt lgkmcnt(0)",
         f"v_add_f32 v112, v112, v113", f"v_add_f32 v114, v114, v115", f"v_add_f32 v116, v116, v117", f"v_add_f32 v118, v118, v119",
         f"v_add_f32 v112, v112, v114", f"v_add_f32 v116, v116, v118", f"v_add_f32 v112, v112, v116",
         f"v_mul_f32 v112, s{sT0}, v112", f"v_exp_f32 v112, v112", "s_nop 0", f"v_add_f32 v112, 1.0, v112",
         f"v_rcp_f32 v{vGate}, v112")


def wo_flag_load():
    emit(f"v_bfe_u32 v{vT0}, v{vLane}, 3, 2", f"v_xor_b32 v{vT0}, s{sM}, v{vT0}",
         f"v_and_b32 v{vT1}, 1, v{vT0}", f"v_lshlrev_b32 v{vT1}, 7, v{vT1}",
         f"v_lshrrev_b32 v{vT0}, 1, v{vT0}", f"v_lshlrev_b32 v{vT0}, 6, v{vT0}",
         f"v_and_b32 v{vT2}, 7, v{vLane}", f"v_lshlrev_b32 v{vT2}, 2, v{vT2}",
         f"v_add3_u32 v{vT0}, v{vT0}, v{vT1}, v{vT2}",
         f"s_lshr_b32 s{sT0}, s{sWave}, 2", f"s_lshl_b32 s{sT0}, s{sT0}, 5", f"s_add_u32 s{sT0}, s{sT0}, s{sM}",
         f"s_lshl_b32 s{sT0}, s{sT0}, 2", f"s_add_u32 s{sT0}, s{sT0}, {WS_WOFF}",
         f"v_lshlrev_b32 v{vT0}, 2, v{vT0}",
         f"buffer_load_dword v{vE0 + 12}, v{vT0}, {sr(S_WS, 4)}, s{sT0} offen sc1")


def wo_prefetch(tag):
    emit(f"s_mov_b32 s{sCnt}, {OPT['spin_limit']}")
    lab(f"L_wochk_{tag}")
    emit("s_waitcnt vmcnt(0)",
         f"v_cmp_ne_u32_e64 {sr(sMA, 2)}, s{sNonce}, v{vE0 + 12}", "s_nop 3",
         f"s_cmp_eq_u64 {sr(sMA, 2)}, 0", f"s_cbranch_scc1 L_wook_{tag}", "s_sleep 1")
    wo_flag_load()
    emit(f"s_sub_u32 s{sCnt}, s{sCnt}, 1", f"s_cmp_lg_u32 s{sCnt}, 0", f"s_cbranch_scc1 L_wochk_{tag}")
    spin_fail(2)
    lab(f"L_wook_{tag}")
    emit(f"s_and_b32 s{sT1}, s{sWave}, 3", f"s_lshl_b32 s{sT2}, s{sM}, 2", f"s_add_u32 s{sT1}, s{sT1}, s{sT2}",
         f"s_lshl_b32 s{sT1}, s{sT1}, 10",
         f"s_lshr_b32 s{sT2}, s{sWave}, 2", f"s_lshl_b32 s{sT2}, s{sT2}, 17",
         f"s_add_u32 s{sT1}, s{sT1}, s{sT2}", f"s_add_u32 s{sT1}, s{sT1}, {WS_WOF}")
    for j in range(4):
        emit(f"s_xor_b32 s{sT2}, s{sM}, {j}", f"s_and_b32 s{sT3}, s{sT2}, 1", f"s_lshl_b32 s{sT3}, s{sT3}, 19",
             f"s_lshr_b32 s{sT2}, s{sT2}, 1", f"s_lshl_b32 s{sT2}, s{sT2}, 18",
             f"s_add_u32 s{sT0}, s{sT1}, s{sT2}", f"s_add_u32 s{sT0}, s{sT0}, s{sT3}")
        for i in range(8):
            emit(f"buffer_load_dwordx4 {ar(4 * (8 * j + i), 4)}, v{vL16}, {sr(S_WS, 4)}, s{sT0} offen" + (" sc1" if OPT['ld_sc1'] else ""))
            if i < 7:
                emit(f"s_add_u32 s{sT0}, s{sT0}, 16384")


TB = 2048
POS = (2, 5, 11)


def phase(X, Y, QY, OX, OY, sh0, sh1, sh2, VA0, VA1, extra=None):
    for i in range(16):
        if i == POS[0]:
            emit(f"v_smfmac_f32_32x32x32_bf16 {vr(OY, 16)}, {vr(VA1, 4)}, {vr(Y + 8, 8)}, v{IDX}", *sh0)
        if i == POS[1]:
            emit(f"v_mfma_f32_32x32x16_bf16 {vr(Y, 16)}, {vr(KF, 4)}, {vr(QY, 4)}, 0", *sh1)
        if i == POS[2]:
            emit(f"v_smfmac_f32_32x32x32_bf16 {vr(OX, 16)}, {vr(VA0, 4)}, {vr(X, 8)}, v{IDX}", *sh2)
        if extra and i in extra:
            emit(*extra[i])
        emit(f"v_exp_f32 v{X + i}, v{X + i}")


def main_loop():
    cmt("attention, fast path")
    emit(f"s_mov_b32 s{sIter}, 0")
    emit(".p2align 6")
    lab("L_main")
    stamp_iter()
    emit(f"s_cmp_eq_u32 s{sIter}, 1", "s_cbranch_scc1 L_blk_1", f"s_cmp_eq_u32 s{sIter}, 2", "s_cbranch_scc1 L_blk_2")
    lab("L_main_go")
    for t in range(8):
        if t == 6:
            emit(f"s_cmp_eq_u32 s{sIter}, 0", "s_cbranch_scc1 L_blk_bar")
            lab("L_main_t6")
        if t == OPT["g2_drop_tile"]:
            emit(f"s_cmp_eq_u32 s{sIter}, s{sI1}", "s_cbranch_scc1 L_blk_prio")
            lab("L_main_tp")
        c0, c1 = (V0, V1) if t % 2 == 0 else (V0b, V1b)
        n0, n1 = (V0b, V1b) if t % 2 == 0 else (V0, V1)
        both = [f"s_mov_b64 exec, {sr(sVM, 2)}",
                f"ds_read_b128 {vr(n0, 4)}, v{AV} offset:{(t + 1) * TB + 1024}",
                f"ds_read_b128 {vr(n1, 4)}, v{AV} offset:{(t + 1) * TB + 1536}",
                "s_mov_b64 exec, -1"]
        sh1 = [f"ds_read_b128 {vr(KF, 4)}, v{AK} offset:{(t + 1) * TB}"]
        phase(S0, S1, Qb, Oa, Ob, both, sh1, [], c0, n1)
        phase(S1, S0, Qa, Ob, Oa, ["s_waitcnt lgkmcnt(0)"], [], [], c0, c1)
    emit(f"v_add_u32 v{AK}, 0x4000, v{AK}", f"v_add_u32 v{AV}, 0x4000, v{AV}",
         f"s_add_u32 s{sIter}, s{sIter}, 1", f"s_cmp_lt_u32 s{sIter}, 8", "s_cbranch_scc1 L_main")
    emit("s_nop 1", f"v_smfmac_f32_32x32x32_bf16 {vr(Ob, 16)}, {vr(V1b, 4)}, {vr(S1 + 8, 8)}, v{IDX}")
    lab("L_epi")


def main_blocks():
    lab("L_blk_1")
    wo_flag_load()
    emit("s_branch L_main_go")
    lab("L_blk_2")
    gate_factor()
    wo_prefetch("f")
    emit("s_branch L_main_go")
    lab("L_blk_bar")
    emit("s_waitcnt vmcnt(0)", "s_barrier")
    wof_flag()
    emit("s_branch L_main_t6")
    lab("L_blk_prio")
    emit("s_setprio 0", "s_branch L_main_tp")


def slow_path():
    cmt("attention, true-max path (online softmax)")
    lab("L_slow")
    emit(f"v_mov_b32 v{vMa}, 0xff800000", f"v_mov_b32 v{vMb}, 0xff800000", f"s_mov_b32 s{sIter}, 0")
    lab("L_slow_loop")
    emit(f"s_cmp_eq_u32 s{sIter}, 6", "s_cbranch_scc0 L_slow_nb", "s_waitcnt vmcnt(0)", "s_barrier")
    wof_flag()
    lab("L_slow_nb")
    emit(f"ds_read_b128 {vr(KF, 4)}, v{AK}",
         f"s_mov_b64 exec, {sr(sVM, 2)}",
         f"ds_read_b128 {vr(V0, 4)}, v{AV} offset:1024", f"ds_read_b128 {vr(V1, 4)}, v{AV} offset:1536",
         "s_mov_b64 exec, -1", "s_waitcnt lgkmcnt(0)")
    for (Q, O, M) in ((Qa, Oa, vMa), (Qb, Ob, vMb)):
        emit(f"v_mfma_f32_32x32x16_bf16 {vr(S0, 16)}, {vr(KF, 4)}, {vr(Q, 4)}, 0", "s_nop 15",
             f"v_max3_f32 v{vT0}, v{S0}, v{S0 + 1}, v{S0 + 2}")
        for i in range(3, 15, 2):
            emit(f"v_max3_f32 v{vT0}, v{vT0}, v{S0 + i}, v{S0 + i + 1}")
        emit(f"v_max_f32 v{vT0}, v{vT0}, v{S0 + 15}", "s_nop 0", f"v_mov_b32 v{vT1}, v{vT0}", "s_nop 1",
             f"v_permlane32_swap_b32 v{vT0}, v{vT1}", "s_nop 1",
             f"v_max3_f32 v{vT0}, v{vT0}, v{vT1}, v{M}",
             f"v_sub_f32 v{vT1}, v{M}, v{vT0}", f"v_exp_f32 v{vT1}, v{vT1}", f"v_mov_b32 v{M}, v{vT0}")
        for i in range(9):
            emit(f"v_mul_f32 v{O + i}, v{vT1}, v{O + i}")
        for i in range(16):
            emit(f"v_sub_f32 v{S0 + i}, v{S0 + i}, v{vT0}")
        for i in range(16):
            emit(f"v_exp_f32 v{S0 + i}, v{S0 + i}")
        emit("s_nop 1",
             f"v_smfmac_f32_32x32x32_bf16 {vr(O, 16)}, {vr(V0, 4)}, {vr(S0, 8)}, v{IDX}",
             f"v_smfmac_f32_32x32x32_bf16 {vr(O, 16)}, {vr(V1, 4)}, {vr(S0 + 8, 8)}, v{IDX}")
    emit(f"v_add_u32 v{AK}, {TB}, v{AK}", f"v_add_u32 v{AV}, {TB}, v{AV}",
         f"s_add_u32 s{sIter}, s{sIter}, 1", f"s_cmp_lt_u32 s{sIter}, 64", "s_cbranch_scc1 L_slow_loop")
    gate_factor()
    wo_flag_load()
    wo_prefetch("s")
    emit("s_branch L_epi")


def tail():
    cmt("normalise, gate, publish O fragments (global for the partners, LDS for ourselves)")
    emit("s_nop 15")
    P = 112
    for k, O in enumerate((Oa, Ob)):
        emit(f"v_rcp_f32 v{vT0}, v{O + 8}", "s_nop 0", f"v_mul_f32 v{vT0}, v{vT0}, v{vGate}")
        for i in range(8):
            emit(f"v_mul_f32 v{O + i}, v{vT0}, v{O + i}")
        for i in range(4):
            emit(f"v_cvt_pk_bf16_f32 v{P + 4 * k + i}, v{O + 2 * i}, v{O + 2 * i + 1}")
    emit(f"s_lshl_b32 s{sT1}, s{sB}, 15", f"s_lshl_b32 s{sT2}, s{sHH}, 14", f"s_add_u32 s{sT1}, s{sT1}, s{sT2}",
         f"s_lshl_b32 s{sT2}, s{sWave}, 11", f"s_add_u32 s{sT1}, s{sT1}, s{sT2}",
         f"s_lshl_b32 s{sT0}, s{sRB}, 16", f"s_add_u32 s{sT0}, s{sT0}, s{sT1}", f"s_add_u32 s{sT0}, s{sT0}, {WS_OF}",
         f"buffer_store_dwordx4 {vr(P, 4)}, v{vL16}, {sr(S_WS, 4)}, s{sT0} offen sc1",
         f"buffer_store_dwordx4 {vr(P + 4, 4)}, v{vL16}, {sr(S_WS, 4)}, s{sT0} offen offset:1024 sc1",
         f"v_add_u32 v{vT0}, s{sT1}, v{vL16}",
         "s_barrier",
         f"ds_write_b128 v{vT0}, {vr(P, 4)}", f"ds_write_b128 v{vT0}, {vr(P + 4, 4)} offset:1024",
         "s_waitcnt vmcnt(0) lgkmcnt(0)", "s_barrier")
    stamp(6)
    ACC = 16
    FR = 48
    emit(f"s_lshl_b32 s{sT4}, s{sRB}, 6", f"s_add_u32 s{sT4}, s{sT4}, {WS_OFL}",
         f"s_cmp_eq_u32 s{sWave}, 0", "s_cbranch_scc0 L_ofl_sent",
         f"s_lshl_b32 s{sT1}, s{sM}, 2", f"s_add_u32 s{sT1}, s{sT1}, s{sT4}",
         f"v_mov_b32 v{vT0}, s{sNonce}", f"v_mov_b32 v{vT1}, 0", "s_mov_b64 exec, 1",
         f"buffer_store_dword v{vT0}, v{vT1}, {sr(S_WS, 4)}, s{sT1} offen sc1", "s_mov_b64 exec, -1")
    lab("L_ofl_sent")

    def bbase(j, dst):
        emit(f"s_xor_b32 s{sT2}, s{sM}, {j}", f"s_and_b32 s{sT3}, s{sT2}, 1", f"s_lshl_b32 s{sT3}, s{sT3}, 15",
             f"s_lshr_b32 s{sT2}, s{sT2}, 1", f"s_lshl_b32 s{sT2}, s{sT2}, 14", f"s_add_u32 s{sT2}, s{sT2}, s{sT3}",
             f"s_lshr_b32 s{sT3}, s{sWave}, 2", f"s_lshl_b32 s{sT3}, s{sT3}, 13", f"s_add_u32 s{sT2}, s{sT2}, s{sT3}",
             f"v_add_u32 v{dst}, s{sT2}, v{vL16}")

    def mm8(j, addr):
        for i in range(8):
            emit(f"ds_read_b128 {vr(FR + 4 * i, 4)}, v{addr} offset:{i * 1024}")
        for i in range(8):
            acc = ACC + 16 * (i & 1)
            emit(f"s_waitcnt lgkmcnt({7 - i})",
                 f"v_mfma_f32_32x32x16_bf16 {vr(acc, 16)}, {ar(4 * (8 * j + i), 4)}, {vr(FR + 4 * i, 4)}, {'0' if (j == 0 and i < 2) else vr(acc, 16)}")

    for j in range(4):
        bbase(j, 80 + j)
    mm8(0, 80)
    emit(f"s_cmp_eq_u32 s{sWave}, 0", "s_cbranch_scc0 L_ofl_done",
         f"v_and_b32 v{vT1}, 3, v{vLane}", f"v_lshlrev_b32 v{vT1}, 2, v{vT1}",
         f"s_mov_b32 s{sCnt}, {OPT['spin_limit']}")
    lab("L_ofl")
    emit(f"buffer_load_dword v{vT2}, v{vT1}, {sr(S_WS, 4)}, s{sT4} offen sc1", "s_waitcnt vmcnt(0)",
         f"v_cmp_ne_u32_e64 {sr(sMA, 2)}, s{sNonce}, v{vT2}", "s_nop 3",
         f"s_cmp_eq_u64 {sr(sMA, 2)}, 0", "s_cbranch_scc1 L_ofl_done",
         f"s_sub_u32 s{sCnt}, s{sCnt}, 1", f"s_cmp_lg_u32 s{sCnt}, 0", "s_cbranch_scc1 L_ofl")
    spin_fail(3)
    lab("L_ofl_done")
    emit("s_barrier")
    stamp(7)
    for j in range(1, 4):
        emit(f"s_xor_b32 s{sT2}, s{sM}, {j}", f"s_and_b32 s{sT3}, s{sT2}, 1", f"s_lshl_b32 s{sT3}, s{sT3}, 15",
             f"s_lshr_b32 s{sT2}, s{sT2}, 1", f"s_lshl_b32 s{sT2}, s{sT2}, 14", f"s_add_u32 s{sT2}, s{sT2}, s{sT3}",
             f"s_lshl_b32 s{sT3}, s{sWave}, 11", f"s_add_u32 s{sT2}, s{sT2}, s{sT3}",
             f"s_mov_b32 m0, s{sT2}",
             f"s_lshl_b32 s{sT0}, s{sRB}, 16", f"s_add_u32 s{sT0}, s{sT0}, s{sT2}", f"s_add_u32 s{sT0}, s{sT0}, {WS_OF}")
        dma(vL16, S_WS, f"s{sT0}", sc1=OPT['ld_sc1'])
        dma(vL16, S_WS, f"s{sT0}", imm=1024, sc1=OPT['ld_sc1'])
    for j in range(1, 4):
        emit(f"s_waitcnt vmcnt({2 * (3 - j)})", "s_barrier")
        mm8(j, 80 + j)
    stamp(8)
    emit(f"s_lshl_b32 s{sT0}, s{sWave}, 11", f"s_add_u32 s{sT0}, s{sT0}, {LDS_RED}",
         f"s_xor_b32 s{sT1}, s{sWave}, 4", f"s_lshl_b32 s{sT1}, s{sT1}, 11", f"s_add_u32 s{sT1}, s{sT1}, {LDS_RED}",
         f"v_add_u32 v{vT0}, s{sT0}, v{vL16}", f"v_add_u32 v{vT3}, s{sT1}, v{vL16}",
         f"v_and_b32 v{vT1}, 31, v{vLane}", f"v_lshlrev_b32 v{vT1}, 10, v{vT1}",
         f"v_lshrrev_b32 v{vT2}, 5, v{vLane}", f"v_lshlrev_b32 v{vT2}, 3, v{vT2}", f"v_add_u32 v{vT1}, v{vT1}, v{vT2}",
         f"s_lshl_b32 s{sT0}, s{sM}, 8", f"s_and_b32 s{sT1}, s{sWave}, 3", f"s_lshl_b32 s{sT1}, s{sT1}, 6",
         f"s_add_u32 s{sT0}, s{sT0}, s{sT1}", f"s_add_u32 s{sT0}, s{sT0}, s{sXbase}",
         "s_nop 7")
    for i in range(16):
        emit(f"v_add_f32 v{ACC + i}, v{ACC + i}, v{ACC + 16 + i}")
    emit(f"s_cmp_ge_u32 s{sWave}, 4", "s_cbranch_scc1 L_red_hi")
    for hi in (0, 1):
        if hi:
            lab("L_red_hi")
        give = 8 if hi == 0 else 0
        keep = 0 if hi == 0 else 8
        emit(f"ds_write_b128 v{vT0}, {vr(ACC + give, 4)}", f"ds_write_b128 v{vT0}, {vr(ACC + give + 4, 4)} offset:1024",
             "s_waitcnt lgkmcnt(0)", "s_barrier",
             f"ds_read_b128 {vr(48, 4)}, v{vT3}", f"ds_read_b128 {vr(52, 4)}, v{vT3} offset:1024",
             "s_waitcnt lgkmcnt(0)")
        for i in range(8):
            emit(f"v_add_f32 v{ACC + keep + i}, v{ACC + keep + i}, v{48 + i}")
        for i in range(4):
            emit(f"v_cvt_pk_bf16_f32 v{64 + i}, v{ACC + keep + 2 * i}, v{ACC + keep + 2 * i + 1}")
        for q in range(2):
            o = (keep // 4 + q) * 16
            emit(f"buffer_store_dwordx2 {vr(64 + 2 * q, 2)}, v{vT1}, {sr(S_OUT, 4)}, s{sT0} offen" + (f" offset:{o}" if o else "") + (" " + OPT["out_pol"] if OPT["out_pol"] else ""))
        if hi == 0:
            emit(f"s_or_b32 s{sT0}, s2, s{sWave}", f"s_cmp_eq_u32 s{sT0}, 0", "s_cbranch_scc0 L_fin",
                 f"v_mov_b32 v{vT0}, s{sNonce}", f"v_mov_b32 v{vT1}, 0", f"s_mov_b32 s{sT0}, {WS_W}", "s_mov_b64 exec, 1",
                 f"buffer_store_dword v{vT0}, v{vT1}, {sr(S_WS, 4)}, s{sT0} offen sc1", "s_mov_b64 exec, -1", "s_branch L_fin")
    lab("L_fin")
    stamp(9)
    emit("s_waitcnt vmcnt(0)")
    lab("L_end")
    emit("s_endpgm")


def build():
    prologue()
    stamp(0)
    front()
    stamp(1)
    q_proj()
    poll_kv()
    q_finish()
    stamp(2)
    wof_task()
    barrier_a()
    stamp(3)
    kv_rest_loads()
    start_attention()
    stamp(4)
    main_loop()
    stamp(5)
    tail()
    main_blocks()
    slow_path()


HEADER = open(os.path.join(os.path.dirname(os.path.abspath(__file__)), "cdna_kernels", NAME + ".s.ref")).read().split("; Override launch")[0]


def render():
    build()
    out = [HEADER.rstrip("\n"),
           "; Override launch geometry by editing the next line (default: block=256,",
           "; grid=ceil(out_elems/256), lds=0). Harness parses it; keep it on one line.",
           f"; @launch grid=(256,1,1) block=(512,1,1) lds={LDS_TOTAL}",
           '.amdgcn_target "amdgcn-amd-amdhsa--gfx950"', ".text", f".globl {NAME}_kernel", ".p2align 8",
           f".type {NAME}_kernel,@function", f"{NAME}_kernel:"]
    for l in L:
        if l.endswith(":") or l.startswith(";") or l.startswith("."):
            out.append(l)
        else:
            out.append("    " + l)
    out += ['.section .rodata,"a"', ".p2align 6", f".amdhsa_kernel {NAME}_kernel",
            "  .amdhsa_next_free_vgpr 256", "  .amdhsa_next_free_sgpr 102", "  .amdhsa_accum_offset 128",
            "  .amdhsa_group_segment_fixed_size 0", "  .amdhsa_kernarg_size 112", "  .amdhsa_user_sgpr_count 2",
            "  .amdhsa_user_sgpr_kernarg_segment_ptr 1", "  .amdhsa_system_sgpr_workgroup_id_x 1",
            ".end_amdhsa_kernel", ""]
    return "\n".join(out)


if __name__ == "__main__":
    dst = os.environ.get("OUT", os.path.join(os.path.dirname(os.path.abspath(__file__)), "cdna_kernels", NAME + ".s"))
    open(dst, "w").write(render())
    print("wrote", dst, len(L), "lines")
```

```python
import sys, os, struct

NAME = "gated_mix__grouped_kv_mqa__grouped_kv_mqa__prompt"

OPT = dict(
    spin_limit=1 << 18,
    force_slow=False,
    stamps=False,
    ld_sc1=False,
    q_exp=0,
    out_pol='',
    poll_blk=2, poll_step=2,
    T2=1600.0,
    prio_g1=0,
    prio_g2=1,
    g2_drop=6,
    g2_drop_tile=5,
)
for a in sys.argv[1:]:
    if "=" in a:
        k, v = a.split("=", 1)
        if k in OPT:
            OPT[k] = type(OPT[k])(eval(v))
        else:
            raise SystemExit("unknown option " + k)

LDS_WK = 0
LDS_WV = 16384
LDS_WQ = 32768
LDS_XT = 98304
XP = 1040
LDS_GW = LDS_XT + 32 * XP
LDS_WOS = LDS_GW + 1024
LDS_GP = LDS_WOS + 4096
LDS_MISC = LDS_GP + 1024
LDS_TOTAL = LDS_MISC + 256
LDS_OG = 0
LDS_RED = 65536
M_KMAX, M_VMAX, M_FKV, M_FXB, M_FQG1, M_FQD, M_RD = 0, 4, 8, 12, 16, 20, 32

WS_KV = 0
WS_FLAG = 0x40000
WS_KVF = WS_FLAG
WS_WOFF = WS_FLAG + 4096
WS_OFL = WS_FLAG + 8192
WS_W = WS_FLAG + 16384
WS_WOF = 0x80000
WS_OF = 0x200000
WS_SIZE = 0x600000

CSCALE = 0x3EB8AA3B
NLOG2E = 0xBFB8AA3B

S_X, S_WQ, S_WK, S_WV, S_WO, S_GW, S_OUT, S_WS = 32, 36, 40, 44, 48, 52, 56, 60
sWave, sRB, sM, sB, sHH, sRot, sNonce = 64, 65, 66, 67, 68, 69, 70
sT0, sT1, sT2, sT3, sT4, sT5 = 71, 72, 73, 74, 75, 76
sS, sK, sSl, sRing, sQoff, sIter = 77, 78, 79, 82, 83, 84
sVM = 80
sXbase = 85
sCnt = 86
sRD = 87
sI1, sI2 = 98, 99
sW = 3
sFl, sFB = 100, 101
sMA, sMB = 88, 90
sMC, sMD = 92, 94
sSt = 96

vLane, vL16, vGate, vT0, vT1, vT2, vT3 = 1, 2, 3, 4, 5, 6, 7
Qa, Qb = 8, 12
Oa, Ob = 16, 32
S0, S1 = 48, 64
KF = 80
V0, V1, V0b, V1b = 84, 88, 92, 96
IDX, AK, AV = 100, 101, 102
vNon = 103
vXB, vWA, vA, vMisc = 104, 105, 106, 107
vMa, vMb = 108, 109
vNa, vNb = 110, 111
vGA = 108
vE0 = 112
vRDa, vRDv = 122, 123

L = []
_uid = [0]


def uid():
    _uid[0] += 1
    return _uid[0]


def emit(*lines):
    for l in lines:
        L.append(l)


def lab(name):
    L.append(name + ":")


def vr(b, n):
    return f"v[{b}:{b + n - 1}]"


def ar(b, n):
    return f"a[{b}:{b + n - 1}]"


def sr(b, n):
    return f"s[{b}:{b + n - 1}]"


def cmt(s):
    L.append(f"; ---- {s}")


def stamp(i):
    if not OPT["stamps"]:
        return

    def one(instr, slot):
        emit(f"{instr} {sr(sSt, 2)}", "s_waitcnt lgkmcnt(0)",
             f"s_lshl_b32 s{sSt + 1}, s2, 3", f"s_add_u32 s{sSt + 1}, s{sSt + 1}, s{sWave}", f"s_lshl_b32 s{sSt + 1}, s{sSt + 1}, 7",
             f"s_add_u32 s{sSt + 1}, s{sSt + 1}, {0x700000 + 4 * slot}",
             f"v_mov_b32 v{vE0 + 14}, s{sSt}", f"v_mov_b32 v{vE0 + 15}, s{sSt + 1}",
             f"global_store_dword v{vE0 + 15}, v{vE0 + 14}, s[30:31]")
    one("s_memrealtime", i)
    if i in (0, 9):
        one("s_memtime", 14 if i == 0 else 15)
    if i in (24, 25, 4, 5):
        one("s_memtime", {24: 28, 25: 29, 4: 30, 5: 31}[i])


def stamp_iter():
    if not OPT["stamps"]:
        return
    emit(f"s_memrealtime {sr(sSt, 2)}", "s_waitcnt lgkmcnt(0)",
         f"s_lshl_b32 s{sSt + 1}, s2, 3", f"s_add_u32 s{sSt + 1}, s{sSt + 1}, s{sWave}", f"s_lshl_b32 s{sSt + 1}, s{sSt + 1}, 5",
         f"s_add_u32 s{sSt + 1}, s{sSt + 1}, s{sIter}", f"s_lshl_b32 s{sSt + 1}, s{sSt + 1}, 2",
         f"s_add_u32 s{sSt + 1}, s{sSt + 1}, {0x700000 + 64}",
         f"v_mov_b32 v{vE0 + 14}, s{sSt}", f"v_mov_b32 v{vE0 + 15}, s{sSt + 1}",
         f"global_store_dword v{vE0 + 15}, v{vE0 + 14}, s[30:31]")


def dma(vaddr, srd, soff, m0expr=None, imm=0, sc1=False):
    if m0expr is not None:
        emit(f"s_mov_b32 m0, {m0expr}", "s_nop 0")
    s = f"buffer_load_dwordx4 v{vaddr}, {sr(srd, 4)}, {soff} offen"
    if imm:
        s += f" offset:{imm}"
    if sc1:
        s += " sc1"
    emit(s + " lds")


def spin_fail(code):
    emit(f"v_mov_b32 v{vT0}, {code}", f"v_mov_b32 v{vT1}, 60", f"global_store_dword v{vT1}, v{vT0}, s[28:29]")


def lds_wait(off, val, addr=None):
    n = uid()
    a = f"v{vMisc} offset:{off}" if addr is None else f"v{addr}"
    emit(f"s_mov_b32 s{sCnt}, {OPT['spin_limit']}")
    lab(f"L_lw{n}")
    emit(f"ds_read_b32 v{vT2}, {a}", "s_waitcnt lgkmcnt(0)", f"v_readfirstlane_b32 s{sT5}, v{vT2}", "s_nop 1",
         f"s_cmp_ge_u32 s{sT5}, {val}", f"s_cbranch_scc1 L_lwd{n}", "s_sleep 1",
         f"s_sub_u32 s{sCnt}, s{sCnt}, 1", f"s_cmp_lg_u32 s{sCnt}, 0", f"s_cbranch_scc1 L_lw{n}")
    spin_fail(8 + off)
    lab(f"L_lwd{n}")


def lds_add(off, val, addr=None):
    a = f"v{vMisc}, v{vT2} offset:{off}" if addr is None else f"v{addr}, v{vT2}"
    emit(f"v_mov_b32 v{vT2}, {val}", "s_mov_b64 exec, 1", f"ds_add_u32 {a}", "s_mov_b64 exec, -1")


def prologue():
    cmt("prologue")
    emit("s_cmp_ge_u32 s2, 256", "s_cbranch_scc1 L_end",
         "s_load_dwordx16 s[4:19], s[0:1], 0",
         "s_load_dwordx8 s[20:27], s[0:1], 64",
         "s_load_dwordx4 s[28:31], s[0:1], 96",
         f"v_lshrrev_b32 v{vT0}, 6, v0",
         f"v_and_b32 v{vLane}, 63, v0",
         f"s_and_b32 s3, s2, 7",
         f"v_readfirstlane_b32 s{sWave}, v{vT0}",
         f"s_lshr_b32 s{sRB}, s2, 5",
         f"s_lshl_b32 s{sRot}, s{sRB}, 2",
         f"s_lshl_b32 s{sRB}, s{sRB}, 3",
         f"s_add_u32 s{sRB}, s{sRB}, s3",
         f"s_lshr_b32 s{sM}, s2, 3",
         f"s_and_b32 s{sM}, s{sM}, 3",
         f"s_and_b32 s{sB}, s{sM}, 1",
         f"s_lshr_b32 s{sHH}, s{sM}, 1",
         f"v_lshlrev_b32 v{vL16}, 4, v{vLane}",
         f"s_lshl_b32 s{sXbase}, s{sRB}, 15",
         f"s_lshl_b32 s{sT0}, s{sHH}, 4", f"s_lshl_b32 s{sT1}, s{sWave}, 1", f"s_add_u32 s{sT0}, s{sT0}, s{sT1}",
         f"s_mul_i32 s{sT1}, s{sT0}, {XP}", f"s_add_u32 s{sT1}, s{sT1}, {LDS_XT}",
         f"s_lshl_b32 s{sT2}, s{sT0}, 10", f"s_add_u32 s{sT2}, s{sT2}, s{sXbase}",
         f"s_xor_b32 s{sT0}, s{sT0}, 16",
         f"s_mul_i32 s{sT3}, s{sT0}, {XP}", f"s_add_u32 s{sT3}, s{sT3}, {LDS_XT}",
         f"s_lshl_b32 s{sT4}, s{sT0}, 10", f"s_add_u32 s{sT4}, s{sT4}, s{sXbase}",
         f"v_lshrrev_b32 v{vT0}, 2, v{vLane}", f"v_lshlrev_b32 v{vT0}, 10, v{vT0}",
         f"v_and_b32 v{vT1}, 3, v{vLane}", f"v_lshlrev_b32 v{vT1}, 4, v{vT1}",
         f"v_add_u32 v{vA}, v{vT0}, v{vT1}",
         f"s_lshl_b32 s{sQoff}, s{sHH}, 9", f"s_lshl_b32 s{sT0}, s{sWave}, 6", f"s_add_u32 s{sQoff}, s{sQoff}, s{sT0}",
         f"s_lshl_b32 s{sRing}, s{sWave}, 13", f"s_add_u32 s{sRing}, s{sRing}, {LDS_WQ}",
         f"s_mov_b32 s{S_X + 2}, 0x200000", f"s_mov_b32 s{S_X + 3}, 0x20000",
         f"s_mov_b32 s{S_WQ + 2}, 0x80000", f"s_mov_b32 s{S_WQ + 3}, 0x20000",
         f"s_cmp_eq_u32 s{sB}, 0",
         "s_waitcnt lgkmcnt(0)",
         f"s_mov_b32 s{S_X}, s4", f"s_mov_b32 s{S_X + 1}, s5",
         f"s_cselect_b32 s{S_WQ}, s6, s16", f"s_cselect_b32 s{S_WQ + 1}, s7, s17",
         f"s_cselect_b32 s{S_WK}, s8, s18", f"s_cselect_b32 s{S_WK + 1}, s9, s19",
         f"s_cselect_b32 s{S_WV}, s10, s20", f"s_cselect_b32 s{S_WV + 1}, s11, s21")
    for i in range(2):
        emit(f"s_mov_b32 m0, s{sT1}", f"s_add_u32 s{sT1}, s{sT1}, {XP}")
        dma(vL16, S_X, f"s{sT2}")
        if i < 1:
            emit(f"s_add_u32 s{sT2}, s{sT2}, 1024")
    emit(f"s_mov_b32 s{S_WK + 2}, 0x4000", f"s_mov_b32 s{S_WK + 3}, 0x20000",
         f"s_mov_b32 s{S_WV + 2}, 0x4000", f"s_mov_b32 s{S_WV + 3}, 0x20000",
         f"s_lshr_b32 s{sT0}, s2, 4", f"s_add_u32 s{sT0}, s{sT0}, s{sWave}", f"s_and_b32 s{sT0}, s{sT0}, 7",
         f"s_lshl_b32 s{sT0}, s{sT0}, 11",
         f"s_add_u32 s{sT1}, s{sT0}, {LDS_WK}", f"s_mov_b32 m0, s{sT1}", f"s_add_u32 s{sT1}, s{sT0}, {LDS_WV}")
    dma(vL16, S_WK, f"s{sT0}")
    dma(vL16, S_WK, f"s{sT0}", imm=1024)
    emit(f"s_mov_b32 m0, s{sT1}", "s_nop 0")
    dma(vL16, S_WV, f"s{sT0}")
    dma(vL16, S_WV, f"s{sT0}", imm=1024)
    for i in range(2):
        emit(f"s_mov_b32 m0, s{sT3}", f"s_add_u32 s{sT3}, s{sT3}, {XP}")
        dma(vL16, S_X, f"s{sT4}")
        if i < 1:
            emit(f"s_add_u32 s{sT4}, s{sT4}, 1024")
    emit(f"s_cmp_eq_u32 s{sWave}, 2", "s_cbranch_scc0 L_nogw",
         f"s_mov_b32 s{S_GW}, s24", f"s_mov_b32 s{S_GW + 1}, s25", f"s_mov_b32 s{S_GW + 2}, 0x400", f"s_mov_b32 s{S_GW + 3}, 0x20000")
    dma(vL16, S_GW, "0", m0expr=str(LDS_GW))
    lab("L_nogw")
    emit(f"s_load_dword s{sW}, s[30:31], {WS_W:#x}")


def wq_fetch(n):
    for i in range(n):
        emit(f"s_mov_b32 m0, s{sK}", f"s_add_u32 s{sSl}, s{sSl}, 16384", f"s_and_b32 s{sSl}, s{sSl}, 0x7ffff")
        dma(vA, S_WQ, f"s{sSl}")
        emit(f"s_add_u32 s{sK}, s{sK}, 1024")


def nonce():
    emit(f"s_mul_i32 s{sNonce}, s{sW}, 0x9E3779B1", f"s_add_u32 s{sNonce}, s{sNonce}, 0x7F4A7C15")


def front():
    cmt("wq slots 0..7, remaining descriptors")
    emit(f"s_add_u32 s{sSl}, s{sRot}, 31", f"s_and_b32 s{sSl}, s{sSl}, 31", f"s_lshl_b32 s{sSl}, s{sSl}, 14",
         f"s_add_u32 s{sSl}, s{sSl}, s{sQoff}", f"s_mov_b32 s{sK}, s{sRing}", f"s_mov_b32 s{sCnt}, 8")
    lab("L_pf")
    wq_fetch(1)
    emit(f"s_sub_u32 s{sCnt}, s{sCnt}, 1", f"s_cmp_lg_u32 s{sCnt}, 0", "s_cbranch_scc1 L_pf")
    emit(f"s_mov_b32 s{S_WS}, s30", f"s_mov_b32 s{S_WS + 1}, s31", f"s_mov_b32 s{S_WS + 2}, {WS_SIZE}", f"s_mov_b32 s{S_WS + 3}, 0x20000",
         f"s_mov_b32 s{S_OUT}, s26", f"s_mov_b32 s{S_OUT + 1}, s27", f"s_mov_b32 s{S_OUT + 2}, 0x200000", f"s_mov_b32 s{S_OUT + 3}, 0x20000",
         f"s_cmp_lt_u32 s2, 128",
         f"s_cselect_b32 s{S_WO}, s12, s22", f"s_cselect_b32 s{S_WO + 1}, s13, s23",
         f"s_mov_b32 s{S_WO + 2}, 0x80000", f"s_mov_b32 s{S_WO + 3}, 0x20000",
         f"s_mov_b32 s{sVM}, 0x0000ffff", f"s_mov_b32 s{sVM + 1}, 0x0000ffff",
         f"v_mov_b32 v{vMisc}, {LDS_MISC}")
    emit(f"s_cmp_eq_u32 s{sWave}, 3", "s_cbranch_scc0 L_nowo",
         f"v_lshrrev_b32 v{vT0}, 4, v{vLane}", f"v_lshlrev_b32 v{vT0}, 10, v{vT0}",
         f"v_and_b32 v{vT1}, 15, v{vLane}", f"v_lshlrev_b32 v{vT1}, 4, v{vT1}", f"v_add_u32 v{vT0}, v{vT0}, v{vT1}",
         f"s_lshr_b32 s{sT0}, s2, 2", f"s_and_b32 s{sT0}, s{sT0}, 31", f"s_lshl_b32 s{sT0}, s{sT0}, 14",
         f"s_and_b32 s{sT1}, s2, 3", f"s_lshl_b32 s{sT1}, s{sT1}, 8", f"s_add_u32 s{sT0}, s{sT0}, s{sT1}")
    for i in range(4):
        dma(vT0, S_WO, f"s{sT0}", m0expr=str(LDS_WOS + i * 1024))
        if i < 3:
            emit(f"s_add_u32 s{sT0}, s{sT0}, 4096")
    lab("L_nowo")
    q_setup()
    emit("s_waitcnt vmcnt(10)", "s_barrier")
    stamp(10)
    emit(f"s_cmp_ge_u32 s{sWave}, 2", "s_cbranch_scc1 L_bar2")
    kv_proj()
    lab("L_kv_done")
    stamp(12)
    emit("s_waitcnt vmcnt(9)", "s_barrier", "s_branch L_qstart")
    lab("L_bar2")
    emit("s_waitcnt vmcnt(8)", "s_barrier")
    lab("L_qstart")


def kv_proj():
    cmt("K/V projection (waves 0,1)")
    XB = 112
    WA = 116
    ACC = 64
    FR = 0
    emit(f"v_and_b32 v{vT0}, 15, v{vLane}",
         f"v_lshrrev_b32 v{vT1}, 4, v{vLane}",
         f"v_lshlrev_b32 v{vT2}, 4, v{vT1}",
         f"s_mul_i32 s{sT0}, s{sHH}, {16 * XP}", f"s_add_u32 s{sT0}, s{sT0}, {LDS_XT}",
         f"v_mul_u32_u24 v{vT3}, {XP}, v{vT0}",
         f"v_add3_u32 v{XB}, v{vT3}, v{vT2}, s{sT0}",
         f"v_lshlrev_b32 v{vT1}, 8, v{vT1}", f"v_lshlrev_b32 v{vT0}, 3, v{vT0}",
         f"s_and_b32 s{sT0}, s{sWave}, 1", f"s_lshl_b32 s{sT0}, s{sT0}, 14",
         f"v_add3_u32 v{WA}, v{vT1}, v{vT0}, s{sT0}")

    def reads(s):
        f = FR + 8 * (s % 4)
        f += 32
        return [f"ds_read_b128 {ar(f, 4)}, v{XB} offset:{s * 64}",
                f"ds_read_b64_tr_b16 {ar(f + 4, 2)}, v{WA} offset:{LDS_WK + s * 1024}",
                f"ds_read_b64_tr_b16 {ar(f + 6, 2)}, v{WA} offset:{LDS_WK + s * 1024 + 128}"]

    for variant in ("K", "V"):
        if variant == "K":
            emit(f"s_cmp_eq_u32 s{sWave}, 1", "s_cbranch_scc1 L_vproj")
        else:
            lab("L_vproj")
        for s in range(4):
            emit(*reads(s))
        for s in range(16):
            f = 32 + 8 * (s % 4)
            rem = min(3, 15 - s)
            emit(f"s_waitcnt lgkmcnt({3 * rem})")
            acc = ACC + 4 * (s & 1)
            c = "0" if s < 2 else vr(acc, 4)
            if variant == "K":
                emit(f"v_mfma_f32_16x16x32_bf16 {vr(acc, 4)}, {ar(f + 4, 4)}, {ar(f, 4)}, {c}")
            else:
                emit(f"v_mfma_f32_16x16x32_bf16 {vr(acc, 4)}, {ar(f, 4)}, {ar(f + 4, 4)}, {c}")
            if s + 4 < 16:
                emit(*reads(s + 4))
        nonce()
        P = 120
        AD = 117
        if variant == "K":
            emit(f"v_and_b32 v{vT2}, 15, v{vLane}", f"v_bfe_u32 v{vT3}, v{vLane}, 4, 1",
                 f"v_lshlrev_b32 v{vT3}, 5, v{vT3}", f"v_add_u32 v{vT2}, v{vT2}, v{vT3}", f"v_lshlrev_b32 v{AD}, 4, v{vT2}",
                 f"s_lshl_b32 s{sT0}, s{sB}, 17", f"s_lshl_b32 s{sT1}, s{sRB}, 11", f"s_add_u32 s{sT0}, s{sT0}, s{sT1}",
                 f"s_lshl_b32 s{sT1}, s{sHH}, 8", f"s_add_u32 s{sT0}, s{sT0}, s{sT1}",
                 f"s_mov_b32 s{sT2}, {CSCALE:#x}")
            for i in range(4):
                emit(f"v_add_f32 v{ACC + i}, v{ACC + i}, v{ACC + 4 + i}")
            for i in range(4):
                emit(f"v_mul_f32 v{ACC + i}, s{sT2}, v{ACC + i}")
        else:
            emit(f"v_and_b32 v{vT2}, 15, v{vLane}", f"v_lshrrev_b32 v{vT3}, 5, v{vLane}",
                 f"v_lshlrev_b32 v{vT2}, 4, v{vT2}", f"v_lshlrev_b32 v{vT3}, 8, v{vT3}", f"v_add_u32 v{AD}, v{vT2}, v{vT3}",
                 f"s_lshl_b32 s{sT0}, s{sB}, 17", f"s_lshl_b32 s{sT1}, s{sRB}, 11", f"s_add_u32 s{sT0}, s{sT0}, s{sT1}",
                 f"s_lshl_b32 s{sT1}, s{sHH}, 9", f"s_add_u32 s{sT0}, s{sT0}, s{sT1}", f"s_add_u32 s{sT0}, s{sT0}, 1024")
            for i in range(4):
                emit(f"v_add_f32 v{ACC + i}, v{ACC + i}, v{ACC + 4 + i}")
        emit(f"v_cvt_pk_bf16_f32 v{P}, v{ACC}, v{ACC + 1}", f"v_cvt_pk_bf16_f32 v{P + 1}, v{ACC + 2}, v{ACC + 3}", "s_nop 1")
        if variant == "K":
            emit(f"v_permlane32_swap_b32 v{P}, v{P + 2}", f"v_permlane32_swap_b32 v{P + 1}, v{P + 3}",
                 "s_mov_b32 exec_hi, 0",
                 f"buffer_store_dwordx4 {vr(P, 4)}, v{AD}, {sr(S_WS, 4)}, s{sT0} offen sc1",
                 "s_mov_b64 exec, -1")
            emit(f"v_mul_f32 v{vT0}, v{ACC}, v{ACC}")
            for i in range(1, 4):
                emit(f"v_fmac_f32 v{vT0}, v{ACC + i}, v{ACC + i}")
            red = "v_add_f32"
        else:
            emit(f"v_permlane16_swap_b32 v{P}, v{P + 2}", f"v_permlane16_swap_b32 v{P + 1}, v{P + 3}",
                 f"s_mov_b64 exec, {sr(sVM, 2)}",
                 f"buffer_store_dwordx4 {vr(P, 4)}, v{AD}, {sr(S_WS, 4)}, s{sT0} offen sc1",
                 "s_mov_b64 exec, -1")
            emit(f"v_max_f32_e64 v{vT0}, |v{ACC}|, |v{ACC + 1}|", f"v_max3_f32 v{vT0}, |v{ACC + 2}|, |v{ACC + 3}|, v{vT0}")
            red = "v_max_f32"
        emit(f"v_mov_b32 v{vT1}, v{vT0}", "s_nop 1",
             f"v_permlane32_swap_b32 v{vT0}, v{vT1}", "s_nop 1",
             f"{red} v{vT0}, v{vT0}, v{vT1}", "s_nop 0", f"v_mov_b32 v{vT1}, v{vT0}", "s_nop 1",
             f"v_permlane16_swap_b32 v{vT0}, v{vT1}", "s_nop 1",
             f"{red} v{vT0}, v{vT0}, v{vT1}")
        for r in (8, 4, 2, 1):
            emit("s_nop 1", f"v_max_f32_dpp v{vT0}, v{vT0}, v{vT0} row_ror:{r} row_mask:0xf bank_mask:0xf")
        emit(f"s_lshl_b32 s{sT0}, s{sRB}, 1", f"s_add_u32 s{sT0}, s{sT0}, s{sHH}", f"s_lshl_b32 s{sT0}, s{sT0}, 4",
             f"s_lshl_b32 s{sT1}, s{sB}, 11", f"s_add_u32 s{sT0}, s{sT0}, s{sT1}",
             f"s_add_u32 s{sT0}, s{sT0}, {WS_KVF + (0 if variant == 'K' else 8)}",
             f"v_mov_b32 v{P + 5}, v{vT0}", f"v_mov_b32 v{P + 4}, s{sNonce}", f"s_mov_b32 s{sFl}, s{sT0}")
        stamp(11)
        if variant == "K":
            emit("s_branch L_kv_done")


def wof_task():
    cmt("WOF task (wave 3): transpose 4 wo fragments, publish")
    emit(f"s_cmp_eq_u32 s{sWave}, 3", "s_cbranch_scc0 L_wof_done")
    emit(f"v_lshrrev_b32 v{vT0}, 5, v{vLane}", f"v_lshlrev_b32 v{vT0}, 2, v{vT0}",
         f"v_bfe_u32 v{vT1}, v{vLane}, 2, 2", f"v_add_u32 v{vT0}, v{vT0}, v{vT1}", f"v_lshlrev_b32 v{vT0}, 8, v{vT0}",
         f"v_bfe_u32 v{vT1}, v{vLane}, 4, 1", f"v_lshlrev_b32 v{vT1}, 5, v{vT1}",
         f"v_and_b32 v{vT2}, 3, v{vLane}", f"v_lshlrev_b32 v{vT2}, 3, v{vT2}",
         f"v_add3_u32 v{vT0}, v{vT0}, v{vT1}, v{vT2}", f"v_add_u32 v{vT0}, {LDS_WOS}, v{vT0}")
    F = 112
    for f in range(4):
        emit(f"ds_read_b64_tr_b16 {vr(F + 4 * f, 2)}, v{vT0} offset:{f * 64}",
             f"ds_read_b64_tr_b16 {vr(F + 4 * f + 2, 2)}, v{vT0} offset:{f * 64 + 2048}")
    emit(f"s_lshr_b32 s{sT0}, s2, 2", f"s_lshl_b32 s{sT0}, s{sT0}, 14", f"s_and_b32 s{sT1}, s2, 3", f"s_lshl_b32 s{sT1}, s{sT1}, 12",
         f"s_add_u32 s{sT0}, s{sT0}, s{sT1}", f"s_add_u32 s{sT0}, s{sT0}, {WS_WOF}",
         "s_waitcnt lgkmcnt(0)")
    for f in range(4):
        o = f" offset:{f * 1024}" if f else ""
        emit(f"buffer_store_dwordx4 {vr(F + 4 * f, 4)}, v{vL16}, {sr(S_WS, 4)}, s{sT0} offen{o} sc1")
    lab("L_wof_done")


def wof_flag():
    n = uid()
    emit(f"s_cmp_eq_u32 s{sWave}, 3", f"s_cbranch_scc0 L_wf{n}",
         f"s_lshl_b32 s{sT0}, s2, 2", f"s_add_u32 s{sT0}, s{sT0}, {WS_WOFF}",
         f"v_mov_b32 v{vT0}, s{sNonce}", f"v_mov_b32 v{vT1}, 0", "s_mov_b64 exec, 1",
         f"buffer_store_dword v{vT0}, v{vT1}, {sr(S_WS, 4)}, s{sT0} offen sc1", "s_mov_b64 exec, -1")
    lab(f"L_wf{n}")


PF = 112


def poll_issue(areg):
    emit(f"s_lshl_b32 s{sT0}, s{sB}, 11", f"s_add_u32 s{sT0}, s{sT0}, {WS_KVF}",
         f"buffer_load_dwordx4 {ar(areg, 4)}, v{vL16}, {sr(S_WS, 4)}, s{sT0} offen sc1",
         f"buffer_load_dwordx4 {ar(areg + 4, 4)}, v{vL16}, {sr(S_WS, 4)}, s{sT0} offen offset:1024 sc1")


def poll_check(areg, ok):
    F = PF
    for i in range(8):
        emit(f"v_accvgpr_read_b32 v{F + i}, a{areg + i}")
    emit(f"v_cmp_ne_u32_e64 {sr(sMA, 2)}, s{sNonce}, v{F}",
         f"v_cmp_ne_u32_e64 {sr(sMB, 2)}, s{sNonce}, v{F + 2}",
         f"v_cmp_ne_u32_e64 {sr(sMC, 2)}, s{sNonce}, v{F + 4}",
         f"v_cmp_ne_u32_e64 {sr(sMD, 2)}, s{sNonce}, v{F + 6}",
         "s_nop 3",
         f"s_or_b64 {sr(sMA, 2)}, {sr(sMA, 2)}, {sr(sMB, 2)}",
         f"s_or_b64 {sr(sMC, 2)}, {sr(sMC, 2)}, {sr(sMD, 2)}",
         f"s_or_b64 {sr(sMA, 2)}, {sr(sMA, 2)}, {sr(sMC, 2)}",
         f"s_cbranch_scc0 {ok}")


def poll_kv():
    cmt("wave 7: check the K/V flag samples taken inside the Q loop, fetch key tiles 0..7")
    F = PF
    emit(f"s_cmp_eq_u32 s{sWave}, 7", "s_cbranch_scc0 L_pollkv_done",
         f"v_mov_b32 v{vT0}, 0", f"ds_write_b32 v{vMisc}, v{vT0} offset:{M_KMAX}", f"ds_write_b32 v{vMisc}, v{vT0} offset:{M_VMAX}",
         f"s_mov_b32 s{sCnt}, {OPT['spin_limit']}")
    poll_check(16, "L_pollkv_ok")
    lab("L_pollkv")
    emit("s_waitcnt vmcnt(0)")
    poll_check(24, "L_pollkv_ok")
    poll_issue(24)
    emit(f"s_sub_u32 s{sCnt}, s{sCnt}, 1", f"s_cmp_lg_u32 s{sCnt}, 0", "s_cbranch_scc1 L_pollkv")
    spin_fail(1)
    lab("L_pollkv_ok")
    stamp(13)
    emit(f"s_lshl_b32 s{sT0}, s{sB}, 17", f"s_mov_b32 s{sT1}, 0")
    for g in range(4):
        emit(f"s_mov_b32 m0, s{sT1}", f"s_add_u32 s{sT1}, s{sT1}, 4096")
        for i in range(4):
            dma(vL16, S_WS, f"s{sT0}", imm=1024 * i, sc1=OPT['ld_sc1'])
        if g < 3:
            emit(f"s_add_u32 s{sT0}, s{sT0}, 4096")
    emit(f"v_max_u32 v{F + 1}, v{F + 1}, v{F + 5}", f"v_max_u32 v{F + 3}, v{F + 3}, v{F + 7}",
         f"ds_max_u32 v{vMisc}, v{F + 1} offset:{M_KMAX}", f"ds_max_u32 v{vMisc}, v{F + 3} offset:{M_VMAX}")
    lab("L_pollkv_done")


def barrier_a():
    emit(f"s_cmp_eq_u32 s{sWave}, 7", "s_cbranch_scc0 L_bara", "s_waitcnt vmcnt(0)")
    lab("L_bara")
    emit("s_waitcnt lgkmcnt(0)", "s_barrier")


GACC = 96
vXG = 116


def q_setup():
    cmt("Q projection: addresses, accumulators; main-loop register init")
    ACC = S0
    emit(f"v_and_b32 v{vT0}, 31, v{vLane}", f"v_lshrrev_b32 v{vT1}, 5, v{vLane}",
         f"v_mul_u32_u24 v{vT0}, {XP}, v{vT0}", f"v_lshlrev_b32 v{vT2}, 4, v{vT1}",
         f"v_add_u32 v{vXB}, v{vT0}, v{vT2}", f"v_add_u32 v{vXB}, {LDS_XT}, v{vXB}",
         f"s_lshl_b32 s{sT0}, s{sWave}, 7", f"s_add_u32 s{sT0}, s{sT0}, {LDS_GW}",
         f"v_add_u32 v{vGA}, s{sT0}, v{vT2}",
         f"v_bfe_u32 v{vT0}, v{vLane}, 2, 2",
         f"v_lshlrev_b32 v{vT2}, 3, v{vT1}", f"v_add_u32 v{vT2}, v{vT2}, v{vT0}", f"v_lshlrev_b32 v{vT2}, 6, v{vT2}",
         f"v_bfe_u32 v{vT1}, v{vLane}, 4, 1", f"v_lshlrev_b32 v{vT1}, 5, v{vT1}",
         f"v_and_b32 v{vT0}, 3, v{vLane}", f"v_lshlrev_b32 v{vT0}, 3, v{vT0}",
         f"v_add3_u32 v{vT2}, v{vT2}, v{vT0}, v{vT1}",
         f"v_add_u32 v{vWA}, s{sRing}, v{vT2}")
    for i in range(16):
        emit(f"v_mov_b32 v{ACC + i}, 0")
    for i in range(16):
        emit(f"v_accvgpr_write_b32 a{i}, 0")
    reg_init()
    emit(f"s_cmp_lt_u32 s{sWave}, 2", f"s_cselect_b32 s{sFB}, 0, 99")


def q_proj():
    cmt("Q projection (per-wave ring)")
    ACC = S0
    QS = 32
    GF = 64

    def reads(s):
        f = QS + 8 * (s & 3)
        return [f"ds_read_b64_tr_b16 {ar(f, 2)}, v{vWA} offset:{(s & 7) * 1024}",
                f"ds_read_b64_tr_b16 {ar(f + 2, 2)}, v{vWA} offset:{(s & 7) * 1024 + 256}",
                f"ds_read_b128 {ar(f + 4, 4)}, v{vXG} offset:{(s & 3) * 32}"]

    def group_addr():
        return [f"v_add_u32 v{vXG}, s{sK}, v{vXB}", f"s_add_u32 s{sK}, s{sK}, 128", f"s_and_b32 s{sK}, s{sK}, 1023"]

    def step(s, last):
        f = QS + 8 * (s & 3)
        rd = not (last and s >= 6)
        if last:
            w = {0: 5, 1: 4, 2: 3, 3: 2, 4: 1, 5: 0}.get(s)
        else:
            w = 5
        lg = 3 if (rd or (last and s == 6)) else 0
        if last and s == 7:
            lg = 0
        emit((f"s_waitcnt vmcnt({w}) " if w is not None else "s_waitcnt ") + f"lgkmcnt({lg})")
        if s == 4 and not last:
            n = uid()
            emit(f"s_cmp_eq_u32 s{sCnt}, s{sFB}", f"s_cbranch_scc0 L_nf{n}", "s_waitcnt vmcnt(4)",
                 f"v_mov_b32 v{vT0}, 0", "s_mov_b64 exec, 1",
                 f"buffer_store_dwordx2 {vr(124, 2)}, v{vT0}, {sr(S_WS, 4)}, s{sFl} offen sc1", "s_mov_b64 exec, -1")
            stamp(27)
            lab(f"L_nf{n}")
        if s == OPT["poll_step"] and not last:
            n = uid()
            emit(f"s_cmp_eq_u32 s{sCnt}, s{sI2}", f"s_cbranch_scc0 L_ep{n}")
            poll_issue(16)
            lab(f"L_ep{n}")
        if s % 4 == 0:
            emit(f"s_cmp_eq_u32 s{sS}, s{sWave}", "s_cselect_b64 vcc, -1, 0",
                 f"s_add_u32 s{sS}, s{sS}, 1", f"s_and_b32 s{sS}, s{sS}, 7")
        if s % 4 == 2 and rd:
            emit(*group_addr())
        if last and s == 5:
            n = uid()
            emit(f"s_cmp_eq_u32 s{sWave}, 7", f"s_cbranch_scc0 L_np{n}")
            poll_issue(24)
            lab(f"L_np{n}")
        if rd and not (OPT["q_exp"] & 1):
            emit(*reads(s + 2))
        acc = vr(ACC, 16) if s % 2 == 0 else ar(0, 16)
        if not (OPT["q_exp"] & 4):
            emit(f"v_mfma_f32_32x32x16_bf16 {acc}, {ar(f, 4)}, {ar(f + 4, 4)}, {acc}")
        if not last:
            emit(f"s_add_u32 m0, s{sRing}, {s * 1024}", f"s_add_u32 s{sSl}, s{sSl}, 16384", f"s_and_b32 s{sSl}, s{sSl}, 0x7ffff")
            if not (OPT["q_exp"] & 2):
                dma(vA, S_WQ, f"s{sSl}")
        n = uid()
        emit(f"s_cbranch_vccz L_ng{n}",
             f"v_mfma_f32_32x32x16_bf16 {ar(GACC, 16)}, {ar(GF + 4 * (s & 3), 4)}, {ar(f + 4, 4)}, {'0' if (s & 3) == 0 else ar(GACC, 16)}")
        lab(f"L_ng{n}")

    emit(f"s_lshl_b32 s{sK}, s{sRot}, 5", f"s_lshr_b32 s{sS}, s{sRot}, 2", f"s_mov_b32 s{sCnt}, 0",
         f"s_cmp_eq_u32 s{sWave}, 7", f"s_cselect_b32 s{sI2}, {OPT['poll_blk']}, 99")
    emit(*group_addr())
    for i in range(4):
        emit(f"ds_read_b128 {ar(GF + 4 * i, 4)}, v{vGA} offset:{32 * i}")
    emit("s_waitcnt vmcnt(6)")
    stamp(24)
    emit(*reads(0))
    emit(*reads(1))
    lab("L_qloop")
    for s in range(8):
        step(s, False)
    emit(f"s_add_u32 s{sCnt}, s{sCnt}, 1", f"s_cmp_lt_u32 s{sCnt}, 3", "s_cbranch_scc1 L_qloop")
    for s in range(8):
        step(s, True)
    nonce()
    stamp(25)


def q_finish():
    cmt("Q frags + norms, gate partials")
    ACC = S0
    emit(f"v_and_b32 v{vT0}, 31, v{vLane}", f"v_lshlrev_b32 v{vT0}, 5, v{vT0}", f"s_lshl_b32 s{sT0}, s{sWave}, 2",
         f"s_add_u32 s{sT0}, s{sT0}, {LDS_GP}",
         f"v_add_u32 v{vT0}, s{sT0}, v{vT0}",
         "s_nop 7", f"v_accvgpr_read_b32 v{vT1}, a{GACC}")
    emit(f"ds_write_b32 v{vT0}, v{vT1}")
    for i in range(16):
        emit(f"v_accvgpr_read_b32 v{112 + i}, a{i}")
    for i in range(16):
        emit(f"v_add_f32 v{ACC + i}, v{ACC + i}, v{112 + i}")
    for i in range(4):
        emit(f"v_cvt_pk_bf16_f32 v{Qa + i}, v{ACC + 2 * i}, v{ACC + 2 * i + 1}")
    for i in range(4):
        emit(f"v_cvt_pk_bf16_f32 v{Qb + i}, v{ACC + 8 + 2 * i}, v{ACC + 8 + 2 * i + 1}")
    emit(f"v_mul_f32 v{vNa}, v{ACC}, v{ACC}", f"v_mul_f32 v{vNb}, v{ACC + 8}, v{ACC + 8}")
    for i in range(1, 8):
        emit(f"v_fmac_f32 v{vNa}, v{ACC + i}, v{ACC + i}", f"v_fmac_f32 v{vNb}, v{ACC + 8 + i}, v{ACC + 8 + i}")
    emit(f"v_mov_b32 v{vT0}, v{vNa}", f"v_mov_b32 v{vT1}, v{vNb}", "s_nop 1",
         f"v_permlane32_swap_b32 v{vNa}, v{vT0}", f"v_permlane32_swap_b32 v{vNb}, v{vT1}", "s_nop 1",
         f"v_add_f32 v{vNa}, v{vNa}, v{vT0}", f"v_add_f32 v{vNb}, v{vNb}, v{vT1}",
         f"v_max_f32 v{vNa}, v{vNa}, v{vNb}")


def reg_init():
    cmt("main-loop register init")
    for i in range(32):
        emit(f"v_mov_b32 v{Oa + i}, 0")
    for i in range(8):
        emit(f"v_mov_b32 v{S1 + 8 + i}, 0")
    emit(f"v_and_b32 v{vT0}, 27, v{vLane}",
         f"v_cmp_eq_u32 vcc, 16, v{vT0}", f"v_mov_b32 v{vT1}, 0x3f803f80", "s_nop 0",
         f"v_cndmask_b32 v{V0}, 0, v{vT1}, vcc")
    for i in range(1, 16):
        emit(f"v_mov_b32 v{V0 + i}, v{V0}")
    emit(f"v_mov_b32 v{IDX}, 0xdddddddd",
         f"v_mov_b32 v{AK}, v{vL16}",
         f"v_lshrrev_b32 v{vT0}, 5, v{vLane}", f"v_lshlrev_b32 v{vT0}, 8, v{vT0}",
         f"v_and_b32 v{vT1}, 15, v{vLane}", f"v_lshlrev_b32 v{vT1}, 4, v{vT1}", f"v_add_u32 v{AV}, v{vT0}, v{vT1}",
         "s_nop 0")


def kv_rest_loads():
    cmt("first key tile fragments; remaining K/V tiles -> LDS (waves 0..3: linear range 16384 + wave*28672)")
    emit(f"ds_read_b64 {vr(120, 2)}, v{vMisc}",
         f"ds_read_b128 {vr(KF, 4)}, v{AK}",
         f"s_mov_b64 exec, {sr(sVM, 2)}",
         f"ds_read_b128 {vr(V0, 4)}, v{AV} offset:1024", f"ds_read_b128 {vr(V1, 4)}, v{AV} offset:1536",
         "s_mov_b64 exec, -1")
    emit(f"s_cmp_ge_u32 s{sWave}, 4", "s_cbranch_scc1 L_rest_done",
         f"s_lshl_b32 s{sT0}, s{sB}, 17",
         f"s_mul_i32 s{sT1}, s{sWave}, 28672", f"s_add_u32 s{sT1}, s{sT1}, 16384", f"s_add_u32 s{sT2}, s{sT0}, s{sT1}",
         f"s_mov_b32 s{sCnt}, 7")
    lab("L_rest")
    emit(f"s_mov_b32 m0, s{sT1}", f"s_add_u32 s{sT1}, s{sT1}, 4096")
    for i in range(4):
        dma(vL16, S_WS, f"s{sT2}", imm=1024 * i, sc1=OPT['ld_sc1'])
    emit(f"s_add_u32 s{sT2}, s{sT2}, 4096", f"s_sub_u32 s{sCnt}, s{sCnt}, 1", f"s_cmp_lg_u32 s{sCnt}, 0", "s_cbranch_scc1 L_rest")
    lab("L_rest_done")


def start_attention():
    cmt("path decision, first key tile")
    emit("s_waitcnt lgkmcnt(0)",
         f"v_mfma_f32_32x32x16_bf16 {vr(S0, 16)}, {vr(KF, 4)}, {vr(Qa, 4)}, 0")
    t2 = struct.unpack("<I", struct.pack("<f", OPT["T2"]))[0]
    emit(f"v_mul_f32 v{vT0}, v{vNa}, v120", f"s_mov_b32 s{sT0}, {t2:#x}",
         f"v_cmp_nle_f32_e64 {sr(sMA, 2)}, v{vT0}, s{sT0}",
         f"s_mov_b32 s{sT1}, 0x53800000",
         f"v_cmp_nle_f32_e64 {sr(sMB, 2)}, v121, s{sT1}",
         f"s_mov_b32 s{sT1}, 0x2b800000",
         f"v_cmp_nge_f32_e64 {sr(sMC, 2)}, v121, s{sT1}",
         "s_nop 3",
         f"s_or_b64 {sr(sMA, 2)}, {sr(sMA, 2)}, {sr(sMB, 2)}",
         f"s_or_b64 {sr(sMA, 2)}, {sr(sMA, 2)}, {sr(sMC, 2)}")
    if OPT["force_slow"]:
        emit(f"s_mov_b64 {sr(sMA, 2)}, -1")
    emit(f"s_cmp_ge_u32 s{sWave}, 4", "s_cbranch_scc1 L_prio_g2", f"s_setprio {OPT['prio_g1']}",
         f"s_mov_b32 s{sI1}, 99", "s_branch L_prio_done")
    lab("L_prio_g2")
    emit(f"s_setprio {OPT['prio_g2']}", f"s_mov_b32 s{sI1}, {OPT['g2_drop']}")
    lab("L_prio_done")
    emit(f"s_cmp_lg_u64 {sr(sMA, 2)}, 0", "s_cbranch_scc1 L_slow")


def gate_factor():
    emit(f"v_and_b32 v{vT0}, 31, v{vLane}", f"v_lshlrev_b32 v{vT0}, 5, v{vT0}", f"v_add_u32 v{vT0}, {LDS_GP}, v{vT0}",
         f"ds_read_b128 {vr(112, 4)}, v{vT0}", f"ds_read_b128 {vr(116, 4)}, v{vT0} offset:16",
         f"s_mov_b32 s{sT0}, {NLOG2E:#x}", f"s_xor_b32 s{sT1}, s{sT0}, 0x80000000", f"s_cmp_eq_u32 s{sB}, 0",
         f"s_cselect_b32 s{sT0}, s{sT0}, s{sT1}",
         "s_waitcnt lgkmcnt(0)",
         f"v_add_f32 v112, v112, v113", f"v_add_f32 v114, v114, v115", f"v_add_f32 v116, v116, v117", f"v_add_f32 v118, v118, v119",
         f"v_add_f32 v112, v112, v114", f"v_add_f32 v116, v116, v118", f"v_add_f32 v112, v112, v116",
         f"v_mul_f32 v112, s{sT0}, v112", f"v_exp_f32 v112, v112", "s_nop 0", f"v_add_f32 v112, 1.0, v112",
         f"v_rcp_f32 v{vGate}, v112")


def wo_flag_load():
    emit(f"v_bfe_u32 v{vT0}, v{vLane}, 3, 2", f"v_xor_b32 v{vT0}, s{sM}, v{vT0}",
         f"v_and_b32 v{vT1}, 1, v{vT0}", f"v_lshlrev_b32 v{vT1}, 7, v{vT1}",
         f"v_lshrrev_b32 v{vT0}, 1, v{vT0}", f"v_lshlrev_b32 v{vT0}, 6, v{vT0}",
         f"v_and_b32 v{vT2}, 7, v{vLane}", f"v_lshlrev_b32 v{vT2}, 2, v{vT2}",
         f"v_add3_u32 v{vT0}, v{vT0}, v{vT1}, v{vT2}",
         f"s_lshr_b32 s{sT0}, s{sWave}, 2", f"s_lshl_b32 s{sT0}, s{sT0}, 5", f"s_add_u32 s{sT0}, s{sT0}, s{sM}",
         f"s_lshl_b32 s{sT0}, s{sT0}, 2", f"s_add_u32 s{sT0}, s{sT0}, {WS_WOFF}",
         f"v_lshlrev_b32 v{vT0}, 2, v{vT0}",
         f"buffer_load_dword v{vE0 + 12}, v{vT0}, {sr(S_WS, 4)}, s{sT0} offen sc1")


def wo_prefetch(tag):
    emit(f"s_mov_b32 s{sCnt}, {OPT['spin_limit']}")
    lab(f"L_wochk_{tag}")
    emit("s_waitcnt vmcnt(0)",
         f"v_cmp_ne_u32_e64 {sr(sMA, 2)}, s{sNonce}, v{vE0 + 12}", "s_nop 3",
         f"s_cmp_eq_u64 {sr(sMA, 2)}, 0", f"s_cbranch_scc1 L_wook_{tag}", "s_sleep 1")
    wo_flag_load()
    emit(f"s_sub_u32 s{sCnt}, s{sCnt}, 1", f"s_cmp_lg_u32 s{sCnt}, 0", f"s_cbranch_scc1 L_wochk_{tag}")
    spin_fail(2)
    lab(f"L_wook_{tag}")
    emit(f"s_and_b32 s{sT1}, s{sWave}, 3", f"s_lshl_b32 s{sT2}, s{sM}, 2", f"s_add_u32 s{sT1}, s{sT1}, s{sT2}",
         f"s_lshl_b32 s{sT1}, s{sT1}, 10",
         f"s_lshr_b32 s{sT2}, s{sWave}, 2", f"s_lshl_b32 s{sT2}, s{sT2}, 17",
         f"s_add_u32 s{sT1}, s{sT1}, s{sT2}", f"s_add_u32 s{sT1}, s{sT1}, {WS_WOF}")
    for j in range(4):
        emit(f"s_xor_b32 s{sT2}, s{sM}, {j}", f"s_and_b32 s{sT3}, s{sT2}, 1", f"s_lshl_b32 s{sT3}, s{sT3}, 19",
             f"s_lshr_b32 s{sT2}, s{sT2}, 1", f"s_lshl_b32 s{sT2}, s{sT2}, 18",
             f"s_add_u32 s{sT0}, s{sT1}, s{sT2}", f"s_add_u32 s{sT0}, s{sT0}, s{sT3}")
        for i in range(8):
            emit(f"buffer_load_dwordx4 {ar(4 * (8 * j + i), 4)}, v{vL16}, {sr(S_WS, 4)}, s{sT0} offen" + (" sc1" if OPT['ld_sc1'] else ""))
            if i < 7:
                emit(f"s_add_u32 s{sT0}, s{sT0}, 16384")


TB = 2048
POS = (2, 5, 11)


def phase(X, Y, QY, OX, OY, sh0, sh1, sh2, VA0, VA1, extra=None):
    for i in range(16):
        if i == POS[0]:
            emit(f"v_smfmac_f32_32x32x32_bf16 {vr(OY, 16)}, {vr(VA1, 4)}, {vr(Y + 8, 8)}, v{IDX}", *sh0)
        if i == POS[1]:
            emit(f"v_mfma_f32_32x32x16_bf16 {vr(Y, 16)}, {vr(KF, 4)}, {vr(QY, 4)}, 0", *sh1)
        if i == POS[2]:
            emit(f"v_smfmac_f32_32x32x32_bf16 {vr(OX, 16)}, {vr(VA0, 4)}, {vr(X, 8)}, v{IDX}", *sh2)
        if extra and i in extra:
            emit(*extra[i])
        emit(f"v_exp_f32 v{X + i}, v{X + i}")


def main_loop():
    cmt("attention, fast path")
    emit(f"s_mov_b32 s{sIter}, 0")
    emit(".p2align 6")
    lab("L_main")
    stamp_iter()
    emit(f"s_cmp_eq_u32 s{sIter}, 1", "s_cbranch_scc1 L_blk_1", f"s_cmp_eq_u32 s{sIter}, 2", "s_cbranch_scc1 L_blk_2")
    lab("L_main_go")
    for t in range(8):
        if t == 6:
            emit(f"s_cmp_eq_u32 s{sIter}, 0", "s_cbranch_scc1 L_blk_bar")
            lab("L_main_t6")
        if t == OPT["g2_drop_tile"]:
            emit(f"s_cmp_eq_u32 s{sIter}, s{sI1}", "s_cbranch_scc1 L_blk_prio")
            lab("L_main_tp")
        c0, c1 = (V0, V1) if t % 2 == 0 else (V0b, V1b)
        n0, n1 = (V0b, V1b) if t % 2 == 0 else (V0, V1)
        both = [f"s_mov_b64 exec, {sr(sVM, 2)}",
                f"ds_read_b128 {vr(n0, 4)}, v{AV} offset:{(t + 1) * TB + 1024}",
                f"ds_read_b128 {vr(n1, 4)}, v{AV} offset:{(t + 1) * TB + 1536}",
                "s_mov_b64 exec, -1"]
        sh1 = [f"ds_read_b128 {vr(KF, 4)}, v{AK} offset:{(t + 1) * TB}"]
        phase(S0, S1, Qb, Oa, Ob, both, sh1, [], c0, n1)
        phase(S1, S0, Qa, Ob, Oa, ["s_waitcnt lgkmcnt(0)"], [], [], c0, c1)
    emit(f"v_add_u32 v{AK}, 0x4000, v{AK}", f"v_add_u32 v{AV}, 0x4000, v{AV}",
         f"s_add_u32 s{sIter}, s{sIter}, 1", f"s_cmp_lt_u32 s{sIter}, 8", "s_cbranch_scc1 L_main")
    emit("s_nop 1", f"v_smfmac_f32_32x32x32_bf16 {vr(Ob, 16)}, {vr(V1b, 4)}, {vr(S1 + 8, 8)}, v{IDX}")
    lab("L_epi")


def main_blocks():
    lab("L_blk_1")
    wo_flag_load()
    emit("s_branch L_main_go")
    lab("L_blk_2")
    gate_factor()
    wo_prefetch("f")
    emit("s_branch L_main_go")
    lab("L_blk_bar")
    emit("s_waitcnt vmcnt(0)", "s_barrier")
    wof_flag()
    emit("s_branch L_main_t6")
    lab("L_blk_prio")
    emit("s_setprio 0", "s_branch L_main_tp")


def slow_path():
    cmt("attention, true-max path (online softmax)")
    lab("L_slow")
    emit(f"v_mov_b32 v{vMa}, 0xff800000", f"v_mov_b32 v{vMb}, 0xff800000", f"s_mov_b32 s{sIter}, 0")
    lab("L_slow_loop")
    emit(f"s_cmp_eq_u32 s{sIter}, 6", "s_cbranch_scc0 L_slow_nb", "s_waitcnt vmcnt(0)", "s_barrier")
    wof_flag()
    lab("L_slow_nb")
    emit(f"ds_read_b128 {vr(KF, 4)}, v{AK}",
         f"s_mov_b64 exec, {sr(sVM, 2)}",
         f"ds_read_b128 {vr(V0, 4)}, v{AV} offset:1024", f"ds_read_b128 {vr(V1, 4)}, v{AV} offset:1536",
         "s_mov_b64 exec, -1", "s_waitcnt lgkmcnt(0)")
    for (Q, O, M) in ((Qa, Oa, vMa), (Qb, Ob, vMb)):
        emit(f"v_mfma_f32_32x32x16_bf16 {vr(S0, 16)}, {vr(KF, 4)}, {vr(Q, 4)}, 0", "s_nop 15",
             f"v_max3_f32 v{vT0}, v{S0}, v{S0 + 1}, v{S0 + 2}")
        for i in range(3, 15, 2):
            emit(f"v_max3_f32 v{vT0}, v{vT0}, v{S0 + i}, v{S0 + i + 1}")
        emit(f"v_max_f32 v{vT0}, v{vT0}, v{S0 + 15}", "s_nop 0", f"v_mov_b32 v{vT1}, v{vT0}", "s_nop 1",
             f"v_permlane32_swap_b32 v{vT0}, v{vT1}", "s_nop 1",
             f"v_max3_f32 v{vT0}, v{vT0}, v{vT1}, v{M}",
             f"v_sub_f32 v{vT1}, v{M}, v{vT0}", f"v_exp_f32 v{vT1}, v{vT1}", f"v_mov_b32 v{M}, v{vT0}")
        for i in range(9):
            emit(f"v_mul_f32 v{O + i}, v{vT1}, v{O + i}")
        for i in range(16):
            emit(f"v_sub_f32 v{S0 + i}, v{S0 + i}, v{vT0}")
        for i in range(16):
            emit(f"v_exp_f32 v{S0 + i}, v{S0 + i}")
        emit("s_nop 1",
             f"v_smfmac_f32_32x32x32_bf16 {vr(O, 16)}, {vr(V0, 4)}, {vr(S0, 8)}, v{IDX}",
             f"v_smfmac_f32_32x32x32_bf16 {vr(O, 16)}, {vr(V1, 4)}, {vr(S0 + 8, 8)}, v{IDX}")
    emit(f"v_add_u32 v{AK}, {TB}, v{AK}", f"v_add_u32 v{AV}, {TB}, v{AV}",
         f"s_add_u32 s{sIter}, s{sIter}, 1", f"s_cmp_lt_u32 s{sIter}, 64", "s_cbranch_scc1 L_slow_loop")
    gate_factor()
    wo_flag_load()
    wo_prefetch("s")
    emit("s_branch L_epi")


def tail():
    cmt("normalise, gate, publish O fragments (global for the partners, LDS for ourselves)")
    emit("s_nop 15")
    P = 112
    for k, O in enumerate((Oa, Ob)):
        emit(f"v_rcp_f32 v{vT0}, v{O + 8}", "s_nop 0", f"v_mul_f32 v{vT0}, v{vT0}, v{vGate}")
        for i in range(8):
            emit(f"v_mul_f32 v{O + i}, v{vT0}, v{O + i}")
        for i in range(4):
            emit(f"v_cvt_pk_bf16_f32 v{P + 4 * k + i}, v{O + 2 * i}, v{O + 2 * i + 1}")
    emit(f"s_lshl_b32 s{sT1}, s{sB}, 15", f"s_lshl_b32 s{sT2}, s{sHH}, 14", f"s_add_u32 s{sT1}, s{sT1}, s{sT2}",
         f"s_lshl_b32 s{sT2}, s{sWave}, 11", f"s_add_u32 s{sT1}, s{sT1}, s{sT2}",
         f"s_lshl_b32 s{sT0}, s{sRB}, 16", f"s_add_u32 s{sT0}, s{sT0}, s{sT1}", f"s_add_u32 s{sT0}, s{sT0}, {WS_OF}",
         f"buffer_store_dwordx4 {vr(P, 4)}, v{vL16}, {sr(S_WS, 4)}, s{sT0} offen sc1",
         f"buffer_store_dwordx4 {vr(P + 4, 4)}, v{vL16}, {sr(S_WS, 4)}, s{sT0} offen offset:1024 sc1",
         f"v_add_u32 v{vT0}, s{sT1}, v{vL16}",
         "s_barrier",
         f"ds_write_b128 v{vT0}, {vr(P, 4)}", f"ds_write_b128 v{vT0}, {vr(P + 4, 4)} offset:1024",
         "s_waitcnt vmcnt(0) lgkmcnt(0)", "s_barrier")
    stamp(6)
    ACC = 16
    FR = 48
    emit(f"s_lshl_b32 s{sT4}, s{sRB}, 6", f"s_add_u32 s{sT4}, s{sT4}, {WS_OFL}",
         f"s_cmp_eq_u32 s{sWave}, 0", "s_cbranch_scc0 L_ofl_sent",
         f"s_lshl_b32 s{sT1}, s{sM}, 2", f"s_add_u32 s{sT1}, s{sT1}, s{sT4}",
         f"v_mov_b32 v{vT0}, s{sNonce}", f"v_mov_b32 v{vT1}, 0", "s_mov_b64 exec, 1",
         f"buffer_store_dword v{vT0}, v{vT1}, {sr(S_WS, 4)}, s{sT1} offen sc1", "s_mov_b64 exec, -1")
    lab("L_ofl_sent")

    def bbase(j, dst):
        emit(f"s_xor_b32 s{sT2}, s{sM}, {j}", f"s_and_b32 s{sT3}, s{sT2}, 1", f"s_lshl_b32 s{sT3}, s{sT3}, 15",
             f"s_lshr_b32 s{sT2}, s{sT2}, 1", f"s_lshl_b32 s{sT2}, s{sT2}, 14", f"s_add_u32 s{sT2}, s{sT2}, s{sT3}",
             f"s_lshr_b32 s{sT3}, s{sWave}, 2", f"s_lshl_b32 s{sT3}, s{sT3}, 13", f"s_add_u32 s{sT2}, s{sT2}, s{sT3}",
             f"v_add_u32 v{dst}, s{sT2}, v{vL16}")

    def mm8(j, addr):
        for i in range(8):
            emit(f"ds_read_b128 {vr(FR + 4 * i, 4)}, v{addr} offset:{i * 1024}")
        for i in range(8):
            acc = ACC + 16 * (i & 1)
            emit(f"s_waitcnt lgkmcnt({7 - i})",
                 f"v_mfma_f32_32x32x16_bf16 {vr(acc, 16)}, {ar(4 * (8 * j + i), 4)}, {vr(FR + 4 * i, 4)}, {'0' if (j == 0 and i < 2) else vr(acc, 16)}")

    for j in range(4):
        bbase(j, 80 + j)
    mm8(0, 80)
    emit(f"s_cmp_eq_u32 s{sWave}, 0", "s_cbranch_scc0 L_ofl_done",
         f"v_and_b32 v{vT1}, 3, v{vLane}", f"v_lshlrev_b32 v{vT1}, 2, v{vT1}",
         f"s_mov_b32 s{sCnt}, {OPT['spin_limit']}")
    lab("L_ofl")
    emit(f"buffer_load_dword v{vT2}, v{vT1}, {sr(S_WS, 4)}, s{sT4} offen sc1", "s_waitcnt vmcnt(0)",
         f"v_cmp_ne_u32_e64 {sr(sMA, 2)}, s{sNonce}, v{vT2}", "s_nop 3",
         f"s_cmp_eq_u64 {sr(sMA, 2)}, 0", "s_cbranch_scc1 L_ofl_done",
         f"s_sub_u32 s{sCnt}, s{sCnt}, 1", f"s_cmp_lg_u32 s{sCnt}, 0", "s_cbranch_scc1 L_ofl")
    spin_fail(3)
    lab("L_ofl_done")
    emit("s_barrier")
    stamp(7)
    for j in range(1, 4):
        emit(f"s_xor_b32 s{sT2}, s{sM}, {j}", f"s_and_b32 s{sT3}, s{sT2}, 1", f"s_lshl_b32 s{sT3}, s{sT3}, 15",
             f"s_lshr_b32 s{sT2}, s{sT2}, 1", f"s_lshl_b32 s{sT2}, s{sT2}, 14", f"s_add_u32 s{sT2}, s{sT2}, s{sT3}",
             f"s_lshl_b32 s{sT3}, s{sWave}, 11", f"s_add_u32 s{sT2}, s{sT2}, s{sT3}",
             f"s_mov_b32 m0, s{sT2}",
             f"s_lshl_b32 s{sT0}, s{sRB}, 16", f"s_add_u32 s{sT0}, s{sT0}, s{sT2}", f"s_add_u32 s{sT0}, s{sT0}, {WS_OF}")
        dma(vL16, S_WS, f"s{sT0}", sc1=OPT['ld_sc1'])
        dma(vL16, S_WS, f"s{sT0}", imm=1024, sc1=OPT['ld_sc1'])
    for j in range(1, 4):
        emit(f"s_waitcnt vmcnt({2 * (3 - j)})", "s_barrier")
        mm8(j, 80 + j)
    stamp(8)
    emit(f"s_lshl_b32 s{sT0}, s{sWave}, 11", f"s_add_u32 s{sT0}, s{sT0}, {LDS_RED}",
         f"s_xor_b32 s{sT1}, s{sWave}, 4", f"s_lshl_b32 s{sT1}, s{sT1}, 11", f"s_add_u32 s{sT1}, s{sT1}, {LDS_RED}",
         f"v_add_u32 v{vT0}, s{sT0}, v{vL16}", f"v_add_u32 v{vT3}, s{sT1}, v{vL16}",
         f"v_and_b32 v{vT1}, 31, v{vLane}", f"v_lshlrev_b32 v{vT1}, 10, v{vT1}",
         f"v_lshrrev_b32 v{vT2}, 5, v{vLane}", f"v_lshlrev_b32 v{vT2}, 3, v{vT2}", f"v_add_u32 v{vT1}, v{vT1}, v{vT2}",
         f"s_lshl_b32 s{sT0}, s{sM}, 8", f"s_and_b32 s{sT1}, s{sWave}, 3", f"s_lshl_b32 s{sT1}, s{sT1}, 6",
         f"s_add_u32 s{sT0}, s{sT0}, s{sT1}", f"s_add_u32 s{sT0}, s{sT0}, s{sXbase}",
         "s_nop 7")
    for i in range(16):
        emit(f"v_add_f32 v{ACC + i}, v{ACC + i}, v{ACC + 16 + i}")
    emit(f"s_cmp_ge_u32 s{sWave}, 4", "s_cbranch_scc1 L_red_hi")
    for hi in (0, 1):
        if hi:
            lab("L_red_hi")
        give = 8 if hi == 0 else 0
        keep = 0 if hi == 0 else 8
        emit(f"ds_write_b128 v{vT0}, {vr(ACC + give, 4)}", f"ds_write_b128 v{vT0}, {vr(ACC + give + 4, 4)} offset:1024",
             "s_waitcnt lgkmcnt(0)", "s_barrier",
             f"ds_read_b128 {vr(48, 4)}, v{vT3}", f"ds_read_b128 {vr(52, 4)}, v{vT3} offset:1024",
             "s_waitcnt lgkmcnt(0)")
        for i in range(8):
            emit(f"v_add_f32 v{ACC + keep + i}, v{ACC + keep + i}, v{48 + i}")
        for i in range(4):
            emit(f"v_cvt_pk_bf16_f32 v{64 + i}, v{ACC + keep + 2 * i}, v{ACC + keep + 2 * i + 1}")
        for q in range(2):
            o = (keep // 4 + q) * 16
            emit(f"buffer_store_dwordx2 {vr(64 + 2 * q, 2)}, v{vT1}, {sr(S_OUT, 4)}, s{sT0} offen" + (f" offset:{o}" if o else "") + (" " + OPT["out_pol"] if OPT["out_pol"] else ""))
        if hi == 0:
            emit(f"s_or_b32 s{sT0}, s2, s{sWave}", f"s_cmp_eq_u32 s{sT0}, 0", "s_cbranch_scc0 L_fin",
                 f"v_mov_b32 v{vT0}, s{sNonce}", f"v_mov_b32 v{vT1}, 0", f"s_mov_b32 s{sT0}, {WS_W}", "s_mov_b64 exec, 1",
                 f"buffer_store_dword v{vT0}, v{vT1}, {sr(S_WS, 4)}, s{sT0} offen sc1", "s_mov_b64 exec, -1", "s_branch L_fin")
    lab("L_fin")
    stamp(9)
    emit("s_waitcnt vmcnt(0)")
    lab("L_end")
    emit("s_endpgm")


def build():
    prologue()
    stamp(0)
    front()
    stamp(1)
    q_proj()
    poll_kv()
    q_finish()
    stamp(2)
    wof_task()
    barrier_a()
    stamp(3)
    kv_rest_loads()
    start_attention()
    stamp(4)
    main_loop()
    stamp(5)
    tail()
    main_blocks()
    slow_path()


HEADER = open(os.path.join(os.path.dirname(os.path.abspath(__file__)), "cdna_kernels", NAME + ".s.ref")).read().split("; Override launch")[0]


def render():
    build()
    out = [HEADER.rstrip("\n"),
           "; Override launch geometry by editing the next line (default: block=256,",
           "; grid=ceil(out_elems/256), lds=0). Harness parses it; keep it on one line.",
           f"; @launch grid=(256,1,1) block=(512,1,1) lds={LDS_TOTAL}",
           '.amdgcn_target "amdgcn-amd-amdhsa--gfx950"', ".text", f".globl {NAME}_kernel", ".p2align 8",
           f".type {NAME}_kernel,@function", f"{NAME}_kernel:"]
    for l in L:
        if l.endswith(":") or l.startswith(";") or l.startswith("."):
            out.append(l)
        else:
            out.append("    " + l)
    out += ['.section .rodata,"a"', ".p2align 6", f".amdhsa_kernel {NAME}_kernel",
            "  .amdhsa_next_free_vgpr 256", "  .amdhsa_next_free_sgpr 102", "  .amdhsa_accum_offset 128",
            "  .amdhsa_group_segment_fixed_size 0", "  .amdhsa_kernarg_size 112", "  .amdhsa_user_sgpr_count 2",
            "  .amdhsa_user_sgpr_kernarg_segment_ptr 1", "  .amdhsa_system_sgpr_workgroup_id_x 1",
            ".end_amdhsa_kernel", ""]
    return "\n".join(out)


if __name__ == "__main__":
    dst = os.environ.get("OUT", os.path.join(os.path.dirname(os.path.abspath(__file__)), "cdna_kernels", NAME + ".s"))
    open(dst, "w").write(render())
    print("wrote", dst, len(L), "lines")
```

```python
import sys, os, struct

NAME = "gated_mix__grouped_kv_mqa__grouped_kv_mqa__prompt"

OPT = dict(
    spin_limit=1 << 18,
    force_slow=False,
    stamps=False,
    ld_sc1=False,
    q_exp=0,
    out_pol='',
    poll_blk=2, poll_step=2,
    T2=1600.0,
    prio_g1=0,
    prio_g2=1,
    g2_drop=6,
    g2_drop_tile=5,
)
for a in sys.argv[1:]:
    if "=" in a:
        k, v = a.split("=", 1)
        if k in OPT:
            OPT[k] = type(OPT[k])(eval(v))
        else:
            raise SystemExit("unknown option " + k)

LDS_WK = 0
LDS_WV = 16384
LDS_WQ = 32768
LDS_XT = 98304
XP = 1040
LDS_GW = LDS_XT + 32 * XP
LDS_WOS = LDS_GW + 1024
LDS_GP = LDS_WOS + 4096
LDS_MISC = LDS_GP + 1024
LDS_TOTAL = LDS_MISC + 256
LDS_OG = 0
LDS_RED = 65536
M_KMAX, M_VMAX, M_FKV, M_FXB, M_FQG1, M_FQD, M_RD = 0, 4, 8, 12, 16, 20, 32

WS_KV = 0
WS_FLAG = 0x40000
WS_KVF = WS_FLAG
WS_WOFF = WS_FLAG + 4096
WS_OFL = WS_FLAG + 8192
WS_W = WS_FLAG + 16384
WS_WOF = 0x80000
WS_OF = 0x200000
WS_SIZE = 0x600000

CSCALE = 0x3EB8AA3B
NLOG2E = 0xBFB8AA3B

S_X, S_WQ, S_WK, S_WV, S_WO, S_GW, S_OUT, S_WS = 32, 36, 40, 44, 48, 52, 56, 60
sWave, sRB, sM, sB, sHH, sRot, sNonce = 64, 65, 66, 67, 68, 69, 70
sT0, sT1, sT2, sT3, sT4, sT5 = 71, 72, 73, 74, 75, 76
sS, sK, sSl, sRing, sQoff, sIter = 77, 78, 79, 82, 83, 84
sVM = 80
sXbase = 85
sCnt = 86
sRD = 87
sI1, sI2 = 98, 99
sW = 3
sFl, sFB = 100, 101
sMA, sMB = 88, 90
sMC, sMD = 92, 94
sSt = 96

vLane, vL16, vGate, vT0, vT1, vT2, vT3 = 1, 2, 3, 4, 5, 6, 7
Qa, Qb = 8, 12
Oa, Ob = 16, 32
S0, S1 = 48, 64
KF = 80
V0, V1, V0b, V1b = 84, 88, 92, 96
IDX, AK, AV = 100, 101, 102
vNon = 103
vXB, vWA, vA, vMisc = 104, 105, 106, 107
vMa, vMb = 108, 109
vNa, vNb = 110, 111
vGA = 108
vE0 = 112
vRDa, vRDv = 122, 123

L = []
_uid = [0]


def uid():
    _uid[0] += 1
    return _uid[0]


def emit(*lines):
    for l in lines:
        L.append(l)


def lab(name):
    L.append(name + ":")


def vr(b, n):
    return f"v[{b}:{b + n - 1}]"


def ar(b, n):
    return f"a[{b}:{b + n - 1}]"


def sr(b, n):
    return f"s[{b}:{b + n - 1}]"


def cmt(s):
    L.append(f"; ---- {s}")


def stamp(i):
    if not OPT["stamps"]:
        return

    def one(instr, slot):
        emit(f"{instr} {sr(sSt, 2)}", "s_waitcnt lgkmcnt(0)",
             f"s_lshl_b32 s{sSt + 1}, s2, 3", f"s_add_u32 s{sSt + 1}, s{sSt + 1}, s{sWave}", f"s_lshl_b32 s{sSt + 1}, s{sSt + 1}, 7",
             f"s_add_u32 s{sSt + 1}, s{sSt + 1}, {0x700000 + 4 * slot}",
             f"v_mov_b32 v{vE0 + 14}, s{sSt}", f"v_mov_b32 v{vE0 + 15}, s{sSt + 1}",
             f"global_store_dword v{vE0 + 15}, v{vE0 + 14}, s[30:31]")
    one("s_memrealtime", i)
    if i in (0, 9):
        one("s_memtime", 14 if i == 0 else 15)
    if i in (24, 25, 4, 5):
        one("s_memtime", {24: 28, 25: 29, 4: 30, 5: 31}[i])


def stamp_iter():
    if not OPT["stamps"]:
        return
    emit(f"s_memrealtime {sr(sSt, 2)}", "s_waitcnt lgkmcnt(0)",
         f"s_lshl_b32 s{sSt + 1}, s2, 3", f"s_add_u32 s{sSt + 1}, s{sSt + 1}, s{sWave}", f"s_lshl_b32 s{sSt + 1}, s{sSt + 1}, 5",
         f"s_add_u32 s{sSt + 1}, s{sSt + 1}, s{sIter}", f"s_lshl_b32 s{sSt + 1}, s{sSt + 1}, 2",
         f"s_add_u32 s{sSt + 1}, s{sSt + 1}, {0x700000 + 64}",
         f"v_mov_b32 v{vE0 + 14}, s{sSt}", f"v_mov_b32 v{vE0 + 15}, s{sSt + 1}",
         f"global_store_dword v{vE0 + 15}, v{vE0 + 14}, s[30:31]")


def dma(vaddr, srd, soff, m0expr=None, imm=0, sc1=False):
    if m0expr is not None:
        emit(f"s_mov_b32 m0, {m0expr}", "s_nop 0")
    s = f"buffer_load_dwordx4 v{vaddr}, {sr(srd, 4)}, {soff} offen"
    if imm:
        s += f" offset:{imm}"
    if sc1:
        s += " sc1"
    emit(s + " lds")


def spin_fail(code):
    emit(f"v_mov_b32 v{vT0}, {code}", f"v_mov_b32 v{vT1}, 60", f"global_store_dword v{vT1}, v{vT0}, s[28:29]")


def lds_wait(off, val, addr=None):
    n = uid()
    a = f"v{vMisc} offset:{off}" if addr is None else f"v{addr}"
    emit(f"s_mov_b32 s{sCnt}, {OPT['spin_limit']}")
    lab(f"L_lw{n}")
    emit(f"ds_read_b32 v{vT2}, {a}", "s_waitcnt lgkmcnt(0)", f"v_readfirstlane_b32 s{sT5}, v{vT2}", "s_nop 1",
         f"s_cmp_ge_u32 s{sT5}, {val}", f"s_cbranch_scc1 L_lwd{n}", "s_sleep 1",
         f"s_sub_u32 s{sCnt}, s{sCnt}, 1", f"s_cmp_lg_u32 s{sCnt}, 0", f"s_cbranch_scc1 L_lw{n}")
    spin_fail(8 + off)
    lab(f"L_lwd{n}")


def lds_add(off, val, addr=None):
    a = f"v{vMisc}, v{vT2} offset:{off}" if addr is None else f"v{addr}, v{vT2}"
    emit(f"v_mov_b32 v{vT2}, {val}", "s_mov_b64 exec, 1", f"ds_add_u32 {a}", "s_mov_b64 exec, -1")


def prologue():
    cmt("prologue")
    emit("s_cmp_ge_u32 s2, 256", "s_cbranch_scc1 L_end",
         "s_load_dwordx16 s[4:19], s[0:1], 0",
         "s_load_dwordx8 s[20:27], s[0:1], 64",
         "s_load_dwordx4 s[28:31], s[0:1], 96",
         f"v_lshrrev_b32 v{vT0}, 6, v0",
         f"v_and_b32 v{vLane}, 63, v0",
         f"s_and_b32 s3, s2, 7",
         f"v_readfirstlane_b32 s{sWave}, v{vT0}",
         f"s_lshr_b32 s{sRB}, s2, 5",
         f"s_lshl_b32 s{sRot}, s{sRB}, 2",
         f"s_lshl_b32 s{sRB}, s{sRB}, 3",
         f"s_add_u32 s{sRB}, s{sRB}, s3",
         f"s_lshr_b32 s{sM}, s2, 3",
         f"s_and_b32 s{sM}, s{sM}, 3",
         f"s_and_b32 s{sB}, s{sM}, 1",
         f"s_lshr_b32 s{sHH}, s{sM}, 1",
         f"v_lshlrev_b32 v{vL16}, 4, v{vLane}",
         f"s_lshl_b32 s{sXbase}, s{sRB}, 15",
         f"s_lshl_b32 s{sT0}, s{sHH}, 4", f"s_lshl_b32 s{sT1}, s{sWave}, 1", f"s_add_u32 s{sT0}, s{sT0}, s{sT1}",
         f"s_mul_i32 s{sT1}, s{sT0}, {XP}", f"s_add_u32 s{sT1}, s{sT1}, {LDS_XT}",
         f"s_lshl_b32 s{sT2}, s{sT0}, 10", f"s_add_u32 s{sT2}, s{sT2}, s{sXbase}",
         f"s_xor_b32 s{sT0}, s{sT0}, 16",
         f"s_mul_i32 s{sT3}, s{sT0}, {XP}", f"s_add_u32 s{sT3}, s{sT3}, {LDS_XT}",
         f"s_lshl_b32 s{sT4}, s{sT0}, 10", f"s_add_u32 s{sT4}, s{sT4}, s{sXbase}",
         f"v_lshrrev_b32 v{vT0}, 2, v{vLane}", f"v_lshlrev_b32 v{vT0}, 10, v{vT0}",
         f"v_and_b32 v{vT1}, 3, v{vLane}", f"v_lshlrev_b32 v{vT1}, 4, v{vT1}",
         f"v_add_u32 v{vA}, v{vT0}, v{vT1}",
         f"s_lshl_b32 s{sQoff}, s{sHH}, 9", f"s_lshl_b32 s{sT0}, s{sWave}, 6", f"s_add_u32 s{sQoff}, s{sQoff}, s{sT0}",
         f"s_lshl_b32 s{sRing}, s{sWave}, 13", f"s_add_u32 s{sRing}, s{sRing}, {LDS_WQ}",
         f"s_mov_b32 s{S_X + 2}, 0x200000", f"s_mov_b32 s{S_X + 3}, 0x20000",
         f"s_mov_b32 s{S_WQ + 2}, 0x80000", f"s_mov_b32 s{S_WQ + 3}, 0x20000",
         f"s_cmp_eq_u32 s{sB}, 0",
         "s_waitcnt lgkmcnt(0)",
         f"s_mov_b32 s{S_X}, s4", f"s_mov_b32 s{S_X + 1}, s5",
         f"s_cselect_b32 s{S_WQ}, s6, s16", f"s_cselect_b32 s{S_WQ + 1}, s7, s17",
         f"s_cselect_b32 s{S_WK}, s8, s18", f"s_cselect_b32 s{S_WK + 1}, s9, s19",
         f"s_cselect_b32 s{S_WV}, s10, s20", f"s_cselect_b32 s{S_WV + 1}, s11, s21")
    stamp(26)
    for i in range(2):
        emit(f"s_mov_b32 m0, s{sT1}", f"s_add_u32 s{sT1}, s{sT1}, {XP}")
        dma(vL16, S_X, f"s{sT2}")
        if i < 1:
            emit(f"s_add_u32 s{sT2}, s{sT2}, 1024")
    emit(f"s_mov_b32 s{S_WK + 2}, 0x4000", f"s_mov_b32 s{S_WK + 3}, 0x20000",
         f"s_mov_b32 s{S_WV + 2}, 0x4000", f"s_mov_b32 s{S_WV + 3}, 0x20000",
         f"s_lshr_b32 s{sT0}, s2, 4", f"s_add_u32 s{sT0}, s{sT0}, s{sWave}", f"s_and_b32 s{sT0}, s{sT0}, 7",
         f"s_lshl_b32 s{sT0}, s{sT0}, 11",
         f"s_add_u32 s{sT1}, s{sT0}, {LDS_WK}", f"s_mov_b32 m0, s{sT1}", f"s_add_u32 s{sT1}, s{sT0}, {LDS_WV}")
    dma(vL16, S_WK, f"s{sT0}")
    dma(vL16, S_WK, f"s{sT0}", imm=1024)
    emit(f"s_mov_b32 m0, s{sT1}", "s_nop 0")
    dma(vL16, S_WV, f"s{sT0}")
    dma(vL16, S_WV, f"s{sT0}", imm=1024)
    for i in range(2):
        emit(f"s_mov_b32 m0, s{sT3}", f"s_add_u32 s{sT3}, s{sT3}, {XP}")
        dma(vL16, S_X, f"s{sT4}")
        if i < 1:
            emit(f"s_add_u32 s{sT4}, s{sT4}, 1024")
    emit(f"s_cmp_eq_u32 s{sWave}, 2", "s_cbranch_scc0 L_nogw",
         f"s_mov_b32 s{S_GW}, s24", f"s_mov_b32 s{S_GW + 1}, s25", f"s_mov_b32 s{S_GW + 2}, 0x400", f"s_mov_b32 s{S_GW + 3}, 0x20000")
    dma(vL16, S_GW, "0", m0expr=str(LDS_GW))
    lab("L_nogw")
    emit(f"s_load_dword s{sW}, s[30:31], {WS_W:#x}")


def wq_fetch(n):
    for i in range(n):
        emit(f"s_mov_b32 m0, s{sK}", f"s_add_u32 s{sSl}, s{sSl}, 16384", f"s_and_b32 s{sSl}, s{sSl}, 0x7ffff")
        dma(vA, S_WQ, f"s{sSl}")
        emit(f"s_add_u32 s{sK}, s{sK}, 1024")


def nonce():
    emit(f"s_mul_i32 s{sNonce}, s{sW}, 0x9E3779B1", f"s_add_u32 s{sNonce}, s{sNonce}, 0x7F4A7C15")


def front():
    cmt("wq slots 0..7, remaining descriptors")
    emit(f"s_add_u32 s{sSl}, s{sRot}, 31", f"s_and_b32 s{sSl}, s{sSl}, 31", f"s_lshl_b32 s{sSl}, s{sSl}, 14",
         f"s_add_u32 s{sSl}, s{sSl}, s{sQoff}", f"s_mov_b32 s{sK}, s{sRing}", f"s_mov_b32 s{sCnt}, 8")
    lab("L_pf")
    wq_fetch(1)
    emit(f"s_sub_u32 s{sCnt}, s{sCnt}, 1", f"s_cmp_lg_u32 s{sCnt}, 0", "s_cbranch_scc1 L_pf")
    emit(f"s_mov_b32 s{S_WS}, s30", f"s_mov_b32 s{S_WS + 1}, s31", f"s_mov_b32 s{S_WS + 2}, {WS_SIZE}", f"s_mov_b32 s{S_WS + 3}, 0x20000",
         f"s_mov_b32 s{S_OUT}, s26", f"s_mov_b32 s{S_OUT + 1}, s27", f"s_mov_b32 s{S_OUT + 2}, 0x200000", f"s_mov_b32 s{S_OUT + 3}, 0x20000",
         f"s_cmp_lt_u32 s2, 128",
         f"s_cselect_b32 s{S_WO}, s12, s22", f"s_cselect_b32 s{S_WO + 1}, s13, s23",
         f"s_mov_b32 s{S_WO + 2}, 0x80000", f"s_mov_b32 s{S_WO + 3}, 0x20000",
         f"s_mov_b32 s{sVM}, 0x0000ffff", f"s_mov_b32 s{sVM + 1}, 0x0000ffff",
         f"v_mov_b32 v{vMisc}, {LDS_MISC}")
    emit(f"s_cmp_eq_u32 s{sWave}, 3", "s_cbranch_scc0 L_nowo",
         f"v_lshrrev_b32 v{vT0}, 4, v{vLane}", f"v_lshlrev_b32 v{vT0}, 10, v{vT0}",
         f"v_and_b32 v{vT1}, 15, v{vLane}", f"v_lshlrev_b32 v{vT1}, 4, v{vT1}", f"v_add_u32 v{vT0}, v{vT0}, v{vT1}",
         f"s_lshr_b32 s{sT0}, s2, 2", f"s_and_b32 s{sT0}, s{sT0}, 31", f"s_lshl_b32 s{sT0}, s{sT0}, 14",
         f"s_and_b32 s{sT1}, s2, 3", f"s_lshl_b32 s{sT1}, s{sT1}, 8", f"s_add_u32 s{sT0}, s{sT0}, s{sT1}")
    for i in range(4):
        dma(vT0, S_WO, f"s{sT0}", m0expr=str(LDS_WOS + i * 1024))
        if i < 3:
            emit(f"s_add_u32 s{sT0}, s{sT0}, 4096")
    lab("L_nowo")
    q_setup()
    emit("s_waitcnt vmcnt(10)", "s_barrier")
    stamp(10)
    emit(f"s_cmp_ge_u32 s{sWave}, 2", "s_cbranch_scc1 L_bar2")
    kv_proj()
    lab("L_kv_done")
    stamp(12)
    emit("s_waitcnt vmcnt(9)", "s_barrier", "s_branch L_qstart")
    lab("L_bar2")
    emit("s_waitcnt vmcnt(8)", "s_barrier")
    lab("L_qstart")


def kv_proj():
    cmt("K/V projection (waves 0,1)")
    XB = 112
    WA = 116
    ACC = 64
    FR = 0
    emit(f"v_and_b32 v{vT0}, 15, v{vLane}",
         f"v_lshrrev_b32 v{vT1}, 4, v{vLane}",
         f"v_lshlrev_b32 v{vT2}, 4, v{vT1}",
         f"s_mul_i32 s{sT0}, s{sHH}, {16 * XP}", f"s_add_u32 s{sT0}, s{sT0}, {LDS_XT}",
         f"v_mul_u32_u24 v{vT3}, {XP}, v{vT0}",
         f"v_add3_u32 v{XB}, v{vT3}, v{vT2}, s{sT0}",
         f"v_lshlrev_b32 v{vT1}, 8, v{vT1}", f"v_lshlrev_b32 v{vT0}, 3, v{vT0}",
         f"s_and_b32 s{sT0}, s{sWave}, 1", f"s_lshl_b32 s{sT0}, s{sT0}, 14",
         f"v_add3_u32 v{WA}, v{vT1}, v{vT0}, s{sT0}")

    def reads(s):
        f = FR + 8 * (s % 4)
        f += 32
        return [f"ds_read_b128 {ar(f, 4)}, v{XB} offset:{s * 64}",
                f"ds_read_b64_tr_b16 {ar(f + 4, 2)}, v{WA} offset:{LDS_WK + s * 1024}",
                f"ds_read_b64_tr_b16 {ar(f + 6, 2)}, v{WA} offset:{LDS_WK + s * 1024 + 128}"]

    for variant in ("K", "V"):
        if variant == "K":
            emit(f"s_cmp_eq_u32 s{sWave}, 1", "s_cbranch_scc1 L_vproj")
        else:
            lab("L_vproj")
        for s in range(4):
            emit(*reads(s))
        for s in range(16):
            f = 32 + 8 * (s % 4)
            rem = min(3, 15 - s)
            emit(f"s_waitcnt lgkmcnt({3 * rem})")
            acc = ACC + 4 * (s & 1)
            c = "0" if s < 2 else vr(acc, 4)
            if variant == "K":
                emit(f"v_mfma_f32_16x16x32_bf16 {vr(acc, 4)}, {ar(f + 4, 4)}, {ar(f, 4)}, {c}")
            else:
                emit(f"v_mfma_f32_16x16x32_bf16 {vr(acc, 4)}, {ar(f, 4)}, {ar(f + 4, 4)}, {c}")
            if s + 4 < 16:
                emit(*reads(s + 4))
        nonce()
        P = 120
        AD = 117
        if variant == "K":
            emit(f"v_and_b32 v{vT2}, 15, v{vLane}", f"v_bfe_u32 v{vT3}, v{vLane}, 4, 1",
                 f"v_lshlrev_b32 v{vT3}, 5, v{vT3}", f"v_add_u32 v{vT2}, v{vT2}, v{vT3}", f"v_lshlrev_b32 v{AD}, 4, v{vT2}",
                 f"s_lshl_b32 s{sT0}, s{sB}, 17", f"s_lshl_b32 s{sT1}, s{sRB}, 11", f"s_add_u32 s{sT0}, s{sT0}, s{sT1}",
                 f"s_lshl_b32 s{sT1}, s{sHH}, 8", f"s_add_u32 s{sT0}, s{sT0}, s{sT1}",
                 f"s_mov_b32 s{sT2}, {CSCALE:#x}")
            for i in range(4):
                emit(f"v_add_f32 v{ACC + i}, v{ACC + i}, v{ACC + 4 + i}")
            for i in range(4):
                emit(f"v_mul_f32 v{ACC + i}, s{sT2}, v{ACC + i}")
        else:
            emit(f"v_and_b32 v{vT2}, 15, v{vLane}", f"v_lshrrev_b32 v{vT3}, 5, v{vLane}",
                 f"v_lshlrev_b32 v{vT2}, 4, v{vT2}", f"v_lshlrev_b32 v{vT3}, 8, v{vT3}", f"v_add_u32 v{AD}, v{vT2}, v{vT3}",
                 f"s_lshl_b32 s{sT0}, s{sB}, 17", f"s_lshl_b32 s{sT1}, s{sRB}, 11", f"s_add_u32 s{sT0}, s{sT0}, s{sT1}",
                 f"s_lshl_b32 s{sT1}, s{sHH}, 9", f"s_add_u32 s{sT0}, s{sT0}, s{sT1}", f"s_add_u32 s{sT0}, s{sT0}, 1024")
            for i in range(4):
                emit(f"v_add_f32 v{ACC + i}, v{ACC + i}, v{ACC + 4 + i}")
        emit(f"v_cvt_pk_bf16_f32 v{P}, v{ACC}, v{ACC + 1}", f"v_cvt_pk_bf16_f32 v{P + 1}, v{ACC + 2}, v{ACC + 3}", "s_nop 1")
        if variant == "K":
            emit(f"v_permlane32_swap_b32 v{P}, v{P + 2}", f"v_permlane32_swap_b32 v{P + 1}, v{P + 3}",
                 "s_mov_b32 exec_hi, 0",
                 f"buffer_store_dwordx4 {vr(P, 4)}, v{AD}, {sr(S_WS, 4)}, s{sT0} offen sc1",
                 "s_mov_b64 exec, -1")
            emit(f"v_mul_f32 v{vT0}, v{ACC}, v{ACC}")
            for i in range(1, 4):
                emit(f"v_fmac_f32 v{vT0}, v{ACC + i}, v{ACC + i}")
            red = "v_add_f32"
        else:
            emit(f"v_permlane16_swap_b32 v{P}, v{P + 2}", f"v_permlane16_swap_b32 v{P + 1}, v{P + 3}",
                 f"s_mov_b64 exec, {sr(sVM, 2)}",
                 f"buffer_store_dwordx4 {vr(P, 4)}, v{AD}, {sr(S_WS, 4)}, s{sT0} offen sc1",
                 "s_mov_b64 exec, -1")
            emit(f"v_max_f32_e64 v{vT0}, |v{ACC}|, |v{ACC + 1}|", f"v_max3_f32 v{vT0}, |v{ACC + 2}|, |v{ACC + 3}|, v{vT0}")
            red = "v_max_f32"
        emit(f"v_mov_b32 v{vT1}, v{vT0}", "s_nop 1",
             f"v_permlane32_swap_b32 v{vT0}, v{vT1}", "s_nop 1",
             f"{red} v{vT0}, v{vT0}, v{vT1}", "s_nop 0", f"v_mov_b32 v{vT1}, v{vT0}", "s_nop 1",
             f"v_permlane16_swap_b32 v{vT0}, v{vT1}", "s_nop 1",
             f"{red} v{vT0}, v{vT0}, v{vT1}")
        for r in (8, 4, 2, 1):
            emit("s_nop 1", f"v_max_f32_dpp v{vT0}, v{vT0}, v{vT0} row_ror:{r} row_mask:0xf bank_mask:0xf")
        emit(f"s_lshl_b32 s{sT0}, s{sRB}, 1", f"s_add_u32 s{sT0}, s{sT0}, s{sHH}", f"s_lshl_b32 s{sT0}, s{sT0}, 4",
             f"s_lshl_b32 s{sT1}, s{sB}, 11", f"s_add_u32 s{sT0}, s{sT0}, s{sT1}",
             f"s_add_u32 s{sT0}, s{sT0}, {WS_KVF + (0 if variant == 'K' else 8)}",
             f"v_mov_b32 v{P + 5}, v{vT0}", f"v_mov_b32 v{P + 4}, s{sNonce}", f"s_mov_b32 s{sFl}, s{sT0}")
        stamp(11)
        if variant == "K":
            emit("s_branch L_kv_done")


def wof_task():
    cmt("WOF task (wave 3): transpose 4 wo fragments, publish")
    emit(f"s_cmp_eq_u32 s{sWave}, 3", "s_cbranch_scc0 L_wof_done")
    emit(f"v_lshrrev_b32 v{vT0}, 5, v{vLane}", f"v_lshlrev_b32 v{vT0}, 2, v{vT0}",
         f"v_bfe_u32 v{vT1}, v{vLane}, 2, 2", f"v_add_u32 v{vT0}, v{vT0}, v{vT1}", f"v_lshlrev_b32 v{vT0}, 8, v{vT0}",
         f"v_bfe_u32 v{vT1}, v{vLane}, 4, 1", f"v_lshlrev_b32 v{vT1}, 5, v{vT1}",
         f"v_and_b32 v{vT2}, 3, v{vLane}", f"v_lshlrev_b32 v{vT2}, 3, v{vT2}",
         f"v_add3_u32 v{vT0}, v{vT0}, v{vT1}, v{vT2}", f"v_add_u32 v{vT0}, {LDS_WOS}, v{vT0}")
    F = 112
    for f in range(4):
        emit(f"ds_read_b64_tr_b16 {vr(F + 4 * f, 2)}, v{vT0} offset:{f * 64}",
             f"ds_read_b64_tr_b16 {vr(F + 4 * f + 2, 2)}, v{vT0} offset:{f * 64 + 2048}")
    emit(f"s_lshr_b32 s{sT0}, s2, 2", f"s_lshl_b32 s{sT0}, s{sT0}, 14", f"s_and_b32 s{sT1}, s2, 3", f"s_lshl_b32 s{sT1}, s{sT1}, 12",
         f"s_add_u32 s{sT0}, s{sT0}, s{sT1}", f"s_add_u32 s{sT0}, s{sT0}, {WS_WOF}",
         "s_waitcnt lgkmcnt(0)")
    for f in range(4):
        o = f" offset:{f * 1024}" if f else ""
        emit(f"buffer_store_dwordx4 {vr(F + 4 * f, 4)}, v{vL16}, {sr(S_WS, 4)}, s{sT0} offen{o} sc1")
    lab("L_wof_done")


def wof_flag():
    n = uid()
    emit(f"s_cmp_eq_u32 s{sWave}, 3", f"s_cbranch_scc0 L_wf{n}",
         f"s_lshl_b32 s{sT0}, s2, 2", f"s_add_u32 s{sT0}, s{sT0}, {WS_WOFF}",
         f"v_mov_b32 v{vT0}, s{sNonce}", f"v_mov_b32 v{vT1}, 0", "s_mov_b64 exec, 1",
         f"buffer_store_dword v{vT0}, v{vT1}, {sr(S_WS, 4)}, s{sT0} offen sc1", "s_mov_b64 exec, -1")
    lab(f"L_wf{n}")


PF = 118


def poll_issue(areg):
    emit(f"s_lshl_b32 s{sT0}, s{sB}, 11", f"s_add_u32 s{sT0}, s{sT0}, {WS_KVF}",
         f"buffer_load_dwordx4 {ar(areg, 4)}, v{vL16}, {sr(S_WS, 4)}, s{sT0} offen sc1",
         f"buffer_load_dwordx4 {ar(areg + 4, 4)}, v{vL16}, {sr(S_WS, 4)}, s{sT0} offen offset:1024 sc1")


def poll_check(areg, ok):
    F = PF
    for i in range(8):
        emit(f"v_accvgpr_read_b32 v{F + i}, a{areg + i}")
    emit(f"v_cmp_ne_u32_e64 {sr(sMA, 2)}, s{sNonce}, v{F}",
         f"v_cmp_ne_u32_e64 {sr(sMB, 2)}, s{sNonce}, v{F + 2}",
         f"v_cmp_ne_u32_e64 {sr(sMC, 2)}, s{sNonce}, v{F + 4}",
         f"v_cmp_ne_u32_e64 {sr(sMD, 2)}, s{sNonce}, v{F + 6}",
         "s_nop 3",
         f"s_or_b64 {sr(sMA, 2)}, {sr(sMA, 2)}, {sr(sMB, 2)}",
         f"s_or_b64 {sr(sMC, 2)}, {sr(sMC, 2)}, {sr(sMD, 2)}",
         f"s_or_b64 {sr(sMA, 2)}, {sr(sMA, 2)}, {sr(sMC, 2)}",
         f"s_cbranch_scc0 {ok}")


def chunk0_loads():
    F = PF
    emit(f"v_mov_b32 v{vT0}, 0", f"ds_write_b32 v{vMisc}, v{vT0} offset:{M_KMAX}", f"ds_write_b32 v{vMisc}, v{vT0} offset:{M_VMAX}",
         f"s_lshl_b32 s{sT0}, s{sB}, 17", f"s_mov_b32 s{sT1}, 0")
    for g in range(4):
        emit(f"s_mov_b32 m0, s{sT1}", f"s_add_u32 s{sT1}, s{sT1}, 4096")
        for i in range(4):
            dma(vL16, S_WS, f"s{sT0}", imm=1024 * i, sc1=OPT['ld_sc1'])
        if g < 3:
            emit(f"s_add_u32 s{sT0}, s{sT0}, 4096")
    emit(f"v_max_u32 v{F + 1}, v{F + 1}, v{F + 5}", f"v_max_u32 v{F + 3}, v{F + 3}, v{F + 7}",
         f"ds_max_u32 v{vMisc}, v{F + 1} offset:{M_KMAX}", f"ds_max_u32 v{vMisc}, v{F + 3} offset:{M_VMAX}")


def poll_kv():
    cmt("wave 7, late path: poll the K/V flags, fetch key tiles 0..7")
    emit(f"s_cmp_eq_u32 s{sWave}, 7", "s_cbranch_scc0 L_pollkv_done",
         f"s_mov_b32 s{sCnt}, {OPT['spin_limit']}")
    lab("L_pollkv")
    emit("s_waitcnt vmcnt(0)")
    poll_check(24, "L_pollkv_ok")
    poll_issue(24)
    emit(f"s_sub_u32 s{sCnt}, s{sCnt}, 1", f"s_cmp_lg_u32 s{sCnt}, 0", "s_cbranch_scc1 L_pollkv")
    spin_fail(1)
    lab("L_pollkv_ok")
    stamp(13)
    chunk0_loads()
    lab("L_pollkv_done")


def barrier_a():
    emit(f"s_cmp_eq_u32 s{sWave}, 7", "s_cbranch_scc0 L_bara", "s_waitcnt vmcnt(0)")
    lab("L_bara")
    emit("s_waitcnt lgkmcnt(0)", "s_barrier")


GACC = 96
vXG = 116


def q_setup():
    cmt("Q projection: addresses, accumulators; main-loop register init")
    ACC = S0
    emit(f"v_and_b32 v{vT0}, 31, v{vLane}", f"v_lshrrev_b32 v{vT1}, 5, v{vLane}",
         f"v_mul_u32_u24 v{vT0}, {XP}, v{vT0}", f"v_lshlrev_b32 v{vT2}, 4, v{vT1}",
         f"v_add_u32 v{vXB}, v{vT0}, v{vT2}", f"v_add_u32 v{vXB}, {LDS_XT}, v{vXB}",
         f"s_lshl_b32 s{sT0}, s{sWave}, 7", f"s_add_u32 s{sT0}, s{sT0}, {LDS_GW}",
         f"v_add_u32 v{vGA}, s{sT0}, v{vT2}",
         f"v_bfe_u32 v{vT0}, v{vLane}, 2, 2",
         f"v_lshlrev_b32 v{vT2}, 3, v{vT1}", f"v_add_u32 v{vT2}, v{vT2}, v{vT0}", f"v_lshlrev_b32 v{vT2}, 6, v{vT2}",
         f"v_bfe_u32 v{vT1}, v{vLane}, 4, 1", f"v_lshlrev_b32 v{vT1}, 5, v{vT1}",
         f"v_and_b32 v{vT0}, 3, v{vLane}", f"v_lshlrev_b32 v{vT0}, 3, v{vT0}",
         f"v_add3_u32 v{vT2}, v{vT2}, v{vT0}, v{vT1}",
         f"v_add_u32 v{vWA}, s{sRing}, v{vT2}")
    for i in range(16):
        emit(f"v_mov_b32 v{ACC + i}, 0")
    for i in range(16):
        emit(f"v_accvgpr_write_b32 a{i}, 0")
    reg_init()
    emit(f"s_cmp_lt_u32 s{sWave}, 2", f"s_cselect_b32 s{sFB}, 0, 99")


def q_proj():
    cmt("Q projection (per-wave ring)")
    ACC = S0
    QS = 32
    GF = 64

    def reads(s):
        f = QS + 8 * (s & 3)
        return [f"ds_read_b64_tr_b16 {ar(f, 2)}, v{vWA} offset:{(s & 7) * 1024}",
                f"ds_read_b64_tr_b16 {ar(f + 2, 2)}, v{vWA} offset:{(s & 7) * 1024 + 256}",
                f"ds_read_b128 {ar(f + 4, 4)}, v{vXG} offset:{(s & 3) * 32}"]

    def group_addr():
        return [f"v_add_u32 v{vXG}, s{sK}, v{vXB}", f"s_add_u32 s{sK}, s{sK}, 128", f"s_and_b32 s{sK}, s{sK}, 1023"]

    def step(s, last, extra=0):
        f = QS + 8 * (s & 3)
        rd = not (last and s >= 6)
        if last:
            w = {0: 5, 1: 4, 2: 3, 3: 2, 4: 1, 5: 0}.get(s)
            if w is not None:
                w += extra
        else:
            w = 5
        lg = 3 if (rd or (last and s == 6)) else 0
        if last and s == 7:
            lg = 0
        emit((f"s_waitcnt vmcnt({w}) " if w is not None else "s_waitcnt ") + f"lgkmcnt({lg})")
        if s == 4 and not last:
            n = uid()
            emit(f"s_cmp_eq_u32 s{sCnt}, s{sFB}", f"s_cbranch_scc0 L_nf{n}", "s_waitcnt vmcnt(4)",
                 f"v_mov_b32 v{vT0}, 0", "s_mov_b64 exec, 1",
                 f"buffer_store_dwordx2 {vr(124, 2)}, v{vT0}, {sr(S_WS, 4)}, s{sFl} offen sc1", "s_mov_b64 exec, -1")
            stamp(27)
            lab(f"L_nf{n}")
        if s == OPT["poll_step"] and not last:
            n = uid()
            emit(f"s_cmp_eq_u32 s{sCnt}, s{sI2}", f"s_cbranch_scc0 L_ep{n}")
            poll_issue(16)
            lab(f"L_ep{n}")
        if s % 4 == 0:
            emit(f"s_cmp_eq_u32 s{sS}, s{sWave}", "s_cselect_b64 vcc, -1, 0",
                 f"s_add_u32 s{sS}, s{sS}, 1", f"s_and_b32 s{sS}, s{sS}, 7")
        if s % 4 == 2 and rd:
            emit(*group_addr())
        if last and s == 5 and not extra:
            n = uid()
            emit(f"s_cmp_eq_u32 s{sWave}, 7", f"s_cbranch_scc0 L_np{n}")
            poll_issue(24)
            lab(f"L_np{n}")
        if rd and not (OPT["q_exp"] & 1):
            emit(*reads(s + 2))
        acc = vr(ACC, 16) if s % 2 == 0 else ar(0, 16)
        if not (OPT["q_exp"] & 4):
            emit(f"v_mfma_f32_32x32x16_bf16 {acc}, {ar(f, 4)}, {ar(f + 4, 4)}, {acc}")
        if not last:
            emit(f"s_add_u32 m0, s{sRing}, {s * 1024}", f"s_add_u32 s{sSl}, s{sSl}, 16384", f"s_and_b32 s{sSl}, s{sSl}, 0x7ffff")
            if not (OPT["q_exp"] & 2):
                dma(vA, S_WQ, f"s{sSl}")
        n = uid()
        emit(f"s_cbranch_vccz L_ng{n}",
             f"v_mfma_f32_32x32x16_bf16 {ar(GACC, 16)}, {ar(GF + 4 * (s & 3), 4)}, {ar(f + 4, 4)}, {'0' if (s & 3) == 0 else ar(GACC, 16)}")
        lab(f"L_ng{n}")

    emit(f"s_lshl_b32 s{sK}, s{sRot}, 5", f"s_lshr_b32 s{sS}, s{sRot}, 2", f"s_mov_b32 s{sCnt}, 0",
         f"s_cmp_eq_u32 s{sWave}, 7", f"s_cselect_b32 s{sI2}, {OPT['poll_blk']}, 99")
    emit(*group_addr())
    for i in range(4):
        emit(f"ds_read_b128 {ar(GF + 4 * i, 4)}, v{vGA} offset:{32 * i}")
    emit("s_waitcnt vmcnt(6) lgkmcnt(0)")
    nonce()
    stamp(24)
    emit(*reads(0))
    emit(*reads(1))
    lab("L_qloop")
    for s in range(8):
        step(s, False)
    emit(f"s_add_u32 s{sCnt}, s{sCnt}, 1", f"s_cmp_lt_u32 s{sCnt}, 3", "s_cbranch_scc1 L_qloop")
    emit(f"s_cmp_eq_u32 s{sWave}, 7", "s_cbranch_scc0 L_qlast", f"s_waitcnt vmcnt({(8 - OPT['poll_step']) + 8 * (2 - OPT['poll_blk'])})")
    poll_check(16, "L_qlast7")
    lab("L_qlast")
    for s in range(8):
        step(s, True)
    stamp(25)
    poll_kv()
    emit("s_branch L_qdone")
    lab("L_qlast7")
    stamp(13)
    chunk0_loads()
    for s in range(8):
        step(s, True, extra=16)
    stamp(25)
    lab("L_qdone")


def q_finish():
    cmt("Q frags + norms, gate partials")
    ACC = S0
    emit(f"v_and_b32 v{vT0}, 31, v{vLane}", f"v_lshlrev_b32 v{vT0}, 5, v{vT0}", f"s_lshl_b32 s{sT0}, s{sWave}, 2",
         f"s_add_u32 s{sT0}, s{sT0}, {LDS_GP}",
         f"v_add_u32 v{vT0}, s{sT0}, v{vT0}",
         "s_nop 7", f"v_accvgpr_read_b32 v{vT1}, a{GACC}")
    emit(f"ds_write_b32 v{vT0}, v{vT1}")
    for i in range(16):
        emit(f"v_accvgpr_read_b32 v{112 + i}, a{i}")
    for i in range(16):
        emit(f"v_add_f32 v{ACC + i}, v{ACC + i}, v{112 + i}")
    for i in range(4):
        emit(f"v_cvt_pk_bf16_f32 v{Qa + i}, v{ACC + 2 * i}, v{ACC + 2 * i + 1}")
    for i in range(4):
        emit(f"v_cvt_pk_bf16_f32 v{Qb + i}, v{ACC + 8 + 2 * i}, v{ACC + 8 + 2 * i + 1}")
    emit(f"v_mul_f32 v{vNa}, v{ACC}, v{ACC}", f"v_mul_f32 v{vNb}, v{ACC + 8}, v{ACC + 8}")
    for i in range(1, 8):
        emit(f"v_fmac_f32 v{vNa}, v{ACC + i}, v{ACC + i}", f"v_fmac_f32 v{vNb}, v{ACC + 8 + i}, v{ACC + 8 + i}")
    emit(f"v_mov_b32 v{vT0}, v{vNa}", f"v_mov_b32 v{vT1}, v{vNb}", "s_nop 1",
         f"v_permlane32_swap_b32 v{vNa}, v{vT0}", f"v_permlane32_swap_b32 v{vNb}, v{vT1}", "s_nop 1",
         f"v_add_f32 v{vNa}, v{vNa}, v{vT0}", f"v_add_f32 v{vNb}, v{vNb}, v{vT1}",
         f"v_max_f32 v{vNa}, v{vNa}, v{vNb}")


def reg_init():
    cmt("main-loop register init")
    for i in range(32):
        emit(f"v_mov_b32 v{Oa + i}, 0")
    for i in range(8):
        emit(f"v_mov_b32 v{S1 + 8 + i}, 0")
    emit(f"v_and_b32 v{vT0}, 27, v{vLane}",
         f"v_cmp_eq_u32 vcc, 16, v{vT0}", f"v_mov_b32 v{vT1}, 0x3f803f80", "s_nop 0",
         f"v_cndmask_b32 v{V0}, 0, v{vT1}, vcc")
    for i in range(1, 16):
        emit(f"v_mov_b32 v{V0 + i}, v{V0}")
    emit(f"v_mov_b32 v{IDX}, 0xdddddddd",
         f"v_mov_b32 v{AK}, v{vL16}",
         f"v_lshrrev_b32 v{vT0}, 5, v{vLane}", f"v_lshlrev_b32 v{vT0}, 8, v{vT0}",
         f"v_and_b32 v{vT1}, 15, v{vLane}", f"v_lshlrev_b32 v{vT1}, 4, v{vT1}", f"v_add_u32 v{AV}, v{vT0}, v{vT1}",
         "s_nop 0")


def kv_rest_loads():
    cmt("first key tile fragments; remaining K/V tiles -> LDS (waves 0..3: linear range 16384 + wave*28672)")
    emit(f"ds_read_b64 {vr(120, 2)}, v{vMisc}",
         f"ds_read_b128 {vr(KF, 4)}, v{AK}",
         f"s_mov_b64 exec, {sr(sVM, 2)}",
         f"ds_read_b128 {vr(V0, 4)}, v{AV} offset:1024", f"ds_read_b128 {vr(V1, 4)}, v{AV} offset:1536",
         "s_mov_b64 exec, -1")
    emit(f"s_cmp_ge_u32 s{sWave}, 4", "s_cbranch_scc1 L_rest_done",
         f"s_lshl_b32 s{sT0}, s{sB}, 17",
         f"s_mul_i32 s{sT1}, s{sWave}, 28672", f"s_add_u32 s{sT1}, s{sT1}, 16384", f"s_add_u32 s{sT2}, s{sT0}, s{sT1}",
         f"s_mov_b32 s{sCnt}, 7")
    lab("L_rest")
    emit(f"s_mov_b32 m0, s{sT1}", f"s_add_u32 s{sT1}, s{sT1}, 4096")
    for i in range(4):
        dma(vL16, S_WS, f"s{sT2}", imm=1024 * i, sc1=OPT['ld_sc1'])
    emit(f"s_add_u32 s{sT2}, s{sT2}, 4096", f"s_sub_u32 s{sCnt}, s{sCnt}, 1", f"s_cmp_lg_u32 s{sCnt}, 0", "s_cbranch_scc1 L_rest")
    lab("L_rest_done")


def start_attention():
    cmt("path decision, first key tile")
    emit("s_waitcnt lgkmcnt(0)",
         f"v_mfma_f32_32x32x16_bf16 {vr(S0, 16)}, {vr(KF, 4)}, {vr(Qa, 4)}, 0")
    t2 = struct.unpack("<I", struct.pack("<f", OPT["T2"]))[0]
    emit(f"v_mul_f32 v{vT0}, v{vNa}, v120", f"s_mov_b32 s{sT0}, {t2:#x}",
         f"v_cmp_nle_f32_e64 {sr(sMA, 2)}, v{vT0}, s{sT0}",
         f"s_mov_b32 s{sT1}, 0x53800000",
         f"v_cmp_nle_f32_e64 {sr(sMB, 2)}, v121, s{sT1}",
         f"s_mov_b32 s{sT1}, 0x2b800000",
         f"v_cmp_nge_f32_e64 {sr(sMC, 2)}, v121, s{sT1}",
         "s_nop 3",
         f"s_or_b64 {sr(sMA, 2)}, {sr(sMA, 2)}, {sr(sMB, 2)}",
         f"s_or_b64 {sr(sMA, 2)}, {sr(sMA, 2)}, {sr(sMC, 2)}")
    if OPT["force_slow"]:
        emit(f"s_mov_b64 {sr(sMA, 2)}, -1")
    emit(f"s_cmp_ge_u32 s{sWave}, 4", "s_cbranch_scc1 L_prio_g2", f"s_setprio {OPT['prio_g1']}",
         f"s_mov_b32 s{sI1}, 99", "s_branch L_prio_done")
    lab("L_prio_g2")
    emit(f"s_setprio {OPT['prio_g2']}", f"s_mov_b32 s{sI1}, {OPT['g2_drop']}")
    lab("L_prio_done")
    emit(f"s_cmp_lg_u64 {sr(sMA, 2)}, 0", "s_cbranch_scc1 L_slow")


def gate_factor():
    emit(f"v_and_b32 v{vT0}, 31, v{vLane}", f"v_lshlrev_b32 v{vT0}, 5, v{vT0}", f"v_add_u32 v{vT0}, {LDS_GP}, v{vT0}",
         f"ds_read_b128 {vr(112, 4)}, v{vT0}", f"ds_read_b128 {vr(116, 4)}, v{vT0} offset:16",
         f"s_mov_b32 s{sT0}, {NLOG2E:#x}", f"s_xor_b32 s{sT1}, s{sT0}, 0x80000000", f"s_cmp_eq_u32 s{sB}, 0",
         f"s_cselect_b32 s{sT0}, s{sT0}, s{sT1}",
         "s_waitcnt lgkmcnt(0)",
         f"v_add_f32 v112, v112, v113", f"v_add_f32 v114, v114, v115", f"v_add_f32 v116, v116, v117", f"v_add_f32 v118, v118, v119",
         f"v_add_f32 v112, v112, v114", f"v_add_f32 v116, v116, v118", f"v_add_f32 v112, v112, v116",
         f"v_mul_f32 v112, s{sT0}, v112", f"v_exp_f32 v112, v112", "s_nop 0", f"v_add_f32 v112, 1.0, v112",
         f"v_rcp_f32 v{vGate}, v112")


def wo_flag_load():
    emit(f"v_bfe_u32 v{vT0}, v{vLane}, 3, 2", f"v_xor_b32 v{vT0}, s{sM}, v{vT0}",
         f"v_and_b32 v{vT1}, 1, v{vT0}", f"v_lshlrev_b32 v{vT1}, 7, v{vT1}",
         f"v_lshrrev_b32 v{vT0}, 1, v{vT0}", f"v_lshlrev_b32 v{vT0}, 6, v{vT0}",
         f"v_and_b32 v{vT2}, 7, v{vLane}", f"v_lshlrev_b32 v{vT2}, 2, v{vT2}",
         f"v_add3_u32 v{vT0}, v{vT0}, v{vT1}, v{vT2}",
         f"s_lshr_b32 s{sT0}, s{sWave}, 2", f"s_lshl_b32 s{sT0}, s{sT0}, 5", f"s_add_u32 s{sT0}, s{sT0}, s{sM}",
         f"s_lshl_b32 s{sT0}, s{sT0}, 2", f"s_add_u32 s{sT0}, s{sT0}, {WS_WOFF}",
         f"v_lshlrev_b32 v{vT0}, 2, v{vT0}",
         f"buffer_load_dword v{vE0 + 12}, v{vT0}, {sr(S_WS, 4)}, s{sT0} offen sc1")


def wo_prefetch(tag):
    emit(f"s_mov_b32 s{sCnt}, {OPT['spin_limit']}")
    lab(f"L_wochk_{tag}")
    emit("s_waitcnt vmcnt(0)",
         f"v_cmp_ne_u32_e64 {sr(sMA, 2)}, s{sNonce}, v{vE0 + 12}", "s_nop 3",
         f"s_cmp_eq_u64 {sr(sMA, 2)}, 0", f"s_cbranch_scc1 L_wook_{tag}", "s_sleep 1")
    wo_flag_load()
    emit(f"s_sub_u32 s{sCnt}, s{sCnt}, 1", f"s_cmp_lg_u32 s{sCnt}, 0", f"s_cbranch_scc1 L_wochk_{tag}")
    spin_fail(2)
    lab(f"L_wook_{tag}")
    emit(f"s_and_b32 s{sT1}, s{sWave}, 3", f"s_lshl_b32 s{sT2}, s{sM}, 2", f"s_add_u32 s{sT1}, s{sT1}, s{sT2}",
         f"s_lshl_b32 s{sT1}, s{sT1}, 10",
         f"s_lshr_b32 s{sT2}, s{sWave}, 2", f"s_lshl_b32 s{sT2}, s{sT2}, 17",
         f"s_add_u32 s{sT1}, s{sT1}, s{sT2}", f"s_add_u32 s{sT1}, s{sT1}, {WS_WOF}")
    for j in range(4):
        emit(f"s_xor_b32 s{sT2}, s{sM}, {j}", f"s_and_b32 s{sT3}, s{sT2}, 1", f"s_lshl_b32 s{sT3}, s{sT3}, 19",
             f"s_lshr_b32 s{sT2}, s{sT2}, 1", f"s_lshl_b32 s{sT2}, s{sT2}, 18",
             f"s_add_u32 s{sT0}, s{sT1}, s{sT2}", f"s_add_u32 s{sT0}, s{sT0}, s{sT3}")
        for i in range(8):
            emit(f"buffer_load_dwordx4 {ar(4 * (8 * j + i), 4)}, v{vL16}, {sr(S_WS, 4)}, s{sT0} offen" + (" sc1" if OPT['ld_sc1'] else ""))
            if i < 7:
                emit(f"s_add_u32 s{sT0}, s{sT0}, 16384")


TB = 2048
POS = (2, 5, 11)


def phase(X, Y, QY, OX, OY, sh0, sh1, sh2, VA0, VA1, extra=None):
    for i in range(16):
        if i == POS[0]:
            emit(f"v_smfmac_f32_32x32x32_bf16 {vr(OY, 16)}, {vr(VA1, 4)}, {vr(Y + 8, 8)}, v{IDX}", *sh0)
        if i == POS[1]:
            emit(f"v_mfma_f32_32x32x16_bf16 {vr(Y, 16)}, {vr(KF, 4)}, {vr(QY, 4)}, 0", *sh1)
        if i == POS[2]:
            emit(f"v_smfmac_f32_32x32x32_bf16 {vr(OX, 16)}, {vr(VA0, 4)}, {vr(X, 8)}, v{IDX}", *sh2)
        if extra and i in extra:
            emit(*extra[i])
        emit(f"v_exp_f32 v{X + i}, v{X + i}")


def main_loop():
    cmt("attention, fast path")
    emit(f"s_mov_b32 s{sIter}, 0")
    emit(".p2align 6")
    lab("L_main")
    stamp_iter()
    emit(f"s_cmp_eq_u32 s{sIter}, 1", "s_cbranch_scc1 L_blk_1", f"s_cmp_eq_u32 s{sIter}, 2", "s_cbranch_scc1 L_blk_2")
    lab("L_main_go")
    for t in range(8):
        if t == 6:
            emit(f"s_cmp_eq_u32 s{sIter}, 0", "s_cbranch_scc1 L_blk_bar")
            lab("L_main_t6")
        if t == OPT["g2_drop_tile"]:
            emit(f"s_cmp_eq_u32 s{sIter}, s{sI1}", "s_cbranch_scc1 L_blk_prio")
            lab("L_main_tp")
        c0, c1 = (V0, V1) if t % 2 == 0 else (V0b, V1b)
        n0, n1 = (V0b, V1b) if t % 2 == 0 else (V0, V1)
        both = [f"s_mov_b64 exec, {sr(sVM, 2)}",
                f"ds_read_b128 {vr(n0, 4)}, v{AV} offset:{(t + 1) * TB + 1024}",
                f"ds_read_b128 {vr(n1, 4)}, v{AV} offset:{(t + 1) * TB + 1536}",
                "s_mov_b64 exec, -1"]
        sh1 = [f"ds_read_b128 {vr(KF, 4)}, v{AK} offset:{(t + 1) * TB}"]
        phase(S0, S1, Qb, Oa, Ob, both, sh1, [], c0, n1)
        phase(S1, S0, Qa, Ob, Oa, ["s_waitcnt lgkmcnt(0)"], [], [], c0, c1)
    emit(f"v_add_u32 v{AK}, 0x4000, v{AK}", f"v_add_u32 v{AV}, 0x4000, v{AV}",
         f"s_add_u32 s{sIter}, s{sIter}, 1", f"s_cmp_lt_u32 s{sIter}, 8", "s_cbranch_scc1 L_main")
    emit("s_nop 1", f"v_smfmac_f32_32x32x32_bf16 {vr(Ob, 16)}, {vr(V1b, 4)}, {vr(S1 + 8, 8)}, v{IDX}")
    lab("L_epi")


def main_blocks():
    lab("L_blk_1")
    wo_flag_load()
    emit("s_branch L_main_go")
    lab("L_blk_2")
    gate_factor()
    wo_prefetch("f")
    emit("s_branch L_main_go")
    lab("L_blk_bar")
    emit("s_waitcnt vmcnt(0)", "s_barrier")
    wof_flag()
    emit("s_branch L_main_t6")
    lab("L_blk_prio")
    emit("s_setprio 0", "s_branch L_main_tp")


def slow_path():
    cmt("attention, true-max path (online softmax)")
    lab("L_slow")
    emit(f"v_mov_b32 v{vMa}, 0xff800000", f"v_mov_b32 v{vMb}, 0xff800000", f"s_mov_b32 s{sIter}, 0")
    lab("L_slow_loop")
    emit(f"s_cmp_eq_u32 s{sIter}, 6", "s_cbranch_scc0 L_slow_nb", "s_waitcnt vmcnt(0)", "s_barrier")
    wof_flag()
    lab("L_slow_nb")
    emit(f"ds_read_b128 {vr(KF, 4)}, v{AK}",
         f"s_mov_b64 exec, {sr(sVM, 2)}",
         f"ds_read_b128 {vr(V0, 4)}, v{AV} offset:1024", f"ds_read_b128 {vr(V1, 4)}, v{AV} offset:1536",
         "s_mov_b64 exec, -1", "s_waitcnt lgkmcnt(0)")
    for (Q, O, M) in ((Qa, Oa, vMa), (Qb, Ob, vMb)):
        emit(f"v_mfma_f32_32x32x16_bf16 {vr(S0, 16)}, {vr(KF, 4)}, {vr(Q, 4)}, 0", "s_nop 15",
             f"v_max3_f32 v{vT0}, v{S0}, v{S0 + 1}, v{S0 + 2}")
        for i in range(3, 15, 2):
            emit(f"v_max3_f32 v{vT0}, v{vT0}, v{S0 + i}, v{S0 + i + 1}")
        emit(f"v_max_f32 v{vT0}, v{vT0}, v{S0 + 15}", "s_nop 0", f"v_mov_b32 v{vT1}, v{vT0}", "s_nop 1",
             f"v_permlane32_swap_b32 v{vT0}, v{vT1}", "s_nop 1",
             f"v_max3_f32 v{vT0}, v{vT0}, v{vT1}, v{M}",
             f"v_sub_f32 v{vT1}, v{M}, v{vT0}", f"v_exp_f32 v{vT1}, v{vT1}", f"v_mov_b32 v{M}, v{vT0}")
        for i in range(9):
            emit(f"v_mul_f32 v{O + i}, v{vT1}, v{O + i}")
        for i in range(16):
            emit(f"v_sub_f32 v{S0 + i}, v{S0 + i}, v{vT0}")
        for i in range(16):
            emit(f"v_exp_f32 v{S0 + i}, v{S0 + i}")
        emit("s_nop 1",
             f"v_smfmac_f32_32x32x32_bf16 {vr(O, 16)}, {vr(V0, 4)}, {vr(S0, 8)}, v{IDX}",
             f"v_smfmac_f32_32x32x32_bf16 {vr(O, 16)}, {vr(V1, 4)}, {vr(S0 + 8, 8)}, v{IDX}")
    emit(f"v_add_u32 v{AK}, {TB}, v{AK}", f"v_add_u32 v{AV}, {TB}, v{AV}",
         f"s_add_u32 s{sIter}, s{sIter}, 1", f"s_cmp_lt_u32 s{sIter}, 64", "s_cbranch_scc1 L_slow_loop")
    gate_factor()
    wo_flag_load()
    wo_prefetch("s")
    emit("s_branch L_epi")


def tail():
    cmt("normalise, gate, publish O fragments (global for the partners, LDS for ourselves)")
    emit("s_nop 15")
    P = 112
    for k, O in enumerate((Oa, Ob)):
        emit(f"v_rcp_f32 v{vT0}, v{O + 8}", "s_nop 0", f"v_mul_f32 v{vT0}, v{vT0}, v{vGate}")
        for i in range(8):
            emit(f"v_mul_f32 v{O + i}, v{vT0}, v{O + i}")
        for i in range(4):
            emit(f"v_cvt_pk_bf16_f32 v{P + 4 * k + i}, v{O + 2 * i}, v{O + 2 * i + 1}")
    emit(f"s_lshl_b32 s{sT1}, s{sB}, 15", f"s_lshl_b32 s{sT2}, s{sHH}, 14", f"s_add_u32 s{sT1}, s{sT1}, s{sT2}",
         f"s_lshl_b32 s{sT2}, s{sWave}, 11", f"s_add_u32 s{sT1}, s{sT1}, s{sT2}",
         f"s_lshl_b32 s{sT0}, s{sRB}, 16", f"s_add_u32 s{sT0}, s{sT0}, s{sT1}", f"s_add_u32 s{sT0}, s{sT0}, {WS_OF}",
         f"buffer_store_dwordx4 {vr(P, 4)}, v{vL16}, {sr(S_WS, 4)}, s{sT0} offen sc1",
         f"buffer_store_dwordx4 {vr(P + 4, 4)}, v{vL16}, {sr(S_WS, 4)}, s{sT0} offen offset:1024 sc1",
         f"v_add_u32 v{vT0}, s{sT1}, v{vL16}",
         "s_barrier",
         f"ds_write_b128 v{vT0}, {vr(P, 4)}", f"ds_write_b128 v{vT0}, {vr(P + 4, 4)} offset:1024",
         "s_waitcnt vmcnt(0) lgkmcnt(0)", "s_barrier")
    stamp(6)
    ACC = 16
    FR = 48
    emit(f"s_lshl_b32 s{sT4}, s{sRB}, 6", f"s_add_u32 s{sT4}, s{sT4}, {WS_OFL}",
         f"s_cmp_eq_u32 s{sWave}, 0", "s_cbranch_scc0 L_ofl_sent",
         f"s_lshl_b32 s{sT1}, s{sM}, 2", f"s_add_u32 s{sT1}, s{sT1}, s{sT4}",
         f"v_mov_b32 v{vT0}, s{sNonce}", f"v_mov_b32 v{vT1}, 0", "s_mov_b64 exec, 1",
         f"buffer_store_dword v{vT0}, v{vT1}, {sr(S_WS, 4)}, s{sT1} offen sc1", "s_mov_b64 exec, -1")
    lab("L_ofl_sent")

    def bbase(j, dst):
        emit(f"s_xor_b32 s{sT2}, s{sM}, {j}", f"s_and_b32 s{sT3}, s{sT2}, 1", f"s_lshl_b32 s{sT3}, s{sT3}, 15",
             f"s_lshr_b32 s{sT2}, s{sT2}, 1", f"s_lshl_b32 s{sT2}, s{sT2}, 14", f"s_add_u32 s{sT2}, s{sT2}, s{sT3}",
             f"s_lshr_b32 s{sT3}, s{sWave}, 2", f"s_lshl_b32 s{sT3}, s{sT3}, 13", f"s_add_u32 s{sT2}, s{sT2}, s{sT3}",
             f"v_add_u32 v{dst}, s{sT2}, v{vL16}")

    def mm8(j, addr):
        for i in range(8):
            emit(f"ds_read_b128 {vr(FR + 4 * i, 4)}, v{addr} offset:{i * 1024}")
        for i in range(8):
            acc = ACC + 16 * (i & 1)
            emit(f"s_waitcnt lgkmcnt({7 - i})",
                 f"v_mfma_f32_32x32x16_bf16 {vr(acc, 16)}, {ar(4 * (8 * j + i), 4)}, {vr(FR + 4 * i, 4)}, {'0' if (j == 0 and i < 2) else vr(acc, 16)}")

    for j in range(4):
        bbase(j, 80 + j)
    mm8(0, 80)
    emit(f"s_cmp_eq_u32 s{sWave}, 0", "s_cbranch_scc0 L_ofl_done",
         f"v_and_b32 v{vT1}, 3, v{vLane}", f"v_lshlrev_b32 v{vT1}, 2, v{vT1}",
         f"s_mov_b32 s{sCnt}, {OPT['spin_limit']}")
    lab("L_ofl")
    emit(f"buffer_load_dword v{vT2}, v{vT1}, {sr(S_WS, 4)}, s{sT4} offen sc1", "s_waitcnt vmcnt(0)",
         f"v_cmp_ne_u32_e64 {sr(sMA, 2)}, s{sNonce}, v{vT2}", "s_nop 3",
         f"s_cmp_eq_u64 {sr(sMA, 2)}, 0", "s_cbranch_scc1 L_ofl_done",
         f"s_sub_u32 s{sCnt}, s{sCnt}, 1", f"s_cmp_lg_u32 s{sCnt}, 0", "s_cbranch_scc1 L_ofl")
    spin_fail(3)
    lab("L_ofl_done")
    emit("s_barrier")
    stamp(7)
    for j in range(1, 4):
        emit(f"s_xor_b32 s{sT2}, s{sM}, {j}", f"s_and_b32 s{sT3}, s{sT2}, 1", f"s_lshl_b32 s{sT3}, s{sT3}, 15",
             f"s_lshr_b32 s{sT2}, s{sT2}, 1", f"s_lshl_b32 s{sT2}, s{sT2}, 14", f"s_add_u32 s{sT2}, s{sT2}, s{sT3}",
             f"s_lshl_b32 s{sT3}, s{sWave}, 11", f"s_add_u32 s{sT2}, s{sT2}, s{sT3}",
             f"s_mov_b32 m0, s{sT2}",
             f"s_lshl_b32 s{sT0}, s{sRB}, 16", f"s_add_u32 s{sT0}, s{sT0}, s{sT2}", f"s_add_u32 s{sT0}, s{sT0}, {WS_OF}")
        dma(vL16, S_WS, f"s{sT0}", sc1=OPT['ld_sc1'])
        dma(vL16, S_WS, f"s{sT0}", imm=1024, sc1=OPT['ld_sc1'])
    for j in range(1, 4):
        emit(f"s_waitcnt vmcnt({2 * (3 - j)})", "s_barrier")
        mm8(j, 80 + j)
    stamp(8)
    emit(f"s_lshl_b32 s{sT0}, s{sWave}, 11", f"s_add_u32 s{sT0}, s{sT0}, {LDS_RED}",
         f"s_xor_b32 s{sT1}, s{sWave}, 4", f"s_lshl_b32 s{sT1}, s{sT1}, 11", f"s_add_u32 s{sT1}, s{sT1}, {LDS_RED}",
         f"v_add_u32 v{vT0}, s{sT0}, v{vL16}", f"v_add_u32 v{vT3}, s{sT1}, v{vL16}",
         f"v_and_b32 v{vT1}, 31, v{vLane}", f"v_lshlrev_b32 v{vT1}, 10, v{vT1}",
         f"v_lshrrev_b32 v{vT2}, 5, v{vLane}", f"v_lshlrev_b32 v{vT2}, 3, v{vT2}", f"v_add_u32 v{vT1}, v{vT1}, v{vT2}",
         f"s_lshl_b32 s{sT0}, s{sM}, 8", f"s_and_b32 s{sT1}, s{sWave}, 3", f"s_lshl_b32 s{sT1}, s{sT1}, 6",
         f"s_add_u32 s{sT0}, s{sT0}, s{sT1}", f"s_add_u32 s{sT0}, s{sT0}, s{sXbase}",
         "s_nop 7")
    for i in range(16):
        emit(f"v_add_f32 v{ACC + i}, v{ACC + i}, v{ACC + 16 + i}")
    emit(f"s_cmp_ge_u32 s{sWave}, 4", "s_cbranch_scc1 L_red_hi")
    for hi in (0, 1):
        if hi:
            lab("L_red_hi")
        give = 8 if hi == 0 else 0
        keep = 0 if hi == 0 else 8
        emit(f"ds_write_b128 v{vT0}, {vr(ACC + give, 4)}", f"ds_write_b128 v{vT0}, {vr(ACC + give + 4, 4)} offset:1024",
             "s_waitcnt lgkmcnt(0)", "s_barrier",
             f"ds_read_b128 {vr(48, 4)}, v{vT3}", f"ds_read_b128 {vr(52, 4)}, v{vT3} offset:1024",
             "s_waitcnt lgkmcnt(0)")
        for i in range(8):
            emit(f"v_add_f32 v{ACC + keep + i}, v{ACC + keep + i}, v{48 + i}")
        for i in range(4):
            emit(f"v_cvt_pk_bf16_f32 v{64 + i}, v{ACC + keep + 2 * i}, v{ACC + keep + 2 * i + 1}")
        for q in range(2):
            o = (keep // 4 + q) * 16
            emit(f"buffer_store_dwordx2 {vr(64 + 2 * q, 2)}, v{vT1}, {sr(S_OUT, 4)}, s{sT0} offen" + (f" offset:{o}" if o else "") + (" " + OPT["out_pol"] if OPT["out_pol"] else ""))
        if hi == 0:
            emit(f"s_or_b32 s{sT0}, s2, s{sWave}", f"s_cmp_eq_u32 s{sT0}, 0", "s_cbranch_scc0 L_fin",
                 f"v_mov_b32 v{vT0}, s{sNonce}", f"v_mov_b32 v{vT1}, 0", f"s_mov_b32 s{sT0}, {WS_W}", "s_mov_b64 exec, 1",
                 f"buffer_store_dword v{vT0}, v{vT1}, {sr(S_WS, 4)}, s{sT0} offen sc1", "s_mov_b64 exec, -1", "s_branch L_fin")
    lab("L_fin")
    stamp(9)
    emit("s_waitcnt vmcnt(0)")
    lab("L_end")
    emit("s_endpgm")


def build():
    prologue()
    stamp(0)
    front()
    stamp(1)
    q_proj()
    q_finish()
    stamp(2)
    wof_task()
    barrier_a()
    stamp(3)
    kv_rest_loads()
    start_attention()
    stamp(4)
    main_loop()
    stamp(5)
    tail()
    main_blocks()
    slow_path()


HEADER = open(os.path.join(os.path.dirname(os.path.abspath(__file__)), "cdna_kernels", NAME + ".s.ref")).read().split("; Override launch")[0]


def render():
    build()
    out = [HEADER.rstrip("\n"),
           "; Override launch geometry by editing the next line (default: block=256,",
           "; grid=ceil(out_elems/256), lds=0). Harness parses it; keep it on one line.",
           f"; @launch grid=(256,1,1) block=(512,1,1) lds={LDS_TOTAL}",
           '.amdgcn_target "amdgcn-amd-amdhsa--gfx950"', ".text", f".globl {NAME}_kernel", ".p2align 8",
           f".type {NAME}_kernel,@function", f"{NAME}_kernel:"]
    for l in L:
        if l.endswith(":") or l.startswith(";") or l.startswith("."):
            out.append(l)
        else:
            out.append("    " + l)
    out += ['.section .rodata,"a"', ".p2align 6", f".amdhsa_kernel {NAME}_kernel",
            "  .amdhsa_next_free_vgpr 256", "  .amdhsa_next_free_sgpr 102", "  .amdhsa_accum_offset 128",
            "  .amdhsa_group_segment_fixed_size 0", "  .amdhsa_kernarg_size 112", "  .amdhsa_user_sgpr_count 2",
            "  .amdhsa_user_sgpr_kernarg_segment_ptr 1", "  .amdhsa_system_sgpr_workgroup_id_x 1",
            ".end_amdhsa_kernel", ""]
    return "\n".join(out)


if __name__ == "__main__":
    dst = os.environ.get("OUT", os.path.join(os.path.dirname(os.path.abspath(__file__)), "cdna_kernels", NAME + ".s"))
    open(dst, "w").write(render())
    print("wrote", dst, len(L), "lines")
```

```python
import sys, os, struct

NAME = "gated_mix__grouped_kv_mqa__grouped_kv_mqa__prompt"

OPT = dict(
    spin_limit=1 << 18,
    force_slow=False,
    stamps=False,
    ld_sc1=False,
    q_exp=0,
    out_pol='',
    poll_blk=2, poll_step=2,
    late_pf=0,
    xcd_local=0,
    loc_pol='',
    loc_mode=3,
    one_row=1,
    T2=1600.0,
    prio_g1=0,
    prio_g2=1,
    g2_drop=6,
    g2_drop_tile=5,
)
for a in sys.argv[1:]:
    if "=" in a:
        k, v = a.split("=", 1)
        if k in OPT:
            OPT[k] = type(OPT[k])(eval(v))
        else:
            raise SystemExit("unknown option " + k)

LDS_WK = 0
LDS_WV = 16384
LDS_WQ = 32768
LDS_XT = 98304
XP = 1040
LDS_GW = LDS_XT + 32 * XP
LDS_WOS = LDS_GW + 1024
LDS_GP = LDS_WOS + 4096
LDS_MISC = LDS_GP + 1024
LDS_TOTAL = LDS_MISC + 256
LDS_OG = 0
LDS_RED = 65536
M_KMAX, M_VMAX, M_FKV, M_FXB, M_FQG1, M_FQD, M_RD = 0, 4, 8, 12, 16, 20, 32

WS_KV = 0
WS_FLAG = 0x40000
WS_KVF = WS_FLAG
WS_WOFF = WS_FLAG + 4096
WS_OFL = WS_FLAG + 0x8000
WS_XID = WS_FLAG + 12288
WS_W = WS_FLAG + 16384
WS_WOF = 0x80000
WS_OF = 0x200000
WS_SIZE = 0x600000

CSCALE = 0x3EB8AA3B
NLOG2E = 0xBFB8AA3B

S_X, S_WQ, S_WK, S_WV, S_WO, S_GW, S_OUT, S_WS = 32, 36, 40, 44, 48, 52, 56, 60
sWave, sRB, sM, sB, sHH, sRot, sNonce = 64, 65, 66, 67, 68, 69, 70
sT0, sT1, sT2, sT3, sT4, sT5 = 71, 72, 73, 74, 75, 76
sS, sK, sSl, sRing, sQoff, sIter = 77, 78, 79, 82, 83, 84
sVM = 80
sXbase = 85
sCnt = 86
sRD = 87
sI1, sI2 = 98, 99
sLoc = 87
sW = 3

sFl, sFB = 100, 101
sMA, sMB = 88, 90
sMC, sMD = 92, 94
sSt = 96

vLane, vL16, vGate, vT0, vT1, vT2, vT3 = 1, 2, 3, 4, 5, 6, 7
Qa, Qb = 8, 12
Oa, Ob = 16, 32
S0, S1 = 48, 64
KF = 80
V0, V1, V0b, V1b = 84, 88, 92, 96
IDX, AK, AV = 100, 101, 102
vNon = 103
vXB, vWA, vA, vMisc = 104, 105, 106, 107
vMa, vMb = 108, 109
vNa, vNb = 110, 111
vGA = 108
vE0 = 112
vRDa, vRDv = 122, 123

L = []
_uid = [0]


def uid():
    _uid[0] += 1
    return _uid[0]


def emit(*lines):
    for l in lines:
        L.append(l)


def lab(name):
    L.append(name + ":")


def vr(b, n):
    return f"v[{b}:{b + n - 1}]"


def ar(b, n):
    return f"a[{b}:{b + n - 1}]"


def sr(b, n):
    return f"s[{b}:{b + n - 1}]"


def cmt(s):
    L.append(f"; ---- {s}")


def stamp(i):
    if not OPT["stamps"]:
        return

    def one(instr, slot):
        emit(f"{instr} {sr(sSt, 2)}", "s_waitcnt lgkmcnt(0)",
             f"s_lshl_b32 s{sSt + 1}, s2, 3", f"s_add_u32 s{sSt + 1}, s{sSt + 1}, s{sWave}", f"s_lshl_b32 s{sSt + 1}, s{sSt + 1}, 7",
             f"s_add_u32 s{sSt + 1}, s{sSt + 1}, {0x700000 + 4 * slot}",
             f"v_mov_b32 v{vE0 + 14}, s{sSt}", f"v_mov_b32 v{vE0 + 15}, s{sSt + 1}",
             f"global_store_dword v{vE0 + 15}, v{vE0 + 14}, s[30:31]")
    one("s_memrealtime", i)
    if i in (0, 9):
        one("s_memtime", 14 if i == 0 else 15)
    if i in (24, 25, 4, 5):
        one("s_memtime", {24: 28, 25: 29, 4: 30, 5: 31}[i])


def stamp_iter():
    if not OPT["stamps"]:
        return
    emit(f"s_memrealtime {sr(sSt, 2)}", "s_waitcnt lgkmcnt(0)",
         f"s_lshl_b32 s{sSt + 1}, s2, 3", f"s_add_u32 s{sSt + 1}, s{sSt + 1}, s{sWave}", f"s_lshl_b32 s{sSt + 1}, s{sSt + 1}, 5",
         f"s_add_u32 s{sSt + 1}, s{sSt + 1}, s{sIter}", f"s_lshl_b32 s{sSt + 1}, s{sSt + 1}, 2",
         f"s_add_u32 s{sSt + 1}, s{sSt + 1}, {0x700000 + 64}",
         f"v_mov_b32 v{vE0 + 14}, s{sSt}", f"v_mov_b32 v{vE0 + 15}, s{sSt + 1}",
         f"global_store_dword v{vE0 + 15}, v{vE0 + 14}, s[30:31]")


def dma(vaddr, srd, soff, m0expr=None, imm=0, sc1=False):
    if m0expr is not None:
        emit(f"s_mov_b32 m0, {m0expr}", "s_nop 0")
    s = f"buffer_load_dwordx4 v{vaddr}, {sr(srd, 4)}, {soff} offen"
    if imm:
        s += f" offset:{imm}"
    if sc1:
        s += " sc1"
    emit(s + " lds")


def spin_fail(code):
    emit(f"v_mov_b32 v{vT0}, {code}", f"v_mov_b32 v{vT1}, 60", f"global_store_dword v{vT1}, v{vT0}, s[28:29]")


def lds_wait(off, val, addr=None):
    n = uid()
    a = f"v{vMisc} offset:{off}" if addr is None else f"v{addr}"
    emit(f"s_mov_b32 s{sCnt}, {OPT['spin_limit']}")
    lab(f"L_lw{n}")
    emit(f"ds_read_b32 v{vT2}, {a}", "s_waitcnt lgkmcnt(0)", f"v_readfirstlane_b32 s{sT5}, v{vT2}", "s_nop 1",
         f"s_cmp_ge_u32 s{sT5}, {val}", f"s_cbranch_scc1 L_lwd{n}", "s_sleep 1",
         f"s_sub_u32 s{sCnt}, s{sCnt}, 1", f"s_cmp_lg_u32 s{sCnt}, 0", f"s_cbranch_scc1 L_lw{n}")
    spin_fail(8 + off)
    lab(f"L_lwd{n}")


def lds_add(off, val, addr=None):
    a = f"v{vMisc}, v{vT2} offset:{off}" if addr is None else f"v{addr}, v{vT2}"
    emit(f"v_mov_b32 v{vT2}, {val}", "s_mov_b64 exec, 1", f"ds_add_u32 {a}", "s_mov_b64 exec, -1")


def prologue():
    cmt("prologue")
    emit("s_cmp_ge_u32 s2, 256", "s_cbranch_scc1 L_end",
         "s_load_dwordx16 s[4:19], s[0:1], 0",
         "s_load_dwordx8 s[20:27], s[0:1], 64",
         "s_load_dwordx4 s[28:31], s[0:1], 96",
         f"v_lshrrev_b32 v{vT0}, 6, v0",
         f"v_and_b32 v{vLane}, 63, v0",
         f"s_and_b32 s3, s2, 7",
         f"v_readfirstlane_b32 s{sWave}, v{vT0}",
         f"s_lshr_b32 s{sRB}, s2, 5",
         f"s_lshl_b32 s{sRot}, s{sRB}, 2",
         f"s_lshl_b32 s{sRB}, s{sRB}, 3",
         f"s_add_u32 s{sRB}, s{sRB}, s3",
         f"s_lshr_b32 s{sM}, s2, 3",
         f"s_and_b32 s{sM}, s{sM}, 3",
         f"s_and_b32 s{sB}, s{sM}, 1",
         f"s_lshr_b32 s{sHH}, s{sM}, 1",
         f"v_lshlrev_b32 v{vL16}, 4, v{vLane}",
         f"s_lshl_b32 s{sXbase}, s{sRB}, 15",
         f"s_lshl_b32 s{sT0}, s{sHH}, 4", f"s_lshl_b32 s{sT1}, s{sWave}, 1", f"s_add_u32 s{sT0}, s{sT0}, s{sT1}",
         f"s_mul_i32 s{sT1}, s{sT0}, {XP}", f"s_add_u32 s{sT1}, s{sT1}, {LDS_XT}",
         f"s_lshl_b32 s{sT2}, s{sT0}, 10", f"s_add_u32 s{sT2}, s{sT2}, s{sXbase}",
         f"s_xor_b32 s{sT0}, s{sT0}, 16",
         f"s_mul_i32 s{sT3}, s{sT0}, {XP}", f"s_add_u32 s{sT3}, s{sT3}, {LDS_XT}",
         f"s_lshl_b32 s{sT4}, s{sT0}, 10", f"s_add_u32 s{sT4}, s{sT4}, s{sXbase}",
         f"v_lshrrev_b32 v{vT0}, 2, v{vLane}", f"v_lshlrev_b32 v{vT0}, 10, v{vT0}",
         f"v_and_b32 v{vT1}, 3, v{vLane}", f"v_lshlrev_b32 v{vT1}, 4, v{vT1}",
         f"v_add_u32 v{vA}, v{vT0}, v{vT1}",
         f"s_lshl_b32 s{sQoff}, s{sHH}, 9", f"s_lshl_b32 s{sT0}, s{sWave}, 6", f"s_add_u32 s{sQoff}, s{sQoff}, s{sT0}",
         f"s_lshl_b32 s{sRing}, s{sWave}, 13", f"s_add_u32 s{sRing}, s{sRing}, {LDS_WQ}",
         f"s_mov_b32 s{S_X + 2}, 0x200000", f"s_mov_b32 s{S_X + 3}, 0x20000",
         f"s_mov_b32 s{S_WQ + 2}, 0x80000", f"s_mov_b32 s{S_WQ + 3}, 0x20000",
         f"s_cmp_eq_u32 s{sB}, 0",
         "s_waitcnt lgkmcnt(0)",
         f"s_mov_b32 s{S_X}, s4", f"s_mov_b32 s{S_X + 1}, s5",
         f"s_cselect_b32 s{S_WQ}, s6, s16", f"s_cselect_b32 s{S_WQ + 1}, s7, s17",
         f"s_cselect_b32 s{S_WK}, s8, s18", f"s_cselect_b32 s{S_WK + 1}, s9, s19",
         f"s_cselect_b32 s{S_WV}, s10, s20", f"s_cselect_b32 s{S_WV + 1}, s11, s21")
    stamp(26)
    for i in range(2):
        emit(f"s_mov_b32 m0, s{sT1}", f"s_add_u32 s{sT1}, s{sT1}, {XP}")
        dma(vL16, S_X, f"s{sT2}")
        if i < 1:
            emit(f"s_add_u32 s{sT2}, s{sT2}, 1024")
    emit(f"s_mov_b32 s{S_WK + 2}, 0x4000", f"s_mov_b32 s{S_WK + 3}, 0x20000",
         f"s_mov_b32 s{S_WV + 2}, 0x4000", f"s_mov_b32 s{S_WV + 3}, 0x20000",
         f"s_lshr_b32 s{sT0}, s2, 4", f"s_add_u32 s{sT0}, s{sT0}, s{sWave}", f"s_and_b32 s{sT0}, s{sT0}, 7",
         f"s_lshl_b32 s{sT0}, s{sT0}, 11",
         f"s_add_u32 s{sT1}, s{sT0}, {LDS_WK}", f"s_mov_b32 m0, s{sT1}", f"s_add_u32 s{sT1}, s{sT0}, {LDS_WV}")
    dma(vL16, S_WK, f"s{sT0}")
    dma(vL16, S_WK, f"s{sT0}", imm=1024)
    emit(f"s_mov_b32 m0, s{sT1}", "s_nop 0")
    dma(vL16, S_WV, f"s{sT0}")
    dma(vL16, S_WV, f"s{sT0}", imm=1024)
    for i in range(2):
        emit(f"s_mov_b32 m0, s{sT3}", f"s_add_u32 s{sT3}, s{sT3}, {XP}")
        dma(vL16, S_X, f"s{sT4}")
        if i < 1:
            emit(f"s_add_u32 s{sT4}, s{sT4}, 1024")
    emit(f"s_cmp_eq_u32 s{sWave}, 2", "s_cbranch_scc0 L_nogw",
         f"s_mov_b32 s{S_GW}, s24", f"s_mov_b32 s{S_GW + 1}, s25", f"s_mov_b32 s{S_GW + 2}, 0x400", f"s_mov_b32 s{S_GW + 3}, 0x20000")
    dma(vL16, S_GW, "0", m0expr=str(LDS_GW))
    lab("L_nogw")
    emit(f"s_load_dword s{sW}, s[30:31], {WS_W:#x}")


def wq_fetch(n):
    for i in range(n):
        emit(f"s_mov_b32 m0, s{sK}", f"s_add_u32 s{sSl}, s{sSl}, 16384", f"s_and_b32 s{sSl}, s{sSl}, 0x7ffff")
        dma(vA, S_WQ, f"s{sSl}")
        emit(f"s_add_u32 s{sK}, s{sK}, 1024")


def nonce():
    emit(f"s_mul_i32 s{sNonce}, s{sW}, 0x9E3779B1", f"s_add_u32 s{sNonce}, s{sNonce}, 0x7F4A7C15")


def front():
    def prefill():
        cmt("wq slots 0..7")
        emit(f"s_add_u32 s{sSl}, s{sRot}, 31", f"s_and_b32 s{sSl}, s{sSl}, 31", f"s_lshl_b32 s{sSl}, s{sSl}, 14",
             f"s_add_u32 s{sSl}, s{sSl}, s{sQoff}", f"s_mov_b32 s{sK}, s{sRing}", f"s_mov_b32 s{sCnt}, 8")
        lab("L_pf")
        wq_fetch(1)
        emit(f"s_sub_u32 s{sCnt}, s{sCnt}, 1", f"s_cmp_lg_u32 s{sCnt}, 0", "s_cbranch_scc1 L_pf")

    def wo_block():
        cmt("wave 3: wo block of the WOF task: rows head_t*16 + 4i + (l>>4), cols q_t*128")
        emit(f"s_cmp_eq_u32 s{sWave}, 3", "s_cbranch_scc0 L_nowo",
             f"v_lshrrev_b32 v{vT0}, 4, v{vLane}", f"v_lshlrev_b32 v{vT0}, 10, v{vT0}",
             f"v_and_b32 v{vT1}, 15, v{vLane}", f"v_lshlrev_b32 v{vT1}, 4, v{vT1}", f"v_add_u32 v{vT0}, v{vT0}, v{vT1}",
             f"s_lshr_b32 s{sT0}, s2, 2", f"s_and_b32 s{sT0}, s{sT0}, 31", f"s_lshl_b32 s{sT0}, s{sT0}, 14",
             f"s_and_b32 s{sT1}, s2, 3", f"s_lshl_b32 s{sT1}, s{sT1}, 8", f"s_add_u32 s{sT0}, s{sT0}, s{sT1}")
        for i in range(4):
            dma(vT0, S_WO, f"s{sT0}", m0expr=str(LDS_WOS + i * 1024))
            if i < 3:
                emit(f"s_add_u32 s{sT0}, s{sT0}, 4096")
        lab("L_nowo")

    if not (OPT["late_pf"] & 1):
        prefill()
    emit(f"s_mov_b32 s{S_WS}, s30", f"s_mov_b32 s{S_WS + 1}, s31", f"s_mov_b32 s{S_WS + 2}, {WS_SIZE}", f"s_mov_b32 s{S_WS + 3}, 0x20000",
         f"s_mov_b32 s{S_OUT}, s26", f"s_mov_b32 s{S_OUT + 1}, s27", f"s_mov_b32 s{S_OUT + 2}, 0x200000", f"s_mov_b32 s{S_OUT + 3}, 0x20000",
         f"s_cmp_lt_u32 s2, 128",
         f"s_cselect_b32 s{S_WO}, s12, s22", f"s_cselect_b32 s{S_WO + 1}, s13, s23",
         f"s_mov_b32 s{S_WO + 2}, 0x80000", f"s_mov_b32 s{S_WO + 3}, 0x20000",
         f"s_mov_b32 s{sVM}, 0x0000ffff", f"s_mov_b32 s{sVM + 1}, 0x0000ffff",
         f"v_mov_b32 v{vMisc}, {LDS_MISC}")
    if not (OPT["late_pf"] & 3):
        wo_block()
    q_setup()
    emit(f"s_waitcnt vmcnt({2 if OPT['late_pf'] & 1 else 10})", "s_barrier")
    stamp(10)
    if OPT["late_pf"] & 1:
        prefill()
    if OPT["late_pf"] & 3:
        wo_block()
    emit(f"s_cmp_ge_u32 s{sWave}, 2", "s_cbranch_scc1 L_bar2")
    kv_proj()
    lab("L_kv_done")
    stamp(12)
    emit("s_waitcnt vmcnt(9)", "s_barrier", "s_branch L_qstart")
    lab("L_bar2")
    emit("s_waitcnt vmcnt(8)", "s_barrier")
    lab("L_qstart")


def kv_proj():
    cmt("K/V projection (waves 0,1)")
    XB = 112
    WA = 116
    ACC = 64
    FR = 0
    emit(f"v_and_b32 v{vT0}, 15, v{vLane}",
         f"v_lshrrev_b32 v{vT1}, 4, v{vLane}",
         f"v_lshlrev_b32 v{vT2}, 4, v{vT1}",
         f"s_mul_i32 s{sT0}, s{sHH}, {16 * XP}", f"s_add_u32 s{sT0}, s{sT0}, {LDS_XT}",
         f"v_mul_u32_u24 v{vT3}, {XP}, v{vT0}",
         f"v_add3_u32 v{XB}, v{vT3}, v{vT2}, s{sT0}",
         f"v_lshlrev_b32 v{vT1}, 8, v{vT1}", f"v_lshlrev_b32 v{vT0}, 3, v{vT0}",
         f"s_and_b32 s{sT0}, s{sWave}, 1", f"s_lshl_b32 s{sT0}, s{sT0}, 14",
         f"v_add3_u32 v{WA}, v{vT1}, v{vT0}, s{sT0}")

    def reads(s):
        f = FR + 8 * (s % 4)
        f += 32
        return [f"ds_read_b128 {ar(f, 4)}, v{XB} offset:{s * 64}",
                f"ds_read_b64_tr_b16 {ar(f + 4, 2)}, v{WA} offset:{LDS_WK + s * 1024}",
                f"ds_read_b64_tr_b16 {ar(f + 6, 2)}, v{WA} offset:{LDS_WK + s * 1024 + 128}"]

    for variant in ("K", "V"):
        if variant == "K":
            emit(f"s_cmp_eq_u32 s{sWave}, 1", "s_cbranch_scc1 L_vproj")
        else:
            lab("L_vproj")
        for s in range(4):
            emit(*reads(s))
        for s in range(16):
            f = 32 + 8 * (s % 4)
            rem = min(3, 15 - s)
            emit(f"s_waitcnt lgkmcnt({3 * rem})")
            acc = ACC + 4 * (s & 1)
            c = "0" if s < 2 else vr(acc, 4)
            if variant == "K":
                emit(f"v_mfma_f32_16x16x32_bf16 {vr(acc, 4)}, {ar(f + 4, 4)}, {ar(f, 4)}, {c}")
            else:
                emit(f"v_mfma_f32_16x16x32_bf16 {vr(acc, 4)}, {ar(f, 4)}, {ar(f + 4, 4)}, {c}")
            if s + 4 < 16:
                emit(*reads(s + 4))
        nonce()
        P = 120
        AD = 117
        if variant == "K":
            emit(f"v_and_b32 v{vT2}, 15, v{vLane}", f"v_bfe_u32 v{vT3}, v{vLane}, 4, 1",
                 f"v_lshlrev_b32 v{vT3}, 5, v{vT3}", f"v_add_u32 v{vT2}, v{vT2}, v{vT3}", f"v_lshlrev_b32 v{AD}, 4, v{vT2}",
                 f"s_lshl_b32 s{sT0}, s{sB}, 17", f"s_lshl_b32 s{sT1}, s{sRB}, 11", f"s_add_u32 s{sT0}, s{sT0}, s{sT1}",
                 f"s_lshl_b32 s{sT1}, s{sHH}, 8", f"s_add_u32 s{sT0}, s{sT0}, s{sT1}",
                 f"s_mov_b32 s{sT2}, {CSCALE:#x}")
            for i in range(4):
                emit(f"v_add_f32 v{ACC + i}, v{ACC + i}, v{ACC + 4 + i}")
            for i in range(4):
                emit(f"v_mul_f32 v{ACC + i}, s{sT2}, v{ACC + i}")
        else:
            emit(f"v_and_b32 v{vT2}, 15, v{vLane}", f"v_lshrrev_b32 v{vT3}, 5, v{vLane}",
                 f"v_lshlrev_b32 v{vT2}, 4, v{vT2}", f"v_lshlrev_b32 v{vT3}, 8, v{vT3}", f"v_add_u32 v{AD}, v{vT2}, v{vT3}",
                 f"s_lshl_b32 s{sT0}, s{sB}, 17", f"s_lshl_b32 s{sT1}, s{sRB}, 11", f"s_add_u32 s{sT0}, s{sT0}, s{sT1}",
                 f"s_lshl_b32 s{sT1}, s{sHH}, 9", f"s_add_u32 s{sT0}, s{sT0}, s{sT1}", f"s_add_u32 s{sT0}, s{sT0}, 1024")
            for i in range(4):
                emit(f"v_add_f32 v{ACC + i}, v{ACC + i}, v{ACC + 4 + i}")
        emit(f"v_cvt_pk_bf16_f32 v{P}, v{ACC}, v{ACC + 1}", f"v_cvt_pk_bf16_f32 v{P + 1}, v{ACC + 2}, v{ACC + 3}", "s_nop 1")
        if variant == "K":
            emit(f"v_permlane32_swap_b32 v{P}, v{P + 2}", f"v_permlane32_swap_b32 v{P + 1}, v{P + 3}",
                 "s_mov_b32 exec_hi, 0",
                 f"buffer_store_dwordx4 {vr(P, 4)}, v{AD}, {sr(S_WS, 4)}, s{sT0} offen sc1",
                 "s_mov_b64 exec, -1")
            emit(f"v_mul_f32 v{vT0}, v{ACC}, v{ACC}")
            for i in range(1, 4):
                emit(f"v_fmac_f32 v{vT0}, v{ACC + i}, v{ACC + i}")
            red = "v_add_f32"
        else:
            emit(f"v_permlane16_swap_b32 v{P}, v{P + 2}", f"v_permlane16_swap_b32 v{P + 1}, v{P + 3}",
                 f"s_mov_b64 exec, {sr(sVM, 2)}",
                 f"buffer_store_dwordx4 {vr(P, 4)}, v{AD}, {sr(S_WS, 4)}, s{sT0} offen sc1",
                 "s_mov_b64 exec, -1")
            emit(f"v_max_f32_e64 v{vT0}, |v{ACC}|, |v{ACC + 1}|", f"v_max3_f32 v{vT0}, |v{ACC + 2}|, |v{ACC + 3}|, v{vT0}")
            red = "v_max_f32"
        emit(f"v_mov_b32 v{vT1}, v{vT0}", "s_nop 1",
             f"v_permlane32_swap_b32 v{vT0}, v{vT1}", "s_nop 1",
             f"{red} v{vT0}, v{vT0}, v{vT1}", "s_nop 0", f"v_mov_b32 v{vT1}, v{vT0}", "s_nop 1",
             f"v_permlane16_swap_b32 v{vT0}, v{vT1}", "s_nop 1",
             f"{red} v{vT0}, v{vT0}, v{vT1}")
        for r in (8, 4, 2, 1):
            emit("s_nop 1", f"v_max_f32_dpp v{vT0}, v{vT0}, v{vT0} row_ror:{r} row_mask:0xf bank_mask:0xf")
        emit(f"s_lshl_b32 s{sT0}, s{sRB}, 1", f"s_add_u32 s{sT0}, s{sT0}, s{sHH}", f"s_lshl_b32 s{sT0}, s{sT0}, 4",
             f"s_lshl_b32 s{sT1}, s{sB}, 11", f"s_add_u32 s{sT0}, s{sT0}, s{sT1}",
             f"s_add_u32 s{sT0}, s{sT0}, {WS_KVF + (0 if variant == 'K' else 8)}",
             f"v_mov_b32 v{P + 5}, v{vT0}", f"v_mov_b32 v{P + 4}, s{sNonce}", f"s_mov_b32 s{sFl}, s{sT0}")
        stamp(11)
        if variant == "K":
            emit("s_branch L_kv_done")


def wof_task():
    cmt("WOF task (wave 3): transpose 4 wo fragments, publish")
    emit(f"s_cmp_eq_u32 s{sWave}, 3", "s_cbranch_scc0 L_wof_done")
    emit(f"v_lshrrev_b32 v{vT0}, 5, v{vLane}", f"v_lshlrev_b32 v{vT0}, 2, v{vT0}",
         f"v_bfe_u32 v{vT1}, v{vLane}, 2, 2", f"v_add_u32 v{vT0}, v{vT0}, v{vT1}", f"v_lshlrev_b32 v{vT0}, 8, v{vT0}",
         f"v_bfe_u32 v{vT1}, v{vLane}, 4, 1", f"v_lshlrev_b32 v{vT1}, 5, v{vT1}",
         f"v_and_b32 v{vT2}, 3, v{vLane}", f"v_lshlrev_b32 v{vT2}, 3, v{vT2}",
         f"v_add3_u32 v{vT0}, v{vT0}, v{vT1}, v{vT2}", f"v_add_u32 v{vT0}, {LDS_WOS}, v{vT0}")
    F = 112
    for f in range(4):
        emit(f"ds_read_b64_tr_b16 {vr(F + 4 * f, 2)}, v{vT0} offset:{f * 64}",
             f"ds_read_b64_tr_b16 {vr(F + 4 * f + 2, 2)}, v{vT0} offset:{f * 64 + 2048}")
    emit(f"s_lshr_b32 s{sT0}, s2, 2", f"s_lshl_b32 s{sT0}, s{sT0}, 14", f"s_and_b32 s{sT1}, s2, 3", f"s_lshl_b32 s{sT1}, s{sT1}, 12",
         f"s_add_u32 s{sT0}, s{sT0}, s{sT1}", f"s_add_u32 s{sT0}, s{sT0}, {WS_WOF}",
         "s_waitcnt lgkmcnt(0)")
    for f in range(4):
        o = f" offset:{f * 1024}" if f else ""
        emit(f"buffer_store_dwordx4 {vr(F + 4 * f, 4)}, v{vL16}, {sr(S_WS, 4)}, s{sT0} offen{o} sc1")
    lab("L_wof_done")


def wof_flag():
    n = uid()
    emit(f"s_cmp_eq_u32 s{sWave}, 3", f"s_cbranch_scc0 L_wf{n}",
         f"s_lshl_b32 s{sT0}, s2, 2", f"s_add_u32 s{sT0}, s{sT0}, {WS_WOFF}",
         f"v_mov_b32 v{vT0}, s{sNonce}", f"v_mov_b32 v{vT1}, 0", "s_mov_b64 exec, 1",
         f"buffer_store_dword v{vT0}, v{vT1}, {sr(S_WS, 4)}, s{sT0} offen sc1", "s_mov_b64 exec, -1")
    lab(f"L_wf{n}")


PF = 118


def poll_issue(areg):
    emit(f"s_lshl_b32 s{sT0}, s{sB}, 11", f"s_add_u32 s{sT0}, s{sT0}, {WS_KVF}",
         f"buffer_load_dwordx4 {ar(areg, 4)}, v{vL16}, {sr(S_WS, 4)}, s{sT0} offen sc1",
         f"buffer_load_dwordx4 {ar(areg + 4, 4)}, v{vL16}, {sr(S_WS, 4)}, s{sT0} offen offset:1024 sc1")


def poll_check(areg, ok):
    F = PF
    for i in range(8):
        emit(f"v_accvgpr_read_b32 v{F + i}, a{areg + i}")
    emit(f"v_cmp_ne_u32_e64 {sr(sMA, 2)}, s{sNonce}, v{F}",
         f"v_cmp_ne_u32_e64 {sr(sMB, 2)}, s{sNonce}, v{F + 2}",
         f"v_cmp_ne_u32_e64 {sr(sMC, 2)}, s{sNonce}, v{F + 4}",
         f"v_cmp_ne_u32_e64 {sr(sMD, 2)}, s{sNonce}, v{F + 6}",
         "s_nop 3",
         f"s_or_b64 {sr(sMA, 2)}, {sr(sMA, 2)}, {sr(sMB, 2)}",
         f"s_or_b64 {sr(sMC, 2)}, {sr(sMC, 2)}, {sr(sMD, 2)}",
         f"s_or_b64 {sr(sMA, 2)}, {sr(sMA, 2)}, {sr(sMC, 2)}",
         f"s_cbranch_scc0 {ok}")


def chunk0_loads():
    F = PF
    emit(f"v_mov_b32 v{vT0}, 0", f"ds_write_b32 v{vMisc}, v{vT0} offset:{M_KMAX}", f"ds_write_b32 v{vMisc}, v{vT0} offset:{M_VMAX}",
         f"s_lshl_b32 s{sT0}, s{sB}, 17", f"s_mov_b32 s{sT1}, 0")
    for g in range(4):
        emit(f"s_mov_b32 m0, s{sT1}", f"s_add_u32 s{sT1}, s{sT1}, 4096")
        for i in range(4):
            dma(vL16, S_WS, f"s{sT0}", imm=1024 * i, sc1=OPT['ld_sc1'])
        if g < 3:
            emit(f"s_add_u32 s{sT0}, s{sT0}, 4096")
    emit(f"v_max_u32 v{F + 1}, v{F + 1}, v{F + 5}", f"v_max_u32 v{F + 3}, v{F + 3}, v{F + 7}",
         f"ds_max_u32 v{vMisc}, v{F + 1} offset:{M_KMAX}", f"ds_max_u32 v{vMisc}, v{F + 3} offset:{M_VMAX}")


def poll_kv():
    cmt("wave 7, late path: poll the K/V flags, fetch key tiles 0..7")
    emit(f"s_cmp_eq_u32 s{sWave}, 7", "s_cbranch_scc0 L_pollkv_done",
         f"s_mov_b32 s{sCnt}, {OPT['spin_limit']}")
    lab("L_pollkv")
    emit("s_waitcnt vmcnt(0)")
    poll_check(24, "L_pollkv_ok")
    poll_issue(24)
    emit(f"s_sub_u32 s{sCnt}, s{sCnt}, 1", f"s_cmp_lg_u32 s{sCnt}, 0", "s_cbranch_scc1 L_pollkv")
    spin_fail(1)
    lab("L_pollkv_ok")
    stamp(13)
    chunk0_loads()
    lab("L_pollkv_done")


def barrier_a():
    emit(f"s_cmp_eq_u32 s{sWave}, 7", "s_cbranch_scc0 L_bara", "s_waitcnt vmcnt(0)")
    lab("L_bara")
    emit("s_waitcnt lgkmcnt(0)", "s_barrier")


GACC = 96
vXG = 116


def q_setup():
    cmt("Q projection: addresses, accumulators; main-loop register init")
    ACC = S0
    emit(f"v_and_b32 v{vT0}, 31, v{vLane}", f"v_lshrrev_b32 v{vT1}, 5, v{vLane}",
         f"v_mul_u32_u24 v{vT0}, {XP}, v{vT0}", f"v_lshlrev_b32 v{vT2}, 4, v{vT1}",
         f"v_add_u32 v{vXB}, v{vT0}, v{vT2}", f"v_add_u32 v{vXB}, {LDS_XT}, v{vXB}",
         f"s_lshl_b32 s{sT0}, s{sWave}, 7", f"s_add_u32 s{sT0}, s{sT0}, {LDS_GW}",
         f"v_add_u32 v{vGA}, s{sT0}, v{vT2}",
         f"v_bfe_u32 v{vT0}, v{vLane}, 2, 2",
         f"v_lshlrev_b32 v{vT2}, 3, v{vT1}", f"v_add_u32 v{vT2}, v{vT2}, v{vT0}", f"v_lshlrev_b32 v{vT2}, 6, v{vT2}",
         f"v_bfe_u32 v{vT1}, v{vLane}, 4, 1", f"v_lshlrev_b32 v{vT1}, 5, v{vT1}",
         f"v_and_b32 v{vT0}, 3, v{vLane}", f"v_lshlrev_b32 v{vT0}, 3, v{vT0}",
         f"v_add3_u32 v{vT2}, v{vT2}, v{vT0}, v{vT1}",
         f"v_add_u32 v{vWA}, s{sRing}, v{vT2}")
    for i in range(16):
        emit(f"v_mov_b32 v{ACC + i}, 0")
    for i in range(16):
        emit(f"v_accvgpr_write_b32 a{i}, 0")
    reg_init()
    emit(f"s_cmp_lt_u32 s{sWave}, 2", f"s_cselect_b32 s{sFB}, 0, 99")


def q_proj():
    cmt("Q projection (per-wave ring)")
    ACC = S0
    QS = 32
    GF = 64

    def reads(s):
        f = QS + 8 * (s & 3)
        return [f"ds_read_b64_tr_b16 {ar(f, 2)}, v{vWA} offset:{(s & 7) * 1024}",
                f"ds_read_b64_tr_b16 {ar(f + 2, 2)}, v{vWA} offset:{(s & 7) * 1024 + 256}",
                f"ds_read_b128 {ar(f + 4, 4)}, v{vXG} offset:{(s & 3) * 32}"]

    def group_addr():
        return [f"v_add_u32 v{vXG}, s{sK}, v{vXB}", f"s_add_u32 s{sK}, s{sK}, 128", f"s_and_b32 s{sK}, s{sK}, 1023"]

    def step(s, last, extra=0):
        f = QS + 8 * (s & 3)
        rd = not (last and s >= 6)
        if last:
            w = {0: 5, 1: 4, 2: 3, 3: 2, 4: 1, 5: 0}.get(s)
            if w is not None:
                w += extra
        else:
            w = 5
        lg = 3 if (rd or (last and s == 6)) else 0
        if last and s == 7:
            lg = 0
        emit((f"s_waitcnt vmcnt({w}) " if w is not None else "s_waitcnt ") + f"lgkmcnt({lg})")
        if s == 4 and not last:
            n = uid()
            emit(f"s_cmp_eq_u32 s{sCnt}, s{sFB}", f"s_cbranch_scc0 L_nf{n}", "s_waitcnt vmcnt(4)",
                 f"v_mov_b32 v{vT0}, 0", "s_mov_b64 exec, 1",
                 f"buffer_store_dwordx2 {vr(124, 2)}, v{vT0}, {sr(S_WS, 4)}, s{sFl} offen sc1", "s_mov_b64 exec, -1")
            stamp(27)
            lab(f"L_nf{n}")
        if s == OPT["poll_step"] and not last:
            n = uid()
            emit(f"s_cmp_eq_u32 s{sCnt}, s{sI2}", f"s_cbranch_scc0 L_ep{n}")
            poll_issue(16)
            lab(f"L_ep{n}")
        if s % 4 == 0:
            emit(f"s_cmp_eq_u32 s{sS}, s{sWave}", "s_cselect_b64 vcc, -1, 0",
                 f"s_add_u32 s{sS}, s{sS}, 1", f"s_and_b32 s{sS}, s{sS}, 7")
        if s % 4 == 2 and rd:
            emit(*group_addr())
        if last and s == 5 and not extra:
            n = uid()
            emit(f"s_cmp_eq_u32 s{sWave}, 7", f"s_cbranch_scc0 L_np{n}")
            poll_issue(24)
            lab(f"L_np{n}")
        if rd and not (OPT["q_exp"] & 1):
            emit(*reads(s + 2))
        acc = vr(ACC, 16) if s % 2 == 0 else ar(0, 16)
        if not (OPT["q_exp"] & 4):
            emit(f"v_mfma_f32_32x32x16_bf16 {acc}, {ar(f, 4)}, {ar(f + 4, 4)}, {acc}")
        if not last:
            emit(f"s_add_u32 m0, s{sRing}, {s * 1024}", f"s_add_u32 s{sSl}, s{sSl}, 16384", f"s_and_b32 s{sSl}, s{sSl}, 0x7ffff")
            if not (OPT["q_exp"] & 2):
                dma(vA, S_WQ, f"s{sSl}")
        n = uid()
        emit(f"s_cbranch_vccz L_ng{n}",
             f"v_mfma_f32_32x32x16_bf16 {ar(GACC, 16)}, {ar(GF + 4 * (s & 3), 4)}, {ar(f + 4, 4)}, {'0' if (s & 3) == 0 else ar(GACC, 16)}")
        lab(f"L_ng{n}")

    emit(f"s_lshl_b32 s{sK}, s{sRot}, 5", f"s_lshr_b32 s{sS}, s{sRot}, 2", f"s_mov_b32 s{sCnt}, 0",
         f"s_cmp_eq_u32 s{sWave}, 7", f"s_cselect_b32 s{sI2}, {OPT['poll_blk']}, 99")
    emit(*group_addr())
    for i in range(4):
        emit(f"ds_read_b128 {ar(GF + 4 * i, 4)}, v{vGA} offset:{32 * i}")
    emit("s_waitcnt vmcnt(6) lgkmcnt(0)")
    nonce()
    if OPT["xcd_local"]:
        emit(f"s_cmp_eq_u32 s{sWave}, 3", "s_cbranch_scc0 L_noxid",
             f"s_getreg_b32 s{sT0}, hwreg(HW_REG_XCC_ID)", f"s_and_b32 s{sT0}, s{sT0}, 15", f"s_or_b32 s{sT0}, s{sT0}, 0x100",
             f"s_xor_b32 s{sT0}, s{sT0}, s{sNonce}", f"v_mov_b32 v{vT0}, s{sT0}", f"v_mov_b32 v{vT1}, 0",
             f"s_lshl_b32 s{sT0}, s2, 2", f"s_add_u32 s{sT0}, s{sT0}, {WS_XID}", "s_mov_b64 exec, 1",
             f"buffer_store_dword v{vT0}, v{vT1}, {sr(S_WS, 4)}, s{sT0} offen sc1", "s_mov_b64 exec, -1")
        lab("L_noxid")
    stamp(24)
    emit(*reads(0))
    emit(*reads(1))
    lab("L_qloop")
    for s in range(8):
        step(s, False)
    emit(f"s_add_u32 s{sCnt}, s{sCnt}, 1", f"s_cmp_lt_u32 s{sCnt}, 3", "s_cbranch_scc1 L_qloop")
    emit(f"s_cmp_eq_u32 s{sWave}, 7", "s_cbranch_scc0 L_qlast", f"s_waitcnt vmcnt({(8 - OPT['poll_step']) + 8 * (2 - OPT['poll_blk'])})")
    poll_check(16, "L_qlast7")
    lab("L_qlast")
    for s in range(8):
        step(s, True)
    stamp(25)
    poll_kv()
    emit("s_branch L_qdone")
    lab("L_qlast7")
    stamp(13)
    chunk0_loads()
    for s in range(8):
        step(s, True, extra=16)
    stamp(25)
    lab("L_qdone")


def q_finish():
    cmt("Q frags + norms, gate partials")
    ACC = S0
    emit(f"v_and_b32 v{vT0}, 31, v{vLane}", f"v_lshlrev_b32 v{vT0}, 5, v{vT0}", f"s_lshl_b32 s{sT0}, s{sWave}, 2",
         f"s_add_u32 s{sT0}, s{sT0}, {LDS_GP}",
         f"v_add_u32 v{vT0}, s{sT0}, v{vT0}",
         "s_nop 7", f"v_accvgpr_read_b32 v{vT1}, a{GACC}")
    emit(f"ds_write_b32 v{vT0}, v{vT1}")
    for i in range(16):
        emit(f"v_accvgpr_read_b32 v{112 + i}, a{i}")
    for i in range(16):
        emit(f"v_add_f32 v{ACC + i}, v{ACC + i}, v{112 + i}")
    for i in range(4):
        emit(f"v_cvt_pk_bf16_f32 v{Qa + i}, v{ACC + 2 * i}, v{ACC + 2 * i + 1}")
    for i in range(4):
        emit(f"v_cvt_pk_bf16_f32 v{Qb + i}, v{ACC + 8 + 2 * i}, v{ACC + 8 + 2 * i + 1}")
    emit(f"v_mul_f32 v{vNa}, v{ACC}, v{ACC}", f"v_mul_f32 v{vNb}, v{ACC + 8}, v{ACC + 8}")
    for i in range(1, 8):
        emit(f"v_fmac_f32 v{vNa}, v{ACC + i}, v{ACC + i}", f"v_fmac_f32 v{vNb}, v{ACC + 8 + i}, v{ACC + 8 + i}")
    emit(f"v_mov_b32 v{vT0}, v{vNa}", f"v_mov_b32 v{vT1}, v{vNb}", "s_nop 1",
         f"v_permlane32_swap_b32 v{vNa}, v{vT0}", f"v_permlane32_swap_b32 v{vNb}, v{vT1}", "s_nop 1",
         f"v_add_f32 v{vNa}, v{vNa}, v{vT0}", f"v_add_f32 v{vNb}, v{vNb}, v{vT1}",
         f"v_max_f32 v{vNa}, v{vNa}, v{vNb}")


def reg_init():
    cmt("main-loop register init")
    for i in range(32):
        emit(f"v_mov_b32 v{Oa + i}, 0")
    for i in range(8):
        emit(f"v_mov_b32 v{S1 + 8 + i}, 0")
    emit(f"v_and_b32 v{vT0}, {27 if not OPT['one_row'] else 31}, v{vLane}",
         f"v_cmp_eq_u32 vcc, 16, v{vT0}", f"v_mov_b32 v{vT1}, 0x3f803f80", "s_nop 0",
         f"v_cndmask_b32 v{V0}, 0, v{vT1}, vcc")
    for i in range(1, 16):
        emit(f"v_mov_b32 v{V0 + i}, v{V0}")
    emit(f"v_mov_b32 v{IDX}, 0xdddddddd",
         f"v_mov_b32 v{AK}, v{vL16}",
         f"v_lshrrev_b32 v{vT0}, 5, v{vLane}", f"v_lshlrev_b32 v{vT0}, 8, v{vT0}",
         f"v_and_b32 v{vT1}, 15, v{vLane}", f"v_lshlrev_b32 v{vT1}, 4, v{vT1}", f"v_add_u32 v{AV}, v{vT0}, v{vT1}",
         "s_nop 0")


def kv_rest_loads():
    cmt("first key tile fragments; remaining K/V tiles -> LDS (waves 0..3: linear range 16384 + wave*28672)")
    emit(f"ds_read_b64 {vr(120, 2)}, v{vMisc}",
         f"ds_read_b128 {vr(KF, 4)}, v{AK}",
         f"s_mov_b64 exec, {sr(sVM, 2)}",
         f"ds_read_b128 {vr(V0, 4)}, v{AV} offset:1024", f"ds_read_b128 {vr(V1, 4)}, v{AV} offset:1536",
         "s_mov_b64 exec, -1")
    emit(f"s_cmp_ge_u32 s{sWave}, 4", "s_cbranch_scc1 L_rest_done",
         f"s_lshl_b32 s{sT0}, s{sB}, 17",
         f"s_mul_i32 s{sT1}, s{sWave}, 28672", f"s_add_u32 s{sT1}, s{sT1}, 16384", f"s_add_u32 s{sT2}, s{sT0}, s{sT1}",
         f"s_mov_b32 s{sCnt}, 7")
    lab("L_rest")
    emit(f"s_mov_b32 m0, s{sT1}", f"s_add_u32 s{sT1}, s{sT1}, 4096")
    for i in range(4):
        dma(vL16, S_WS, f"s{sT2}", imm=1024 * i, sc1=OPT['ld_sc1'])
    emit(f"s_add_u32 s{sT2}, s{sT2}, 4096", f"s_sub_u32 s{sCnt}, s{sCnt}, 1", f"s_cmp_lg_u32 s{sCnt}, 0", "s_cbranch_scc1 L_rest")
    lab("L_rest_done")


def start_attention():
    cmt("path decision, first key tile")
    emit("s_waitcnt lgkmcnt(0)",
         f"v_mfma_f32_32x32x16_bf16 {vr(S0, 16)}, {vr(KF, 4)}, {vr(Qa, 4)}, 0")
    t2 = struct.unpack("<I", struct.pack("<f", OPT["T2"]))[0]
    emit(f"v_mul_f32 v{vT0}, v{vNa}, v120", f"s_mov_b32 s{sT0}, {t2:#x}",
         f"v_cmp_nle_f32_e64 {sr(sMA, 2)}, v{vT0}, s{sT0}",
         f"s_mov_b32 s{sT1}, 0x53800000",
         f"v_cmp_nle_f32_e64 {sr(sMB, 2)}, v121, s{sT1}",
         f"s_mov_b32 s{sT1}, 0x2b800000",
         f"v_cmp_nge_f32_e64 {sr(sMC, 2)}, v121, s{sT1}",
         "s_nop 3",
         f"s_or_b64 {sr(sMA, 2)}, {sr(sMA, 2)}, {sr(sMB, 2)}",
         f"s_or_b64 {sr(sMA, 2)}, {sr(sMA, 2)}, {sr(sMC, 2)}")
    if OPT["force_slow"]:
        emit(f"s_mov_b64 {sr(sMA, 2)}, -1")
    emit(f"s_cmp_ge_u32 s{sWave}, 4", "s_cbranch_scc1 L_prio_g2", f"s_setprio {OPT['prio_g1']}",
         f"s_mov_b32 s{sI1}, 99", "s_branch L_prio_done")
    lab("L_prio_g2")
    emit(f"s_setprio {OPT['prio_g2']}", f"s_mov_b32 s{sI1}, {OPT['g2_drop']}")
    lab("L_prio_done")
    emit(f"s_cmp_lg_u64 {sr(sMA, 2)}, 0", "s_cbranch_scc1 L_slow")


def gate_factor():
    emit(f"v_and_b32 v{vT0}, 31, v{vLane}", f"v_lshlrev_b32 v{vT0}, 5, v{vT0}", f"v_add_u32 v{vT0}, {LDS_GP}, v{vT0}",
         f"ds_read_b128 {vr(112, 4)}, v{vT0}", f"ds_read_b128 {vr(116, 4)}, v{vT0} offset:16",
         f"s_mov_b32 s{sT0}, {NLOG2E:#x}", f"s_xor_b32 s{sT1}, s{sT0}, 0x80000000", f"s_cmp_eq_u32 s{sB}, 0",
         f"s_cselect_b32 s{sT0}, s{sT0}, s{sT1}",
         "s_waitcnt lgkmcnt(0)",
         f"v_add_f32 v112, v112, v113", f"v_add_f32 v114, v114, v115", f"v_add_f32 v116, v116, v117", f"v_add_f32 v118, v118, v119",
         f"v_add_f32 v112, v112, v114", f"v_add_f32 v116, v116, v118", f"v_add_f32 v112, v112, v116",
         f"v_mul_f32 v112, s{sT0}, v112", f"v_exp_f32 v112, v112", "s_nop 0", f"v_add_f32 v112, 1.0, v112",
         f"v_rcp_f32 v{vGate}, v112")


def wo_flag_load():
    emit(f"v_bfe_u32 v{vT0}, v{vLane}, 3, 2", f"v_xor_b32 v{vT0}, s{sM}, v{vT0}",
         f"v_and_b32 v{vT1}, 1, v{vT0}", f"v_lshlrev_b32 v{vT1}, 7, v{vT1}",
         f"v_lshrrev_b32 v{vT0}, 1, v{vT0}", f"v_lshlrev_b32 v{vT0}, 6, v{vT0}",
         f"v_and_b32 v{vT2}, 7, v{vLane}", f"v_lshlrev_b32 v{vT2}, 2, v{vT2}",
         f"v_add3_u32 v{vT0}, v{vT0}, v{vT1}, v{vT2}",
         f"s_lshr_b32 s{sT0}, s{sWave}, 2", f"s_lshl_b32 s{sT0}, s{sT0}, 5", f"s_add_u32 s{sT0}, s{sT0}, s{sM}",
         f"s_lshl_b32 s{sT0}, s{sT0}, 2", f"s_add_u32 s{sT0}, s{sT0}, {WS_WOFF}",
         f"v_lshlrev_b32 v{vT0}, 2, v{vT0}",
         f"buffer_load_dword v{vE0 + 12}, v{vT0}, {sr(S_WS, 4)}, s{sT0} offen sc1")


def xid_load():
    if not OPT["xcd_local"]:
        return
    emit(f"v_and_b32 v{vT1}, 3, v{vLane}", f"v_lshlrev_b32 v{vT1}, 5, v{vT1}",
         f"s_and_b32 s{sT1}, s2, 0xe7", f"s_lshl_b32 s{sT1}, s{sT1}, 2", f"s_add_u32 s{sT1}, s{sT1}, {WS_XID}",
         f"buffer_load_dword v{vE0 + 13}, v{vT1}, {sr(S_WS, 4)}, s{sT1} offen sc1")


def xid_check():
    if not OPT["xcd_local"]:
        emit(f"s_mov_b32 s{sLoc}, 0")
        return
    emit(f"s_getreg_b32 s{sT0}, hwreg(HW_REG_XCC_ID)", f"s_and_b32 s{sT0}, s{sT0}, 15", f"s_or_b32 s{sT0}, s{sT0}, 0x100",
         f"s_xor_b32 s{sT0}, s{sT0}, s{sNonce}",
         f"v_cmp_ne_u32_e64 {sr(sMA, 2)}, s{sT0}, v{vE0 + 13}", "s_nop 3",
         f"s_cmp_eq_u64 {sr(sMA, 2)}, 0", f"s_cselect_b32 s{sLoc}, 1, 0")


def wo_prefetch(tag):
    emit(f"s_mov_b32 s{sCnt}, {OPT['spin_limit']}")
    lab(f"L_wochk_{tag}")
    emit("s_waitcnt vmcnt(0)",
         f"v_cmp_ne_u32_e64 {sr(sMA, 2)}, s{sNonce}, v{vE0 + 12}", "s_nop 3",
         f"s_cmp_eq_u64 {sr(sMA, 2)}, 0", f"s_cbranch_scc1 L_wook_{tag}", "s_sleep 1")
    wo_flag_load()
    emit(f"s_sub_u32 s{sCnt}, s{sCnt}, 1", f"s_cmp_lg_u32 s{sCnt}, 0", f"s_cbranch_scc1 L_wochk_{tag}")
    spin_fail(2)
    lab(f"L_wook_{tag}")
    emit(f"s_and_b32 s{sT1}, s{sWave}, 3", f"s_lshl_b32 s{sT2}, s{sM}, 2", f"s_add_u32 s{sT1}, s{sT1}, s{sT2}",
         f"s_lshl_b32 s{sT1}, s{sT1}, 10",
         f"s_lshr_b32 s{sT2}, s{sWave}, 2", f"s_lshl_b32 s{sT2}, s{sT2}, 17",
         f"s_add_u32 s{sT1}, s{sT1}, s{sT2}", f"s_add_u32 s{sT1}, s{sT1}, {WS_WOF}")
    for j in range(4):
        emit(f"s_xor_b32 s{sT2}, s{sM}, {j}", f"s_and_b32 s{sT3}, s{sT2}, 1", f"s_lshl_b32 s{sT3}, s{sT3}, 19",
             f"s_lshr_b32 s{sT2}, s{sT2}, 1", f"s_lshl_b32 s{sT2}, s{sT2}, 18",
             f"s_add_u32 s{sT0}, s{sT1}, s{sT2}", f"s_add_u32 s{sT0}, s{sT0}, s{sT3}")
        for i in range(8):
            emit(f"buffer_load_dwordx4 {ar(4 * (8 * j + i), 4)}, v{vL16}, {sr(S_WS, 4)}, s{sT0} offen" + (" sc1" if OPT['ld_sc1'] else ""))
            if i < 7:
                emit(f"s_add_u32 s{sT0}, s{sT0}, 16384")


TB = 2048
POS = (2, 5, 11)


def phase(X, Y, QY, OX, OY, sh0, sh1, sh2, VA0, VA1, extra=None):
    for i in range(16):
        if i == POS[0]:
            emit(f"v_smfmac_f32_32x32x32_bf16 {vr(OY, 16)}, {vr(VA1, 4)}, {vr(Y + 8, 8)}, v{IDX}", *sh0)
        if i == POS[1]:
            emit(f"v_mfma_f32_32x32x16_bf16 {vr(Y, 16)}, {vr(KF, 4)}, {vr(QY, 4)}, 0", *sh1)
        if i == POS[2]:
            emit(f"v_smfmac_f32_32x32x32_bf16 {vr(OX, 16)}, {vr(VA0, 4)}, {vr(X, 8)}, v{IDX}", *sh2)
        if extra and i in extra:
            emit(*extra[i])
        emit(f"v_exp_f32 v{X + i}, v{X + i}")


def main_loop():
    cmt("attention, fast path")
    emit(f"s_mov_b32 s{sIter}, 0")
    emit(".p2align 6")
    lab("L_main")
    stamp_iter()
    emit(f"s_cmp_eq_u32 s{sIter}, 1", "s_cbranch_scc1 L_blk_1", f"s_cmp_eq_u32 s{sIter}, 2", "s_cbranch_scc1 L_blk_2")
    lab("L_main_go")
    for t in range(8):
        if t == 6:
            emit(f"s_cmp_eq_u32 s{sIter}, 0", "s_cbranch_scc1 L_blk_bar")
            lab("L_main_t6")
        if t == OPT["g2_drop_tile"]:
            emit(f"s_cmp_eq_u32 s{sIter}, s{sI1}", "s_cbranch_scc1 L_blk_prio")
            lab("L_main_tp")
        c0, c1 = (V0, V1) if t % 2 == 0 else (V0b, V1b)
        n0, n1 = (V0b, V1b) if t % 2 == 0 else (V0, V1)
        both = [f"s_mov_b64 exec, {sr(sVM, 2)}",
                f"ds_read_b128 {vr(n0, 4)}, v{AV} offset:{(t + 1) * TB + 1024}",
                f"ds_read_b128 {vr(n1, 4)}, v{AV} offset:{(t + 1) * TB + 1536}",
                "s_mov_b64 exec, -1"]
        sh1 = [f"ds_read_b128 {vr(KF, 4)}, v{AK} offset:{(t + 1) * TB}"]
        phase(S0, S1, Qb, Oa, Ob, both, sh1, [], c0, n1)
        phase(S1, S0, Qa, Ob, Oa, ["s_waitcnt lgkmcnt(0)"], [], [], c0, c1)
    emit(f"v_add_u32 v{AK}, 0x4000, v{AK}", f"v_add_u32 v{AV}, 0x4000, v{AV}",
         f"s_add_u32 s{sIter}, s{sIter}, 1", f"s_cmp_lt_u32 s{sIter}, 8", "s_cbranch_scc1 L_main")
    emit("s_nop 1", f"v_smfmac_f32_32x32x32_bf16 {vr(Ob, 16)}, {vr(V1b, 4)}, {vr(S1 + 8, 8)}, v{IDX}")
    lab("L_epi")


def main_blocks():
    lab("L_blk_1")
    xid_load()
    wo_flag_load()
    emit("s_branch L_main_go")
    lab("L_blk_2")
    gate_factor()
    emit("s_waitcnt vmcnt(0)")
    xid_check()
    wo_prefetch("f")
    emit("s_branch L_main_go")
    lab("L_blk_bar")
    emit("s_waitcnt vmcnt(0)", "s_barrier")
    wof_flag()
    emit("s_branch L_main_t6")
    lab("L_blk_prio")
    emit("s_setprio 0", "s_branch L_main_tp")


def slow_path():
    cmt("attention, true-max path (online softmax)")
    lab("L_slow")
    emit(f"v_mov_b32 v{vMa}, 0xff800000", f"v_mov_b32 v{vMb}, 0xff800000", f"s_mov_b32 s{sIter}, 0")
    lab("L_slow_loop")
    emit(f"s_cmp_eq_u32 s{sIter}, 6", "s_cbranch_scc0 L_slow_nb", "s_waitcnt vmcnt(0)", "s_barrier")
    wof_flag()
    lab("L_slow_nb")
    emit(f"ds_read_b128 {vr(KF, 4)}, v{AK}",
         f"s_mov_b64 exec, {sr(sVM, 2)}",
         f"ds_read_b128 {vr(V0, 4)}, v{AV} offset:1024", f"ds_read_b128 {vr(V1, 4)}, v{AV} offset:1536",
         "s_mov_b64 exec, -1", "s_waitcnt lgkmcnt(0)")
    for (Q, O, M) in ((Qa, Oa, vMa), (Qb, Ob, vMb)):
        emit(f"v_mfma_f32_32x32x16_bf16 {vr(S0, 16)}, {vr(KF, 4)}, {vr(Q, 4)}, 0", "s_nop 15",
             f"v_max3_f32 v{vT0}, v{S0}, v{S0 + 1}, v{S0 + 2}")
        for i in range(3, 15, 2):
            emit(f"v_max3_f32 v{vT0}, v{vT0}, v{S0 + i}, v{S0 + i + 1}")
        emit(f"v_max_f32 v{vT0}, v{vT0}, v{S0 + 15}", "s_nop 0", f"v_mov_b32 v{vT1}, v{vT0}", "s_nop 1",
             f"v_permlane32_swap_b32 v{vT0}, v{vT1}", "s_nop 1",
             f"v_max3_f32 v{vT0}, v{vT0}, v{vT1}, v{M}",
             f"v_sub_f32 v{vT1}, v{M}, v{vT0}", f"v_exp_f32 v{vT1}, v{vT1}", f"v_mov_b32 v{M}, v{vT0}")
        for i in range(9):
            emit(f"v_mul_f32 v{O + i}, v{vT1}, v{O + i}")
        for i in range(16):
            emit(f"v_sub_f32 v{S0 + i}, v{S0 + i}, v{vT0}")
        for i in range(16):
            emit(f"v_exp_f32 v{S0 + i}, v{S0 + i}")
        emit("s_nop 1",
             f"v_smfmac_f32_32x32x32_bf16 {vr(O, 16)}, {vr(V0, 4)}, {vr(S0, 8)}, v{IDX}",
             f"v_smfmac_f32_32x32x32_bf16 {vr(O, 16)}, {vr(V1, 4)}, {vr(S0 + 8, 8)}, v{IDX}")
    emit(f"v_add_u32 v{AK}, {TB}, v{AK}", f"v_add_u32 v{AV}, {TB}, v{AV}",
         f"s_add_u32 s{sIter}, s{sIter}, 1", f"s_cmp_lt_u32 s{sIter}, 64", "s_cbranch_scc1 L_slow_loop")
    gate_factor()
    emit(f"s_mov_b32 s{sLoc}, 0")
    wo_flag_load()
    wo_prefetch("s")
    emit("s_branch L_epi")


def tail():
    cmt("normalise, gate, publish O fragments (global for the partners, LDS for ourselves)")
    emit("s_nop 15")
    P = 112
    for k, O in enumerate((Oa, Ob)):
        if OPT["one_row"]:
            emit(f"v_mov_b32 v{vT1}, v{O + 8}", "s_nop 1", f"v_permlane32_swap_b32 v{O + 8}, v{vT1}", "s_nop 1")
        emit(f"v_rcp_f32 v{vT0}, v{O + 8}", "s_nop 0", f"v_mul_f32 v{vT0}, v{vT0}, v{vGate}")
        for i in range(8):
            emit(f"v_mul_f32 v{O + i}, v{vT0}, v{O + i}")
        for i in range(4):
            emit(f"v_cvt_pk_bf16_f32 v{P + 4 * k + i}, v{O + 2 * i}, v{O + 2 * i + 1}")
    emit(f"s_lshl_b32 s{sT1}, s{sB}, 15", f"s_lshl_b32 s{sT2}, s{sHH}, 14", f"s_add_u32 s{sT1}, s{sT1}, s{sT2}",
         f"s_lshl_b32 s{sT2}, s{sWave}, 11", f"s_add_u32 s{sT1}, s{sT1}, s{sT2}",
         f"s_lshl_b32 s{sT0}, s{sRB}, 16", f"s_add_u32 s{sT0}, s{sT0}, s{sT1}", f"s_add_u32 s{sT0}, s{sT0}, {WS_OF}",
         f"buffer_store_dwordx4 {vr(P, 4)}, v{vL16}, {sr(S_WS, 4)}, s{sT0} offen sc1",
         f"buffer_store_dwordx4 {vr(P + 4, 4)}, v{vL16}, {sr(S_WS, 4)}, s{sT0} offen offset:1024 sc1")
    emit(f"v_add_u32 v{vT0}, s{sT1}, v{vL16}",
         f"s_lshl_b32 s{sT4}, s{sRB}, 7", f"s_add_u32 s{sT4}, s{sT4}, {WS_OFL}",
         f"s_lshl_b32 s{sT1}, s{sM}, 3", f"s_add_u32 s{sT1}, s{sT1}, s{sWave}", f"s_lshl_b32 s{sT1}, s{sT1}, 2", f"s_add_u32 s{sT1}, s{sT1}, s{sT4}",
         f"v_mov_b32 v{vT2}, s{sNonce}", f"v_mov_b32 v{vT1}, 0",
         "s_waitcnt vmcnt(0)", "s_mov_b64 exec, 1",
         f"buffer_store_dword v{vT2}, v{vT1}, {sr(S_WS, 4)}, s{sT1} offen sc1", "s_mov_b64 exec, -1",
         "s_barrier",
         f"ds_write_b128 v{vT0}, {vr(P, 4)}", f"ds_write_b128 v{vT0}, {vr(P + 4, 4)} offset:1024",
         "s_waitcnt lgkmcnt(0)", "s_barrier")
    stamp(6)
    ACC = 16
    FR = 48

    def bbase(j, dst):
        emit(f"s_xor_b32 s{sT2}, s{sM}, {j}", f"s_and_b32 s{sT3}, s{sT2}, 1", f"s_lshl_b32 s{sT3}, s{sT3}, 15",
             f"s_lshr_b32 s{sT2}, s{sT2}, 1", f"s_lshl_b32 s{sT2}, s{sT2}, 14", f"s_add_u32 s{sT2}, s{sT2}, s{sT3}",
             f"s_lshr_b32 s{sT3}, s{sWave}, 2", f"s_lshl_b32 s{sT3}, s{sT3}, 13", f"s_add_u32 s{sT2}, s{sT2}, s{sT3}",
             f"v_add_u32 v{dst}, s{sT2}, v{vL16}")

    def mm8(j, addr):
        for i in range(8):
            emit(f"ds_read_b128 {vr(FR + 4 * i, 4)}, v{addr} offset:{i * 1024}")
        for i in range(8):
            acc = ACC + 16 * (i & 1)
            emit(f"s_waitcnt lgkmcnt({7 - i})",
                 f"v_mfma_f32_32x32x16_bf16 {vr(acc, 16)}, {ar(4 * (8 * j + i), 4)}, {vr(FR + 4 * i, 4)}, {'0' if (j == 0 and i < 2) else vr(acc, 16)}")

    for j in range(4):
        bbase(j, 80 + j)
    for j in range(1, 4):
        emit(f"s_xor_b32 s{sT2}, s{sM}, {j}", f"s_and_b32 s{sT3}, s{sT2}, 1", f"s_lshl_b32 s{sT3}, s{sT3}, 15",
             f"s_lshr_b32 s{sT2}, s{sT2}, 1", f"s_lshl_b32 s{sT2}, s{sT2}, 14", f"s_add_u32 s{sT2}, s{sT2}, s{sT3}",
             f"s_lshl_b32 s{sT3}, s{sWave}, 11", f"s_add_u32 s{4 + j}, s{sT2}, s{sT3}",
             f"s_lshl_b32 s{sT0}, s{sRB}, 16", f"s_add_u32 s{sT0}, s{sT0}, s{4 + j}", f"s_add_u32 s{8 + j}, s{sT0}, {WS_OF}")
    mm8(0, 80)
    emit(f"s_cmp_eq_u32 s{sWave}, 0", "s_cbranch_scc0 L_ofl_done",
         f"v_and_b32 v{vT1}, 31, v{vLane}", f"v_lshlrev_b32 v{vT1}, 2, v{vT1}",
         f"s_mov_b32 s{sCnt}, {OPT['spin_limit']}")
    lab("L_ofl")
    emit(f"buffer_load_dword v{vT2}, v{vT1}, {sr(S_WS, 4)}, s{sT4} offen sc1", "s_waitcnt vmcnt(0)",
         f"v_cmp_ne_u32_e64 {sr(sMA, 2)}, s{sNonce}, v{vT2}", "s_nop 3",
         f"s_cmp_eq_u64 {sr(sMA, 2)}, 0", "s_cbranch_scc1 L_ofl_done",
         f"s_sub_u32 s{sCnt}, s{sCnt}, 1", f"s_cmp_lg_u32 s{sCnt}, 0", "s_cbranch_scc1 L_ofl")
    spin_fail(3)
    lab("L_ofl_done")
    emit("s_barrier")
    stamp(7)
    for j in range(1, 4):
        emit(f"s_mov_b32 m0, s{4 + j}", "s_nop 0")
        dma(vL16, S_WS, f"s{8 + j}", sc1=OPT['ld_sc1'])
        dma(vL16, S_WS, f"s{8 + j}", imm=1024, sc1=OPT['ld_sc1'])
    for j in range(1, 4):
        emit(f"s_waitcnt vmcnt({2 * (3 - j)})", "s_barrier")
        mm8(j, 80 + j)
    stamp(8)
    emit(f"s_lshl_b32 s{sT0}, s{sWave}, 11", f"s_add_u32 s{sT0}, s{sT0}, {LDS_RED}",
         f"s_xor_b32 s{sT1}, s{sWave}, 4", f"s_lshl_b32 s{sT1}, s{sT1}, 11", f"s_add_u32 s{sT1}, s{sT1}, {LDS_RED}",
         f"v_add_u32 v{vT0}, s{sT0}, v{vL16}", f"v_add_u32 v{vT3}, s{sT1}, v{vL16}",
         f"v_and_b32 v{vT1}, 31, v{vLane}", f"v_lshlrev_b32 v{vT1}, 10, v{vT1}",
         f"v_lshrrev_b32 v{vT2}, 5, v{vLane}", f"v_lshlrev_b32 v{vT2}, 3, v{vT2}", f"v_add_u32 v{vT1}, v{vT1}, v{vT2}",
         f"s_lshl_b32 s{sT0}, s{sM}, 8", f"s_and_b32 s{sT1}, s{sWave}, 3", f"s_lshl_b32 s{sT1}, s{sT1}, 6",
         f"s_add_u32 s{sT0}, s{sT0}, s{sT1}", f"s_add_u32 s{sT0}, s{sT0}, s{sXbase}",
         "s_nop 7")
    for i in range(16):
        emit(f"v_add_f32 v{ACC + i}, v{ACC + i}, v{ACC + 16 + i}")
    emit(f"s_cmp_ge_u32 s{sWave}, 4", "s_cbranch_scc1 L_red_hi")
    for hi in (0, 1):
        if hi:
            lab("L_red_hi")
        give = 8 if hi == 0 else 0
        keep = 0 if hi == 0 else 8
        emit(f"ds_write_b128 v{vT0}, {vr(ACC + give, 4)}", f"ds_write_b128 v{vT0}, {vr(ACC + give + 4, 4)} offset:1024",
             "s_waitcnt lgkmcnt(0)", "s_barrier",
             f"ds_read_b128 {vr(48, 4)}, v{vT3}", f"ds_read_b128 {vr(52, 4)}, v{vT3} offset:1024",
             "s_waitcnt lgkmcnt(0)")
        for i in range(8):
            emit(f"v_add_f32 v{ACC + keep + i}, v{ACC + keep + i}, v{48 + i}")
        for i in range(4):
            emit(f"v_cvt_pk_bf16_f32 v{64 + i}, v{ACC + keep + 2 * i}, v{ACC + keep + 2 * i + 1}")
        for q in range(2):
            o = (keep // 4 + q) * 16
            emit(f"buffer_store_dwordx2 {vr(64 + 2 * q, 2)}, v{vT1}, {sr(S_OUT, 4)}, s{sT0} offen" + (f" offset:{o}" if o else "") + (" " + OPT["out_pol"] if OPT["out_pol"] else ""))
        if hi == 0:
            emit(f"s_or_b32 s{sT0}, s2, s{sWave}", f"s_cmp_eq_u32 s{sT0}, 0", "s_cbranch_scc0 L_fin",
                 f"v_mov_b32 v{vT0}, s{sNonce}", f"v_mov_b32 v{vT1}, 0", f"s_mov_b32 s{sT0}, {WS_W}", "s_mov_b64 exec, 1",
                 f"buffer_store_dword v{vT0}, v{vT1}, {sr(S_WS, 4)}, s{sT0} offen sc1", "s_mov_b64 exec, -1", "s_branch L_fin")
    lab("L_fin")
    stamp(9)
    emit("s_waitcnt vmcnt(0)")
    lab("L_end")
    emit("s_endpgm")


def build():
    prologue()
    stamp(0)
    front()
    stamp(1)
    q_proj()
    q_finish()
    stamp(2)
    wof_task()
    barrier_a()
    stamp(3)
    kv_rest_loads()
    start_attention()
    stamp(4)
    main_loop()
    stamp(5)
    tail()
    main_blocks()
    slow_path()


HEADER = open(os.path.join(os.path.dirname(os.path.abspath(__file__)), "cdna_kernels", NAME + ".s.ref")).read().split("; Override launch")[0]


def render():
    build()
    out = [HEADER.rstrip("\n"),
           "; Override launch geometry by editing the next line (default: block=256,",
           "; grid=ceil(out_elems/256), lds=0). Harness parses it; keep it on one line.",
           f"; @launch grid=(256,1,1) block=(512,1,1) lds={LDS_TOTAL}",
           '.amdgcn_target "amdgcn-amd-amdhsa--gfx950"', ".text", f".globl {NAME}_kernel", ".p2align 8",
           f".type {NAME}_kernel,@function", f"{NAME}_kernel:"]
    for l in L:
        if l.endswith(":") or l.startswith(";") or l.startswith("."):
            out.append(l)
        else:
            out.append("    " + l)
    out += ['.section .rodata,"a"', ".p2align 6", f".amdhsa_kernel {NAME}_kernel",
            "  .amdhsa_next_free_vgpr 256", "  .amdhsa_next_free_sgpr 102", "  .amdhsa_accum_offset 128",
            "  .amdhsa_group_segment_fixed_size 0", "  .amdhsa_kernarg_size 112", "  .amdhsa_user_sgpr_count 2",
            "  .amdhsa_user_sgpr_kernarg_segment_ptr 1", "  .amdhsa_system_sgpr_workgroup_id_x 1",
            ".end_amdhsa_kernel", ""]
    return "\n".join(out)


if __name__ == "__main__":
    dst = os.environ.get("OUT", os.path.join(os.path.dirname(os.path.abspath(__file__)), "cdna_kernels", NAME + ".s"))
    open(dst, "w").write(render())
    print("wrote", dst, len(L), "lines")
```

```python
import sys, os, struct

NAME = "gated_mix__grouped_kv_mqa__grouped_kv_mqa__prompt"

OPT = dict(
    spin_limit=1 << 18,
    force_slow=False,
    stamps=False,
    ld_sc1=False,
    q_exp=0,
    out_pol='',
    poll_blk=2, poll_step=2,
    late_pf=0,
    xcd_local=0,
    loc_pol='',
    loc_mode=3,
    one_row=0,
    tlb_touch=0,
    T2=1600.0,
    prio_g1=0,
    prio_g2=1,
    g2_drop=6,
    g2_drop_tile=5,
)
for a in sys.argv[1:]:
    if "=" in a:
        k, v = a.split("=", 1)
        if k in OPT:
            OPT[k] = type(OPT[k])(eval(v))
        else:
            raise SystemExit("unknown option " + k)

LDS_WK = 0
LDS_WV = 16384
LDS_WQ = 32768
LDS_XT = 98304
XP = 1040
LDS_GW = LDS_XT + 32 * XP
LDS_WOS = LDS_GW + 1024
LDS_GP = LDS_WOS + 4096
LDS_MISC = LDS_GP + 1024
LDS_TOTAL = LDS_MISC + 256
LDS_OG = 0
LDS_RED = 65536
M_KMAX, M_VMAX, M_FKV, M_FXB, M_FQG1, M_FQD, M_RD = 0, 4, 8, 12, 16, 20, 32

WS_KV = 0
WS_FLAG = 0x40000
WS_KVF = WS_FLAG
WS_WOFF = WS_FLAG + 4096
WS_OFL = WS_FLAG + 0x8000
WS_XID = WS_FLAG + 12288
WS_W = WS_FLAG + 16384
WS_WOF = 0x80000
WS_OF = 0x200000
WS_SIZE = 0x600000

CSCALE = 0x3EB8AA3B
NLOG2E = 0xBFB8AA3B

S_X, S_WQ, S_WK, S_WV, S_WO, S_GW, S_OUT, S_WS = 32, 36, 40, 44, 48, 52, 56, 60
sWave, sRB, sM, sB, sHH, sRot, sNonce = 64, 65, 66, 67, 68, 69, 70
sT0, sT1, sT2, sT3, sT4, sT5 = 71, 72, 73, 74, 75, 76
sS, sK, sSl, sRing, sQoff, sIter = 77, 78, 79, 82, 83, 84
sVM = 80
sXbase = 85
sCnt = 86
sRD = 87
sI1, sI2 = 98, 99
sLoc = 87
sW = 3

sFl, sFB = 100, 101
sMA, sMB = 88, 90
sMC, sMD = 92, 94
sSt = 96

vLane, vL16, vGate, vT0, vT1, vT2, vT3 = 1, 2, 3, 4, 5, 6, 7
Qa, Qb = 8, 12
Oa, Ob = 16, 32
S0, S1 = 48, 64
KF = 80
V0, V1, V0b, V1b = 84, 88, 92, 96
IDX, AK, AV = 100, 101, 102
vNon = 103
vXB, vWA, vA, vMisc = 104, 105, 106, 107
vMa, vMb = 108, 109
vNa, vNb = 110, 111
vGA = 108
vE0 = 112
vRDa, vRDv = 122, 123

L = []
_uid = [0]


def uid():
    _uid[0] += 1
    return _uid[0]


def emit(*lines):
    for l in lines:
        L.append(l)


def lab(name):
    L.append(name + ":")


def vr(b, n):
    return f"v[{b}:{b + n - 1}]"


def ar(b, n):
    return f"a[{b}:{b + n - 1}]"


def sr(b, n):
    return f"s[{b}:{b + n - 1}]"


def cmt(s):
    L.append(f"; ---- {s}")


def stamp(i):
    if not OPT["stamps"]:
        return

    def one(instr, slot):
        emit(f"{instr} {sr(sSt, 2)}", "s_waitcnt lgkmcnt(0)",
             f"s_lshl_b32 s{sSt + 1}, s2, 3", f"s_add_u32 s{sSt + 1}, s{sSt + 1}, s{sWave}", f"s_lshl_b32 s{sSt + 1}, s{sSt + 1}, 7",
             f"s_add_u32 s{sSt + 1}, s{sSt + 1}, {0x700000 + 4 * slot}",
             f"v_mov_b32 v{vE0 + 14}, s{sSt}", f"v_mov_b32 v{vE0 + 15}, s{sSt + 1}",
             f"global_store_dword v{vE0 + 15}, v{vE0 + 14}, s[30:31]")
    one("s_memrealtime", i)
    if i in (0, 9):
        one("s_memtime", 14 if i == 0 else 15)
    if i in (24, 25, 4, 5):
        one("s_memtime", {24: 28, 25: 29, 4: 30, 5: 31}[i])


def stamp_iter():
    if not OPT["stamps"]:
        return
    emit(f"s_memrealtime {sr(sSt, 2)}", "s_waitcnt lgkmcnt(0)",
         f"s_lshl_b32 s{sSt + 1}, s2, 3", f"s_add_u32 s{sSt + 1}, s{sSt + 1}, s{sWave}", f"s_lshl_b32 s{sSt + 1}, s{sSt + 1}, 5",
         f"s_add_u32 s{sSt + 1}, s{sSt + 1}, s{sIter}", f"s_lshl_b32 s{sSt + 1}, s{sSt + 1}, 2",
         f"s_add_u32 s{sSt + 1}, s{sSt + 1}, {0x700000 + 64}",
         f"v_mov_b32 v{vE0 + 14}, s{sSt}", f"v_mov_b32 v{vE0 + 15}, s{sSt + 1}",
         f"global_store_dword v{vE0 + 15}, v{vE0 + 14}, s[30:31]")


def dma(vaddr, srd, soff, m0expr=None, imm=0, sc1=False):
    if m0expr is not None:
        emit(f"s_mov_b32 m0, {m0expr}", "s_nop 0")
    s = f"buffer_load_dwordx4 v{vaddr}, {sr(srd, 4)}, {soff} offen"
    if imm:
        s += f" offset:{imm}"
    if sc1:
        s += " sc1"
    emit(s + " lds")


def spin_fail(code):
    emit(f"v_mov_b32 v{vT0}, {code}", f"v_mov_b32 v{vT1}, 60", f"global_store_dword v{vT1}, v{vT0}, s[28:29]")


def lds_wait(off, val, addr=None):
    n = uid()
    a = f"v{vMisc} offset:{off}" if addr is None else f"v{addr}"
    emit(f"s_mov_b32 s{sCnt}, {OPT['spin_limit']}")
    lab(f"L_lw{n}")
    emit(f"ds_read_b32 v{vT2}, {a}", "s_waitcnt lgkmcnt(0)", f"v_readfirstlane_b32 s{sT5}, v{vT2}", "s_nop 1",
         f"s_cmp_ge_u32 s{sT5}, {val}", f"s_cbranch_scc1 L_lwd{n}", "s_sleep 1",
         f"s_sub_u32 s{sCnt}, s{sCnt}, 1", f"s_cmp_lg_u32 s{sCnt}, 0", f"s_cbranch_scc1 L_lw{n}")
    spin_fail(8 + off)
    lab(f"L_lwd{n}")


def lds_add(off, val, addr=None):
    a = f"v{vMisc}, v{vT2} offset:{off}" if addr is None else f"v{addr}, v{vT2}"
    emit(f"v_mov_b32 v{vT2}, {val}", "s_mov_b64 exec, 1", f"ds_add_u32 {a}", "s_mov_b64 exec, -1")


def prologue():
    cmt("prologue")
    emit("s_cmp_ge_u32 s2, 256", "s_cbranch_scc1 L_end",
         "s_load_dwordx16 s[4:19], s[0:1], 0",
         "s_load_dwordx8 s[20:27], s[0:1], 64",
         "s_load_dwordx4 s[28:31], s[0:1], 96",
         f"v_lshrrev_b32 v{vT0}, 6, v0",
         f"v_and_b32 v{vLane}, 63, v0",
         f"s_and_b32 s3, s2, 7",
         f"v_readfirstlane_b32 s{sWave}, v{vT0}",
         f"s_lshr_b32 s{sRB}, s2, 5",
         f"s_lshl_b32 s{sRot}, s{sRB}, 2",
         f"s_lshl_b32 s{sRB}, s{sRB}, 3",
         f"s_add_u32 s{sRB}, s{sRB}, s3",
         f"s_lshr_b32 s{sM}, s2, 3",
         f"s_and_b32 s{sM}, s{sM}, 3",
         f"s_and_b32 s{sB}, s{sM}, 1",
         f"s_lshr_b32 s{sHH}, s{sM}, 1",
         f"v_lshlrev_b32 v{vL16}, 4, v{vLane}",
         f"s_lshl_b32 s{sXbase}, s{sRB}, 15",
         f"s_lshl_b32 s{sT0}, s{sHH}, 4", f"s_lshl_b32 s{sT1}, s{sWave}, 1", f"s_add_u32 s{sT0}, s{sT0}, s{sT1}",
         f"s_mul_i32 s{sT1}, s{sT0}, {XP}", f"s_add_u32 s{sT1}, s{sT1}, {LDS_XT}",
         f"s_lshl_b32 s{sT2}, s{sT0}, 10", f"s_add_u32 s{sT2}, s{sT2}, s{sXbase}",
         f"s_xor_b32 s{sT0}, s{sT0}, 16",
         f"s_mul_i32 s{sT3}, s{sT0}, {XP}", f"s_add_u32 s{sT3}, s{sT3}, {LDS_XT}",
         f"s_lshl_b32 s{sT4}, s{sT0}, 10", f"s_add_u32 s{sT4}, s{sT4}, s{sXbase}",
         f"v_lshrrev_b32 v{vT0}, 2, v{vLane}", f"v_lshlrev_b32 v{vT0}, 10, v{vT0}",
         f"v_and_b32 v{vT1}, 3, v{vLane}", f"v_lshlrev_b32 v{vT1}, 4, v{vT1}",
         f"v_add_u32 v{vA}, v{vT0}, v{vT1}",
         f"s_lshl_b32 s{sQoff}, s{sHH}, 9", f"s_lshl_b32 s{sT0}, s{sWave}, 6", f"s_add_u32 s{sQoff}, s{sQoff}, s{sT0}",
         f"s_lshl_b32 s{sRing}, s{sWave}, 13", f"s_add_u32 s{sRing}, s{sRing}, {LDS_WQ}",
         f"s_mov_b32 s{S_X + 2}, 0x200000", f"s_mov_b32 s{S_X + 3}, 0x20000",
         f"s_mov_b32 s{S_WQ + 2}, 0x80000", f"s_mov_b32 s{S_WQ + 3}, 0x20000",
         f"s_cmp_eq_u32 s{sB}, 0",
         "s_waitcnt lgkmcnt(0)",
         f"s_mov_b32 s{S_X}, s4", f"s_mov_b32 s{S_X + 1}, s5",
         f"s_cselect_b32 s{S_WQ}, s6, s16", f"s_cselect_b32 s{S_WQ + 1}, s7, s17",
         f"s_cselect_b32 s{S_WK}, s8, s18", f"s_cselect_b32 s{S_WK + 1}, s9, s19",
         f"s_cselect_b32 s{S_WV}, s10, s20", f"s_cselect_b32 s{S_WV + 1}, s11, s21")
    stamp(26)
    for i in range(2):
        emit(f"s_mov_b32 m0, s{sT1}", f"s_add_u32 s{sT1}, s{sT1}, {XP}")
        dma(vL16, S_X, f"s{sT2}")
        if i < 1:
            emit(f"s_add_u32 s{sT2}, s{sT2}, 1024")
    emit(f"s_mov_b32 s{S_WK + 2}, 0x4000", f"s_mov_b32 s{S_WK + 3}, 0x20000",
         f"s_mov_b32 s{S_WV + 2}, 0x4000", f"s_mov_b32 s{S_WV + 3}, 0x20000",
         f"s_lshr_b32 s{sT0}, s2, 4", f"s_add_u32 s{sT0}, s{sT0}, s{sWave}", f"s_and_b32 s{sT0}, s{sT0}, 7",
         f"s_lshl_b32 s{sT0}, s{sT0}, 11",
         f"s_add_u32 s{sT1}, s{sT0}, {LDS_WK}", f"s_mov_b32 m0, s{sT1}", f"s_add_u32 s{sT1}, s{sT0}, {LDS_WV}")
    dma(vL16, S_WK, f"s{sT0}")
    dma(vL16, S_WK, f"s{sT0}", imm=1024)
    emit(f"s_mov_b32 m0, s{sT1}", "s_nop 0")
    dma(vL16, S_WV, f"s{sT0}")
    dma(vL16, S_WV, f"s{sT0}", imm=1024)
    for i in range(2):
        emit(f"s_mov_b32 m0, s{sT3}", f"s_add_u32 s{sT3}, s{sT3}, {XP}")
        dma(vL16, S_X, f"s{sT4}")
        if i < 1:
            emit(f"s_add_u32 s{sT4}, s{sT4}, 1024")
    emit(f"s_cmp_eq_u32 s{sWave}, 2", "s_cbranch_scc0 L_nogw",
         f"s_mov_b32 s{S_GW}, s24", f"s_mov_b32 s{S_GW + 1}, s25", f"s_mov_b32 s{S_GW + 2}, 0x400", f"s_mov_b32 s{S_GW + 3}, 0x20000")
    dma(vL16, S_GW, "0", m0expr=str(LDS_GW))
    lab("L_nogw")
    emit(f"s_load_dword s{sW}, s[30:31], {WS_W:#x}")


def wq_fetch(n):
    for i in range(n):
        emit(f"s_mov_b32 m0, s{sK}", f"s_add_u32 s{sSl}, s{sSl}, 16384", f"s_and_b32 s{sSl}, s{sSl}, 0x7ffff")
        dma(vA, S_WQ, f"s{sSl}")
        emit(f"s_add_u32 s{sK}, s{sK}, 1024")


def nonce():
    emit(f"s_mul_i32 s{sNonce}, s{sW}, 0x9E3779B1", f"s_add_u32 s{sNonce}, s{sNonce}, 0x7F4A7C15")


def front():
    def prefill():
        cmt("wq slots 0..7")
        emit(f"s_add_u32 s{sSl}, s{sRot}, 31", f"s_and_b32 s{sSl}, s{sSl}, 31", f"s_lshl_b32 s{sSl}, s{sSl}, 14",
             f"s_add_u32 s{sSl}, s{sSl}, s{sQoff}", f"s_mov_b32 s{sK}, s{sRing}", f"s_mov_b32 s{sCnt}, 8")
        lab("L_pf")
        wq_fetch(1)
        emit(f"s_sub_u32 s{sCnt}, s{sCnt}, 1", f"s_cmp_lg_u32 s{sCnt}, 0", "s_cbranch_scc1 L_pf")

    def wo_block():
        cmt("wave 3: wo block of the WOF task: rows head_t*16 + 4i + (l>>4), cols q_t*128")
        emit(f"s_cmp_eq_u32 s{sWave}, 3", "s_cbranch_scc0 L_nowo",
             f"v_lshrrev_b32 v{vT0}, 4, v{vLane}", f"v_lshlrev_b32 v{vT0}, 10, v{vT0}",
             f"v_and_b32 v{vT1}, 15, v{vLane}", f"v_lshlrev_b32 v{vT1}, 4, v{vT1}", f"v_add_u32 v{vT0}, v{vT0}, v{vT1}",
             f"s_lshr_b32 s{sT0}, s2, 2", f"s_and_b32 s{sT0}, s{sT0}, 31", f"s_lshl_b32 s{sT0}, s{sT0}, 14",
             f"s_and_b32 s{sT1}, s2, 3", f"s_lshl_b32 s{sT1}, s{sT1}, 8", f"s_add_u32 s{sT0}, s{sT0}, s{sT1}")
        for i in range(4):
            dma(vT0, S_WO, f"s{sT0}", m0expr=str(LDS_WOS + i * 1024))
            if i < 3:
                emit(f"s_add_u32 s{sT0}, s{sT0}, 4096")
        lab("L_nowo")

    if not (OPT["late_pf"] & 1):
        prefill()
    emit(f"s_mov_b32 s{S_WS}, s30", f"s_mov_b32 s{S_WS + 1}, s31", f"s_mov_b32 s{S_WS + 2}, {WS_SIZE}", f"s_mov_b32 s{S_WS + 3}, 0x20000",
         f"s_mov_b32 s{S_OUT}, s26", f"s_mov_b32 s{S_OUT + 1}, s27", f"s_mov_b32 s{S_OUT + 2}, 0x200000", f"s_mov_b32 s{S_OUT + 3}, 0x20000",
         f"s_cmp_lt_u32 s2, 128",
         f"s_cselect_b32 s{S_WO}, s12, s22", f"s_cselect_b32 s{S_WO + 1}, s13, s23",
         f"s_mov_b32 s{S_WO + 2}, 0x80000", f"s_mov_b32 s{S_WO + 3}, 0x20000",
         f"s_mov_b32 s{sVM}, 0x0000ffff", f"s_mov_b32 s{sVM + 1}, 0x0000ffff",
         f"v_mov_b32 v{vMisc}, {LDS_MISC}")
    if not (OPT["late_pf"] & 3):
        wo_block()
    if OPT["tlb_touch"]:
        cmt("wave 6: one dword from every page this workgroup writes later (translation warm-up; the values are unused)")
        emit(f"s_cmp_eq_u32 s{sWave}, 6", "s_cbranch_scc0 L_notouch", f"v_mov_b32 v{vT0}, 0", "s_mov_b64 exec, 1",
             f"s_lshl_b32 s{sT0}, s{sRB}, 11", f"s_lshl_b32 s{sT1}, s{sB}, 17", f"s_add_u32 s{sT0}, s{sT0}, s{sT1}",
             f"buffer_load_dword a120, v{vT0}, {sr(S_WS, 4)}, s{sT0} offen",
             f"s_lshl_b32 s{sT0}, s{sRB}, 16", f"s_add_u32 s{sT0}, s{sT0}, {WS_OF}",
             f"buffer_load_dword a121, v{vT0}, {sr(S_WS, 4)}, s{sT0} offen",
             f"buffer_load_dword a122, v{vT0}, {sr(S_OUT, 4)}, s{sXbase} offen",
             f"s_lshl_b32 s{sT0}, s2, 12", f"s_add_u32 s{sT0}, s{sT0}, {WS_WOF}",
             f"buffer_load_dword a123, v{vT0}, {sr(S_WS, 4)}, s{sT0} offen",
             f"s_mov_b32 s{sT0}, {WS_OFL}",
             f"buffer_load_dword a124, v{vT0}, {sr(S_WS, 4)}, s{sT0} offen",
             "s_mov_b64 exec, -1")
        lab("L_notouch")
    q_setup()
    emit(f"s_waitcnt vmcnt({2 if OPT['late_pf'] & 1 else 10})", "s_barrier")
    stamp(10)
    if OPT["late_pf"] & 1:
        prefill()
    if OPT["late_pf"] & 3:
        wo_block()
    emit(f"s_cmp_ge_u32 s{sWave}, 2", "s_cbranch_scc1 L_bar2")
    kv_proj()
    lab("L_kv_done")
    stamp(12)
    emit("s_waitcnt vmcnt(9)", "s_barrier", "s_branch L_qstart")
    lab("L_bar2")
    emit("s_waitcnt vmcnt(8)", "s_barrier")
    lab("L_qstart")


def kv_proj():
    cmt("K/V projection (waves 0,1)")
    XB = 112
    WA = 116
    ACC = 64
    FR = 0
    emit(f"v_and_b32 v{vT0}, 15, v{vLane}",
         f"v_lshrrev_b32 v{vT1}, 4, v{vLane}",
         f"v_lshlrev_b32 v{vT2}, 4, v{vT1}",
         f"s_mul_i32 s{sT0}, s{sHH}, {16 * XP}", f"s_add_u32 s{sT0}, s{sT0}, {LDS_XT}",
         f"v_mul_u32_u24 v{vT3}, {XP}, v{vT0}",
         f"v_add3_u32 v{XB}, v{vT3}, v{vT2}, s{sT0}",
         f"v_lshlrev_b32 v{vT1}, 8, v{vT1}", f"v_lshlrev_b32 v{vT0}, 3, v{vT0}",
         f"s_and_b32 s{sT0}, s{sWave}, 1", f"s_lshl_b32 s{sT0}, s{sT0}, 14",
         f"v_add3_u32 v{WA}, v{vT1}, v{vT0}, s{sT0}")

    def reads(s):
        f = FR + 8 * (s % 4)
        f += 32
        return [f"ds_read_b128 {ar(f, 4)}, v{XB} offset:{s * 64}",
                f"ds_read_b64_tr_b16 {ar(f + 4, 2)}, v{WA} offset:{LDS_WK + s * 1024}",
                f"ds_read_b64_tr_b16 {ar(f + 6, 2)}, v{WA} offset:{LDS_WK + s * 1024 + 128}"]

    for variant in ("K", "V"):
        if variant == "K":
            emit(f"s_cmp_eq_u32 s{sWave}, 1", "s_cbranch_scc1 L_vproj")
        else:
            lab("L_vproj")
        for s in range(4):
            emit(*reads(s))
        for s in range(16):
            f = 32 + 8 * (s % 4)
            rem = min(3, 15 - s)
            emit(f"s_waitcnt lgkmcnt({3 * rem})")
            acc = ACC + 4 * (s & 1)
            c = "0" if s < 2 else vr(acc, 4)
            if variant == "K":
                emit(f"v_mfma_f32_16x16x32_bf16 {vr(acc, 4)}, {ar(f + 4, 4)}, {ar(f, 4)}, {c}")
            else:
                emit(f"v_mfma_f32_16x16x32_bf16 {vr(acc, 4)}, {ar(f, 4)}, {ar(f + 4, 4)}, {c}")
            if s + 4 < 16:
                emit(*reads(s + 4))
        nonce()
        P = 120
        AD = 117
        if variant == "K":
            emit(f"v_and_b32 v{vT2}, 15, v{vLane}", f"v_bfe_u32 v{vT3}, v{vLane}, 4, 1",
                 f"v_lshlrev_b32 v{vT3}, 5, v{vT3}", f"v_add_u32 v{vT2}, v{vT2}, v{vT3}", f"v_lshlrev_b32 v{AD}, 4, v{vT2}",
                 f"s_lshl_b32 s{sT0}, s{sB}, 17", f"s_lshl_b32 s{sT1}, s{sRB}, 11", f"s_add_u32 s{sT0}, s{sT0}, s{sT1}",
                 f"s_lshl_b32 s{sT1}, s{sHH}, 8", f"s_add_u32 s{sT0}, s{sT0}, s{sT1}",
                 f"s_mov_b32 s{sT2}, {CSCALE:#x}")
            for i in range(4):
                emit(f"v_add_f32 v{ACC + i}, v{ACC + i}, v{ACC + 4 + i}")
            for i in range(4):
                emit(f"v_mul_f32 v{ACC + i}, s{sT2}, v{ACC + i}")
        else:
            emit(f"v_and_b32 v{vT2}, 15, v{vLane}", f"v_lshrrev_b32 v{vT3}, 5, v{vLane}",
                 f"v_lshlrev_b32 v{vT2}, 4, v{vT2}", f"v_lshlrev_b32 v{vT3}, 8, v{vT3}", f"v_add_u32 v{AD}, v{vT2}, v{vT3}",
                 f"s_lshl_b32 s{sT0}, s{sB}, 17", f"s_lshl_b32 s{sT1}, s{sRB}, 11", f"s_add_u32 s{sT0}, s{sT0}, s{sT1}",
                 f"s_lshl_b32 s{sT1}, s{sHH}, 9", f"s_add_u32 s{sT0}, s{sT0}, s{sT1}", f"s_add_u32 s{sT0}, s{sT0}, 1024")
            for i in range(4):
                emit(f"v_add_f32 v{ACC + i}, v{ACC + i}, v{ACC + 4 + i}")
        emit(f"v_cvt_pk_bf16_f32 v{P}, v{ACC}, v{ACC + 1}", f"v_cvt_pk_bf16_f32 v{P + 1}, v{ACC + 2}, v{ACC + 3}", "s_nop 1")
        if variant == "K":
            emit(f"v_permlane32_swap_b32 v{P}, v{P + 2}", f"v_permlane32_swap_b32 v{P + 1}, v{P + 3}",
                 "s_mov_b32 exec_hi, 0",
                 f"buffer_store_dwordx4 {vr(P, 4)}, v{AD}, {sr(S_WS, 4)}, s{sT0} offen sc1",
                 "s_mov_b64 exec, -1")
            emit(f"v_mul_f32 v{vT0}, v{ACC}, v{ACC}")
            for i in range(1, 4):
                emit(f"v_fmac_f32 v{vT0}, v{ACC + i}, v{ACC + i}")
            red = "v_add_f32"
        else:
            emit(f"v_permlane16_swap_b32 v{P}, v{P + 2}", f"v_permlane16_swap_b32 v{P + 1}, v{P + 3}",
                 f"s_mov_b64 exec, {sr(sVM, 2)}",
                 f"buffer_store_dwordx4 {vr(P, 4)}, v{AD}, {sr(S_WS, 4)}, s{sT0} offen sc1",
                 "s_mov_b64 exec, -1")
            emit(f"v_max_f32_e64 v{vT0}, |v{ACC}|, |v{ACC + 1}|", f"v_max3_f32 v{vT0}, |v{ACC + 2}|, |v{ACC + 3}|, v{vT0}")
            red = "v_max_f32"
        emit(f"v_mov_b32 v{vT1}, v{vT0}", "s_nop 1",
             f"v_permlane32_swap_b32 v{vT0}, v{vT1}", "s_nop 1",
             f"{red} v{vT0}, v{vT0}, v{vT1}", "s_nop 0", f"v_mov_b32 v{vT1}, v{vT0}", "s_nop 1",
             f"v_permlane16_swap_b32 v{vT0}, v{vT1}", "s_nop 1",
             f"{red} v{vT0}, v{vT0}, v{vT1}")
        for r in (8, 4, 2, 1):
            emit("s_nop 1", f"v_max_f32_dpp v{vT0}, v{vT0}, v{vT0} row_ror:{r} row_mask:0xf bank_mask:0xf")
        emit(f"s_lshl_b32 s{sT0}, s{sRB}, 1", f"s_add_u32 s{sT0}, s{sT0}, s{sHH}", f"s_lshl_b32 s{sT0}, s{sT0}, 4",
             f"s_lshl_b32 s{sT1}, s{sB}, 11", f"s_add_u32 s{sT0}, s{sT0}, s{sT1}",
             f"s_add_u32 s{sT0}, s{sT0}, {WS_KVF + (0 if variant == 'K' else 8)}",
             f"v_mov_b32 v{P + 5}, v{vT0}", f"v_mov_b32 v{P + 4}, s{sNonce}", f"s_mov_b32 s{sFl}, s{sT0}")
        stamp(11)
        if variant == "K":
            emit("s_branch L_kv_done")


def wof_task():
    cmt("WOF task (wave 3): transpose 4 wo fragments, publish")
    emit(f"s_cmp_eq_u32 s{sWave}, 3", "s_cbranch_scc0 L_wof_done")
    emit(f"v_lshrrev_b32 v{vT0}, 5, v{vLane}", f"v_lshlrev_b32 v{vT0}, 2, v{vT0}",
         f"v_bfe_u32 v{vT1}, v{vLane}, 2, 2", f"v_add_u32 v{vT0}, v{vT0}, v{vT1}", f"v_lshlrev_b32 v{vT0}, 8, v{vT0}",
         f"v_bfe_u32 v{vT1}, v{vLane}, 4, 1", f"v_lshlrev_b32 v{vT1}, 5, v{vT1}",
         f"v_and_b32 v{vT2}, 3, v{vLane}", f"v_lshlrev_b32 v{vT2}, 3, v{vT2}",
         f"v_add3_u32 v{vT0}, v{vT0}, v{vT1}, v{vT2}", f"v_add_u32 v{vT0}, {LDS_WOS}, v{vT0}")
    F = 112
    for f in range(4):
        emit(f"ds_read_b64_tr_b16 {vr(F + 4 * f, 2)}, v{vT0} offset:{f * 64}",
             f"ds_read_b64_tr_b16 {vr(F + 4 * f + 2, 2)}, v{vT0} offset:{f * 64 + 2048}")
    emit(f"s_lshr_b32 s{sT0}, s2, 2", f"s_lshl_b32 s{sT0}, s{sT0}, 14", f"s_and_b32 s{sT1}, s2, 3", f"s_lshl_b32 s{sT1}, s{sT1}, 12",
         f"s_add_u32 s{sT0}, s{sT0}, s{sT1}", f"s_add_u32 s{sT0}, s{sT0}, {WS_WOF}",
         "s_waitcnt lgkmcnt(0)")
    for f in range(4):
        o = f" offset:{f * 1024}" if f else ""
        emit(f"buffer_store_dwordx4 {vr(F + 4 * f, 4)}, v{vL16}, {sr(S_WS, 4)}, s{sT0} offen{o} sc1")
    lab("L_wof_done")


def wof_flag():
    n = uid()
    emit(f"s_cmp_eq_u32 s{sWave}, 3", f"s_cbranch_scc0 L_wf{n}",
         f"s_lshl_b32 s{sT0}, s2, 2", f"s_add_u32 s{sT0}, s{sT0}, {WS_WOFF}",
         f"v_mov_b32 v{vT0}, s{sNonce}", f"v_mov_b32 v{vT1}, 0", "s_mov_b64 exec, 1",
         f"buffer_store_dword v{vT0}, v{vT1}, {sr(S_WS, 4)}, s{sT0} offen sc1", "s_mov_b64 exec, -1")
    lab(f"L_wf{n}")


PF = 118


def poll_issue(areg):
    emit(f"s_lshl_b32 s{sT0}, s{sB}, 11", f"s_add_u32 s{sT0}, s{sT0}, {WS_KVF}",
         f"buffer_load_dwordx4 {ar(areg, 4)}, v{vL16}, {sr(S_WS, 4)}, s{sT0} offen sc1",
         f"buffer_load_dwordx4 {ar(areg + 4, 4)}, v{vL16}, {sr(S_WS, 4)}, s{sT0} offen offset:1024 sc1")


def poll_check(areg, ok):
    F = PF
    for i in range(8):
        emit(f"v_accvgpr_read_b32 v{F + i}, a{areg + i}")
    emit(f"v_cmp_ne_u32_e64 {sr(sMA, 2)}, s{sNonce}, v{F}",
         f"v_cmp_ne_u32_e64 {sr(sMB, 2)}, s{sNonce}, v{F + 2}",
         f"v_cmp_ne_u32_e64 {sr(sMC, 2)}, s{sNonce}, v{F + 4}",
         f"v_cmp_ne_u32_e64 {sr(sMD, 2)}, s{sNonce}, v{F + 6}",
         "s_nop 3",
         f"s_or_b64 {sr(sMA, 2)}, {sr(sMA, 2)}, {sr(sMB, 2)}",
         f"s_or_b64 {sr(sMC, 2)}, {sr(sMC, 2)}, {sr(sMD, 2)}",
         f"s_or_b64 {sr(sMA, 2)}, {sr(sMA, 2)}, {sr(sMC, 2)}",
         f"s_cbranch_scc0 {ok}")


def chunk0_loads():
    F = PF
    emit(f"v_mov_b32 v{vT0}, 0", f"ds_write_b32 v{vMisc}, v{vT0} offset:{M_KMAX}", f"ds_write_b32 v{vMisc}, v{vT0} offset:{M_VMAX}",
         f"s_lshl_b32 s{sT0}, s{sB}, 17", f"s_mov_b32 s{sT1}, 0")
    for g in range(4):
        emit(f"s_mov_b32 m0, s{sT1}", f"s_add_u32 s{sT1}, s{sT1}, 4096")
        for i in range(4):
            dma(vL16, S_WS, f"s{sT0}", imm=1024 * i, sc1=OPT['ld_sc1'])
        if g < 3:
            emit(f"s_add_u32 s{sT0}, s{sT0}, 4096")
    emit(f"v_max_u32 v{F + 1}, v{F + 1}, v{F + 5}", f"v_max_u32 v{F + 3}, v{F + 3}, v{F + 7}",
         f"ds_max_u32 v{vMisc}, v{F + 1} offset:{M_KMAX}", f"ds_max_u32 v{vMisc}, v{F + 3} offset:{M_VMAX}")


def poll_kv():
    cmt("wave 7, late path: poll the K/V flags, fetch key tiles 0..7")
    emit(f"s_cmp_eq_u32 s{sWave}, 7", "s_cbranch_scc0 L_pollkv_done",
         f"s_mov_b32 s{sCnt}, {OPT['spin_limit']}")
    lab("L_pollkv")
    emit("s_waitcnt vmcnt(0)")
    poll_check(24, "L_pollkv_ok")
    poll_issue(24)
    emit(f"s_sub_u32 s{sCnt}, s{sCnt}, 1", f"s_cmp_lg_u32 s{sCnt}, 0", "s_cbranch_scc1 L_pollkv")
    spin_fail(1)
    lab("L_pollkv_ok")
    stamp(13)
    chunk0_loads()
    lab("L_pollkv_done")


def barrier_a():
    emit(f"s_cmp_eq_u32 s{sWave}, 7", "s_cbranch_scc0 L_bara", "s_waitcnt vmcnt(0)")
    lab("L_bara")
    emit("s_waitcnt lgkmcnt(0)", "s_barrier")


GACC = 96
vXG = 116


def q_setup():
    cmt("Q projection: addresses, accumulators; main-loop register init")
    ACC = S0
    emit(f"v_and_b32 v{vT0}, 31, v{vLane}", f"v_lshrrev_b32 v{vT1}, 5, v{vLane}",
         f"v_mul_u32_u24 v{vT0}, {XP}, v{vT0}", f"v_lshlrev_b32 v{vT2}, 4, v{vT1}",
         f"v_add_u32 v{vXB}, v{vT0}, v{vT2}", f"v_add_u32 v{vXB}, {LDS_XT}, v{vXB}",
         f"s_lshl_b32 s{sT0}, s{sWave}, 7", f"s_add_u32 s{sT0}, s{sT0}, {LDS_GW}",
         f"v_add_u32 v{vGA}, s{sT0}, v{vT2}",
         f"v_bfe_u32 v{vT0}, v{vLane}, 2, 2",
         f"v_lshlrev_b32 v{vT2}, 3, v{vT1}", f"v_add_u32 v{vT2}, v{vT2}, v{vT0}", f"v_lshlrev_b32 v{vT2}, 6, v{vT2}",
         f"v_bfe_u32 v{vT1}, v{vLane}, 4, 1", f"v_lshlrev_b32 v{vT1}, 5, v{vT1}",
         f"v_and_b32 v{vT0}, 3, v{vLane}", f"v_lshlrev_b32 v{vT0}, 3, v{vT0}",
         f"v_add3_u32 v{vT2}, v{vT2}, v{vT0}, v{vT1}",
         f"v_add_u32 v{vWA}, s{sRing}, v{vT2}")
    for i in range(16):
        emit(f"v_mov_b32 v{ACC + i}, 0")
    for i in range(16):
        emit(f"v_accvgpr_write_b32 a{i}, 0")
    reg_init()
    emit(f"s_cmp_lt_u32 s{sWave}, 2", f"s_cselect_b32 s{sFB}, 0, 99")


def q_proj():
    cmt("Q projection (per-wave ring)")
    ACC = S0
    QS = 32
    GF = 64

    def reads(s):
        f = QS + 8 * (s & 3)
        return [f"ds_read_b64_tr_b16 {ar(f, 2)}, v{vWA} offset:{(s & 7) * 1024}",
                f"ds_read_b64_tr_b16 {ar(f + 2, 2)}, v{vWA} offset:{(s & 7) * 1024 + 256}",
                f"ds_read_b128 {ar(f + 4, 4)}, v{vXG} offset:{(s & 3) * 32}"]

    def group_addr():
        return [f"v_add_u32 v{vXG}, s{sK}, v{vXB}", f"s_add_u32 s{sK}, s{sK}, 128", f"s_and_b32 s{sK}, s{sK}, 1023"]

    def step(s, last, extra=0):
        f = QS + 8 * (s & 3)
        rd = not (last and s >= 6)
        if last:
            w = {0: 5, 1: 4, 2: 3, 3: 2, 4: 1, 5: 0}.get(s)
            if w is not None:
                w += extra
        else:
            w = 5
        lg = 3 if (rd or (last and s == 6)) else 0
        if last and s == 7:
            lg = 0
        emit((f"s_waitcnt vmcnt({w}) " if w is not None else "s_waitcnt ") + f"lgkmcnt({lg})")
        if s == 4 and not last:
            n = uid()
            emit(f"s_cmp_eq_u32 s{sCnt}, s{sFB}", f"s_cbranch_scc0 L_nf{n}", "s_waitcnt vmcnt(4)",
                 f"v_mov_b32 v{vT0}, 0", "s_mov_b64 exec, 1",
                 f"buffer_store_dwordx2 {vr(124, 2)}, v{vT0}, {sr(S_WS, 4)}, s{sFl} offen sc1", "s_mov_b64 exec, -1")
            stamp(27)
            lab(f"L_nf{n}")
        if s == OPT["poll_step"] and not last:
            n = uid()
            emit(f"s_cmp_eq_u32 s{sCnt}, s{sI2}", f"s_cbranch_scc0 L_ep{n}")
            poll_issue(16)
            lab(f"L_ep{n}")
        if s % 4 == 0:
            emit(f"s_cmp_eq_u32 s{sS}, s{sWave}", "s_cselect_b64 vcc, -1, 0",
                 f"s_add_u32 s{sS}, s{sS}, 1", f"s_and_b32 s{sS}, s{sS}, 7")
        if s % 4 == 2 and rd:
            emit(*group_addr())
        if last and s == 5 and not extra:
            n = uid()
            emit(f"s_cmp_eq_u32 s{sWave}, 7", f"s_cbranch_scc0 L_np{n}")
            poll_issue(24)
            lab(f"L_np{n}")
        if rd and not (OPT["q_exp"] & 1):
            emit(*reads(s + 2))
        acc = vr(ACC, 16) if s % 2 == 0 else ar(0, 16)
        if not (OPT["q_exp"] & 4):
            emit(f"v_mfma_f32_32x32x16_bf16 {acc}, {ar(f, 4)}, {ar(f + 4, 4)}, {acc}")
        if not last:
            emit(f"s_add_u32 m0, s{sRing}, {s * 1024}", f"s_add_u32 s{sSl}, s{sSl}, 16384", f"s_and_b32 s{sSl}, s{sSl}, 0x7ffff")
            if not (OPT["q_exp"] & 2):
                dma(vA, S_WQ, f"s{sSl}")
        n = uid()
        emit(f"s_cbranch_vccz L_ng{n}",
             f"v_mfma_f32_32x32x16_bf16 {ar(GACC, 16)}, {ar(GF + 4 * (s & 3), 4)}, {ar(f + 4, 4)}, {'0' if (s & 3) == 0 else ar(GACC, 16)}")
        lab(f"L_ng{n}")

    emit(f"s_lshl_b32 s{sK}, s{sRot}, 5", f"s_lshr_b32 s{sS}, s{sRot}, 2", f"s_mov_b32 s{sCnt}, 0",
         f"s_cmp_eq_u32 s{sWave}, 7", f"s_cselect_b32 s{sI2}, {OPT['poll_blk']}, 99")
    emit(*group_addr())
    for i in range(4):
        emit(f"ds_read_b128 {ar(GF + 4 * i, 4)}, v{vGA} offset:{32 * i}")
    emit("s_waitcnt vmcnt(6) lgkmcnt(0)")
    nonce()
    if OPT["xcd_local"]:
        emit(f"s_cmp_eq_u32 s{sWave}, 3", "s_cbranch_scc0 L_noxid",
             f"s_getreg_b32 s{sT0}, hwreg(HW_REG_XCC_ID)", f"s_and_b32 s{sT0}, s{sT0}, 15", f"s_or_b32 s{sT0}, s{sT0}, 0x100",
             f"s_xor_b32 s{sT0}, s{sT0}, s{sNonce}", f"v_mov_b32 v{vT0}, s{sT0}", f"v_mov_b32 v{vT1}, 0",
             f"s_lshl_b32 s{sT0}, s2, 2", f"s_add_u32 s{sT0}, s{sT0}, {WS_XID}", "s_mov_b64 exec, 1",
             f"buffer_store_dword v{vT0}, v{vT1}, {sr(S_WS, 4)}, s{sT0} offen sc1", "s_mov_b64 exec, -1")
        lab("L_noxid")
    stamp(24)
    emit(*reads(0))
    emit(*reads(1))
    lab("L_qloop")
    for s in range(8):
        step(s, False)
    emit(f"s_add_u32 s{sCnt}, s{sCnt}, 1", f"s_cmp_lt_u32 s{sCnt}, 3", "s_cbranch_scc1 L_qloop")
    emit(f"s_cmp_eq_u32 s{sWave}, 7", "s_cbranch_scc0 L_qlast", f"s_waitcnt vmcnt({(8 - OPT['poll_step']) + 8 * (2 - OPT['poll_blk'])})")
    poll_check(16, "L_qlast7")
    lab("L_qlast")
    for s in range(8):
        step(s, True)
    stamp(25)
    poll_kv()
    emit("s_branch L_qdone")
    lab("L_qlast7")
    stamp(13)
    chunk0_loads()
    for s in range(8):
        step(s, True, extra=16)
    stamp(25)
    lab("L_qdone")


def q_finish():
    cmt("Q frags + norms, gate partials")
    ACC = S0
    emit(f"v_and_b32 v{vT0}, 31, v{vLane}", f"v_lshlrev_b32 v{vT0}, 5, v{vT0}", f"s_lshl_b32 s{sT0}, s{sWave}, 2",
         f"s_add_u32 s{sT0}, s{sT0}, {LDS_GP}",
         f"v_add_u32 v{vT0}, s{sT0}, v{vT0}",
         "s_nop 7", f"v_accvgpr_read_b32 v{vT1}, a{GACC}")
    emit(f"ds_write_b32 v{vT0}, v{vT1}")
    for i in range(16):
        emit(f"v_accvgpr_read_b32 v{112 + i}, a{i}")
    for i in range(16):
        emit(f"v_add_f32 v{ACC + i}, v{ACC + i}, v{112 + i}")
    for i in range(4):
        emit(f"v_cvt_pk_bf16_f32 v{Qa + i}, v{ACC + 2 * i}, v{ACC + 2 * i + 1}")
    for i in range(4):
        emit(f"v_cvt_pk_bf16_f32 v{Qb + i}, v{ACC + 8 + 2 * i}, v{ACC + 8 + 2 * i + 1}")
    emit(f"v_mul_f32 v{vNa}, v{ACC}, v{ACC}", f"v_mul_f32 v{vNb}, v{ACC + 8}, v{ACC + 8}")
    for i in range(1, 8):
        emit(f"v_fmac_f32 v{vNa}, v{ACC + i}, v{ACC + i}", f"v_fmac_f32 v{vNb}, v{ACC + 8 + i}, v{ACC + 8 + i}")
    emit(f"v_mov_b32 v{vT0}, v{vNa}", f"v_mov_b32 v{vT1}, v{vNb}", "s_nop 1",
         f"v_permlane32_swap_b32 v{vNa}, v{vT0}", f"v_permlane32_swap_b32 v{vNb}, v{vT1}", "s_nop 1",
         f"v_add_f32 v{vNa}, v{vNa}, v{vT0}", f"v_add_f32 v{vNb}, v{vNb}, v{vT1}",
         f"v_max_f32 v{vNa}, v{vNa}, v{vNb}")


def reg_init():
    cmt("main-loop register init")
    for i in range(32):
        emit(f"v_mov_b32 v{Oa + i}, 0")
    for i in range(8):
        emit(f"v_mov_b32 v{S1 + 8 + i}, 0")
    emit(f"v_and_b32 v{vT0}, {27 if not OPT['one_row'] else 31}, v{vLane}",
         f"v_cmp_eq_u32 vcc, 16, v{vT0}", f"v_mov_b32 v{vT1}, 0x3f803f80", "s_nop 0",
         f"v_cndmask_b32 v{V0}, 0, v{vT1}, vcc")
    for i in range(1, 16):
        emit(f"v_mov_b32 v{V0 + i}, v{V0}")
    emit(f"v_mov_b32 v{IDX}, 0xdddddddd",
         f"v_mov_b32 v{AK}, v{vL16}",
         f"v_lshrrev_b32 v{vT0}, 5, v{vLane}", f"v_lshlrev_b32 v{vT0}, 8, v{vT0}",
         f"v_and_b32 v{vT1}, 15, v{vLane}", f"v_lshlrev_b32 v{vT1}, 4, v{vT1}", f"v_add_u32 v{AV}, v{vT0}, v{vT1}",
         "s_nop 0")


def kv_rest_loads():
    cmt("first key tile fragments; remaining K/V tiles -> LDS (waves 0..3: linear range 16384 + wave*28672)")
    emit(f"ds_read_b64 {vr(120, 2)}, v{vMisc}",
         f"ds_read_b128 {vr(KF, 4)}, v{AK}",
         f"s_mov_b64 exec, {sr(sVM, 2)}",
         f"ds_read_b128 {vr(V0, 4)}, v{AV} offset:1024", f"ds_read_b128 {vr(V1, 4)}, v{AV} offset:1536",
         "s_mov_b64 exec, -1")
    emit(f"s_cmp_ge_u32 s{sWave}, 4", "s_cbranch_scc1 L_rest_done",
         f"s_lshl_b32 s{sT0}, s{sB}, 17",
         f"s_mul_i32 s{sT1}, s{sWave}, 28672", f"s_add_u32 s{sT1}, s{sT1}, 16384", f"s_add_u32 s{sT2}, s{sT0}, s{sT1}",
         f"s_mov_b32 s{sCnt}, 7")
    lab("L_rest")
    emit(f"s_mov_b32 m0, s{sT1}", f"s_add_u32 s{sT1}, s{sT1}, 4096")
    for i in range(4):
        dma(vL16, S_WS, f"s{sT2}", imm=1024 * i, sc1=OPT['ld_sc1'])
    emit(f"s_add_u32 s{sT2}, s{sT2}, 4096", f"s_sub_u32 s{sCnt}, s{sCnt}, 1", f"s_cmp_lg_u32 s{sCnt}, 0", "s_cbranch_scc1 L_rest")
    lab("L_rest_done")


def start_attention():
    cmt("path decision, first key tile")
    emit("s_waitcnt lgkmcnt(0)",
         f"v_mfma_f32_32x32x16_bf16 {vr(S0, 16)}, {vr(KF, 4)}, {vr(Qa, 4)}, 0")
    t2 = struct.unpack("<I", struct.pack("<f", OPT["T2"]))[0]
    emit(f"v_mul_f32 v{vT0}, v{vNa}, v120", f"s_mov_b32 s{sT0}, {t2:#x}",
         f"v_cmp_nle_f32_e64 {sr(sMA, 2)}, v{vT0}, s{sT0}",
         f"s_mov_b32 s{sT1}, 0x53800000",
         f"v_cmp_nle_f32_e64 {sr(sMB, 2)}, v121, s{sT1}",
         f"s_mov_b32 s{sT1}, 0x2b800000",
         f"v_cmp_nge_f32_e64 {sr(sMC, 2)}, v121, s{sT1}",
         "s_nop 3",
         f"s_or_b64 {sr(sMA, 2)}, {sr(sMA, 2)}, {sr(sMB, 2)}",
         f"s_or_b64 {sr(sMA, 2)}, {sr(sMA, 2)}, {sr(sMC, 2)}")
    if OPT["force_slow"]:
        emit(f"s_mov_b64 {sr(sMA, 2)}, -1")
    emit(f"s_cmp_ge_u32 s{sWave}, 4", "s_cbranch_scc1 L_prio_g2", f"s_setprio {OPT['prio_g1']}",
         f"s_mov_b32 s{sI1}, 99", "s_branch L_prio_done")
    lab("L_prio_g2")
    emit(f"s_setprio {OPT['prio_g2']}", f"s_mov_b32 s{sI1}, {OPT['g2_drop']}")
    lab("L_prio_done")
    emit(f"s_cmp_lg_u64 {sr(sMA, 2)}, 0", "s_cbranch_scc1 L_slow")


def gate_factor():
    emit(f"v_and_b32 v{vT0}, 31, v{vLane}", f"v_lshlrev_b32 v{vT0}, 5, v{vT0}", f"v_add_u32 v{vT0}, {LDS_GP}, v{vT0}",
         f"ds_read_b128 {vr(112, 4)}, v{vT0}", f"ds_read_b128 {vr(116, 4)}, v{vT0} offset:16",
         f"s_mov_b32 s{sT0}, {NLOG2E:#x}", f"s_xor_b32 s{sT1}, s{sT0}, 0x80000000", f"s_cmp_eq_u32 s{sB}, 0",
         f"s_cselect_b32 s{sT0}, s{sT0}, s{sT1}",
         "s_waitcnt lgkmcnt(0)",
         f"v_add_f32 v112, v112, v113", f"v_add_f32 v114, v114, v115", f"v_add_f32 v116, v116, v117", f"v_add_f32 v118, v118, v119",
         f"v_add_f32 v112, v112, v114", f"v_add_f32 v116, v116, v118", f"v_add_f32 v112, v112, v116",
         f"v_mul_f32 v112, s{sT0}, v112", f"v_exp_f32 v112, v112", "s_nop 0", f"v_add_f32 v112, 1.0, v112",
         f"v_rcp_f32 v{vGate}, v112")


def wo_flag_load():
    emit(f"v_bfe_u32 v{vT0}, v{vLane}, 3, 2", f"v_xor_b32 v{vT0}, s{sM}, v{vT0}",
         f"v_and_b32 v{vT1}, 1, v{vT0}", f"v_lshlrev_b32 v{vT1}, 7, v{vT1}",
         f"v_lshrrev_b32 v{vT0}, 1, v{vT0}", f"v_lshlrev_b32 v{vT0}, 6, v{vT0}",
         f"v_and_b32 v{vT2}, 7, v{vLane}", f"v_lshlrev_b32 v{vT2}, 2, v{vT2}",
         f"v_add3_u32 v{vT0}, v{vT0}, v{vT1}, v{vT2}",
         f"s_lshr_b32 s{sT0}, s{sWave}, 2", f"s_lshl_b32 s{sT0}, s{sT0}, 5", f"s_add_u32 s{sT0}, s{sT0}, s{sM}",
         f"s_lshl_b32 s{sT0}, s{sT0}, 2", f"s_add_u32 s{sT0}, s{sT0}, {WS_WOFF}",
         f"v_lshlrev_b32 v{vT0}, 2, v{vT0}",
         f"buffer_load_dword v{vE0 + 12}, v{vT0}, {sr(S_WS, 4)}, s{sT0} offen sc1")


def xid_load():
    if not OPT["xcd_local"]:
        return
    emit(f"v_and_b32 v{vT1}, 3, v{vLane}", f"v_lshlrev_b32 v{vT1}, 5, v{vT1}",
         f"s_and_b32 s{sT1}, s2, 0xe7", f"s_lshl_b32 s{sT1}, s{sT1}, 2", f"s_add_u32 s{sT1}, s{sT1}, {WS_XID}",
         f"buffer_load_dword v{vE0 + 13}, v{vT1}, {sr(S_WS, 4)}, s{sT1} offen sc1")


def xid_check():
    if not OPT["xcd_local"]:
        emit(f"s_mov_b32 s{sLoc}, 0")
        return
    emit(f"s_getreg_b32 s{sT0}, hwreg(HW_REG_XCC_ID)", f"s_and_b32 s{sT0}, s{sT0}, 15", f"s_or_b32 s{sT0}, s{sT0}, 0x100",
         f"s_xor_b32 s{sT0}, s{sT0}, s{sNonce}",
         f"v_cmp_ne_u32_e64 {sr(sMA, 2)}, s{sT0}, v{vE0 + 13}", "s_nop 3",
         f"s_cmp_eq_u64 {sr(sMA, 2)}, 0", f"s_cselect_b32 s{sLoc}, 1, 0")


def wo_prefetch(tag):
    emit(f"s_mov_b32 s{sCnt}, {OPT['spin_limit']}")
    lab(f"L_wochk_{tag}")
    emit("s_waitcnt vmcnt(0)",
         f"v_cmp_ne_u32_e64 {sr(sMA, 2)}, s{sNonce}, v{vE0 + 12}", "s_nop 3",
         f"s_cmp_eq_u64 {sr(sMA, 2)}, 0", f"s_cbranch_scc1 L_wook_{tag}", "s_sleep 1")
    wo_flag_load()
    emit(f"s_sub_u32 s{sCnt}, s{sCnt}, 1", f"s_cmp_lg_u32 s{sCnt}, 0", f"s_cbranch_scc1 L_wochk_{tag}")
    spin_fail(2)
    lab(f"L_wook_{tag}")
    emit(f"s_and_b32 s{sT1}, s{sWave}, 3", f"s_lshl_b32 s{sT2}, s{sM}, 2", f"s_add_u32 s{sT1}, s{sT1}, s{sT2}",
         f"s_lshl_b32 s{sT1}, s{sT1}, 10",
         f"s_lshr_b32 s{sT2}, s{sWave}, 2", f"s_lshl_b32 s{sT2}, s{sT2}, 17",
         f"s_add_u32 s{sT1}, s{sT1}, s{sT2}", f"s_add_u32 s{sT1}, s{sT1}, {WS_WOF}")
    for j in range(4):
        emit(f"s_xor_b32 s{sT2}, s{sM}, {j}", f"s_and_b32 s{sT3}, s{sT2}, 1", f"s_lshl_b32 s{sT3}, s{sT3}, 19",
             f"s_lshr_b32 s{sT2}, s{sT2}, 1", f"s_lshl_b32 s{sT2}, s{sT2}, 18",
             f"s_add_u32 s{sT0}, s{sT1}, s{sT2}", f"s_add_u32 s{sT0}, s{sT0}, s{sT3}")
        for i in range(8):
            emit(f"buffer_load_dwordx4 {ar(4 * (8 * j + i), 4)}, v{vL16}, {sr(S_WS, 4)}, s{sT0} offen" + (" sc1" if OPT['ld_sc1'] else ""))
            if i < 7:
                emit(f"s_add_u32 s{sT0}, s{sT0}, 16384")


TB = 2048
POS = (2, 5, 11)


def phase(X, Y, QY, OX, OY, sh0, sh1, sh2, VA0, VA1, extra=None):
    for i in range(16):
        if i == POS[0]:
            emit(f"v_smfmac_f32_32x32x32_bf16 {vr(OY, 16)}, {vr(VA1, 4)}, {vr(Y + 8, 8)}, v{IDX}", *sh0)
        if i == POS[1]:
            emit(f"v_mfma_f32_32x32x16_bf16 {vr(Y, 16)}, {vr(KF, 4)}, {vr(QY, 4)}, 0", *sh1)
        if i == POS[2]:
            emit(f"v_smfmac_f32_32x32x32_bf16 {vr(OX, 16)}, {vr(VA0, 4)}, {vr(X, 8)}, v{IDX}", *sh2)
        if extra and i in extra:
            emit(*extra[i])
        emit(f"v_exp_f32 v{X + i}, v{X + i}")


def main_loop():
    cmt("attention, fast path")
    emit(f"s_mov_b32 s{sIter}, 0")
    emit(".p2align 6")
    lab("L_main")
    stamp_iter()
    emit(f"s_cmp_eq_u32 s{sIter}, 1", "s_cbranch_scc1 L_blk_1", f"s_cmp_eq_u32 s{sIter}, 2", "s_cbranch_scc1 L_blk_2")
    lab("L_main_go")
    for t in range(8):
        if t == 6:
            emit(f"s_cmp_eq_u32 s{sIter}, 0", "s_cbranch_scc1 L_blk_bar")
            lab("L_main_t6")
        if t == OPT["g2_drop_tile"]:
            emit(f"s_cmp_eq_u32 s{sIter}, s{sI1}", "s_cbranch_scc1 L_blk_prio")
            lab("L_main_tp")
        c0, c1 = (V0, V1) if t % 2 == 0 else (V0b, V1b)
        n0, n1 = (V0b, V1b) if t % 2 == 0 else (V0, V1)
        both = [f"s_mov_b64 exec, {sr(sVM, 2)}",
                f"ds_read_b128 {vr(n0, 4)}, v{AV} offset:{(t + 1) * TB + 1024}",
                f"ds_read_b128 {vr(n1, 4)}, v{AV} offset:{(t + 1) * TB + 1536}",
                "s_mov_b64 exec, -1"]
        sh1 = [f"ds_read_b128 {vr(KF, 4)}, v{AK} offset:{(t + 1) * TB}"]
        phase(S0, S1, Qb, Oa, Ob, both, sh1, [], c0, n1)
        phase(S1, S0, Qa, Ob, Oa, ["s_waitcnt lgkmcnt(0)"], [], [], c0, c1)
    emit(f"v_add_u32 v{AK}, 0x4000, v{AK}", f"v_add_u32 v{AV}, 0x4000, v{AV}",
         f"s_add_u32 s{sIter}, s{sIter}, 1", f"s_cmp_lt_u32 s{sIter}, 8", "s_cbranch_scc1 L_main")
    emit("s_nop 1", f"v_smfmac_f32_32x32x32_bf16 {vr(Ob, 16)}, {vr(V1b, 4)}, {vr(S1 + 8, 8)}, v{IDX}")
    lab("L_epi")


def main_blocks():
    lab("L_blk_1")
    xid_load()
    wo_flag_load()
    emit("s_branch L_main_go")
    lab("L_blk_2")
    gate_factor()
    emit("s_waitcnt vmcnt(0)")
    xid_check()
    wo_prefetch("f")
    emit("s_branch L_main_go")
    lab("L_blk_bar")
    emit("s_waitcnt vmcnt(0)", "s_barrier")
    wof_flag()
    emit("s_branch L_main_t6")
    lab("L_blk_prio")
    emit("s_setprio 0", "s_branch L_main_tp")


def slow_path():
    cmt("attention, true-max path (online softmax)")
    lab("L_slow")
    emit(f"v_mov_b32 v{vMa}, 0xff800000", f"v_mov_b32 v{vMb}, 0xff800000", f"s_mov_b32 s{sIter}, 0")
    lab("L_slow_loop")
    emit(f"s_cmp_eq_u32 s{sIter}, 6", "s_cbranch_scc0 L_slow_nb", "s_waitcnt vmcnt(0)", "s_barrier")
    wof_flag()
    lab("L_slow_nb")
    emit(f"ds_read_b128 {vr(KF, 4)}, v{AK}",
         f"s_mov_b64 exec, {sr(sVM, 2)}",
         f"ds_read_b128 {vr(V0, 4)}, v{AV} offset:1024", f"ds_read_b128 {vr(V1, 4)}, v{AV} offset:1536",
         "s_mov_b64 exec, -1", "s_waitcnt lgkmcnt(0)")
    for (Q, O, M) in ((Qa, Oa, vMa), (Qb, Ob, vMb)):
        emit(f"v_mfma_f32_32x32x16_bf16 {vr(S0, 16)}, {vr(KF, 4)}, {vr(Q, 4)}, 0", "s_nop 15",
             f"v_max3_f32 v{vT0}, v{S0}, v{S0 + 1}, v{S0 + 2}")
        for i in range(3, 15, 2):
            emit(f"v_max3_f32 v{vT0}, v{vT0}, v{S0 + i}, v{S0 + i + 1}")
        emit(f"v_max_f32 v{vT0}, v{vT0}, v{S0 + 15}", "s_nop 0", f"v_mov_b32 v{vT1}, v{vT0}", "s_nop 1",
             f"v_permlane32_swap_b32 v{vT0}, v{vT1}", "s_nop 1",
             f"v_max3_f32 v{vT0}, v{vT0}, v{vT1}, v{M}",
             f"v_sub_f32 v{vT1}, v{M}, v{vT0}", f"v_exp_f32 v{vT1}, v{vT1}", f"v_mov_b32 v{M}, v{vT0}")
        for i in range(9):
            emit(f"v_mul_f32 v{O + i}, v{vT1}, v{O + i}")
        for i in range(16):
            emit(f"v_sub_f32 v{S0 + i}, v{S0 + i}, v{vT0}")
        for i in range(16):
            emit(f"v_exp_f32 v{S0 + i}, v{S0 + i}")
        emit("s_nop 1",
             f"v_smfmac_f32_32x32x32_bf16 {vr(O, 16)}, {vr(V0, 4)}, {vr(S0, 8)}, v{IDX}",
             f"v_smfmac_f32_32x32x32_bf16 {vr(O, 16)}, {vr(V1, 4)}, {vr(S0 + 8, 8)}, v{IDX}")
    emit(f"v_add_u32 v{AK}, {TB}, v{AK}", f"v_add_u32 v{AV}, {TB}, v{AV}",
         f"s_add_u32 s{sIter}, s{sIter}, 1", f"s_cmp_lt_u32 s{sIter}, 64", "s_cbranch_scc1 L_slow_loop")
    gate_factor()
    emit(f"s_mov_b32 s{sLoc}, 0")
    wo_flag_load()
    wo_prefetch("s")
    emit("s_branch L_epi")


def tail():
    cmt("normalise, gate, publish O fragments (global for the partners, LDS for ourselves)")
    emit("s_nop 15")
    P = 112
    for k, O in enumerate((Oa, Ob)):
        if OPT["one_row"]:
            emit(f"v_mov_b32 v{vT1}, v{O + 8}", "s_nop 1", f"v_permlane32_swap_b32 v{O + 8}, v{vT1}", "s_nop 1")
        emit(f"v_rcp_f32 v{vT0}, v{O + 8}", "s_nop 0", f"v_mul_f32 v{vT0}, v{vT0}, v{vGate}")
        for i in range(8):
            emit(f"v_mul_f32 v{O + i}, v{vT0}, v{O + i}")
        for i in range(4):
            emit(f"v_cvt_pk_bf16_f32 v{P + 4 * k + i}, v{O + 2 * i}, v{O + 2 * i + 1}")
    emit(f"s_lshl_b32 s{sT1}, s{sB}, 15", f"s_lshl_b32 s{sT2}, s{sHH}, 14", f"s_add_u32 s{sT1}, s{sT1}, s{sT2}",
         f"s_lshl_b32 s{sT2}, s{sWave}, 11", f"s_add_u32 s{sT1}, s{sT1}, s{sT2}",
         f"s_lshl_b32 s{sT0}, s{sRB}, 16", f"s_add_u32 s{sT0}, s{sT0}, s{sT1}", f"s_add_u32 s{sT0}, s{sT0}, {WS_OF}",
         f"buffer_store_dwordx4 {vr(P, 4)}, v{vL16}, {sr(S_WS, 4)}, s{sT0} offen sc1",
         f"buffer_store_dwordx4 {vr(P + 4, 4)}, v{vL16}, {sr(S_WS, 4)}, s{sT0} offen offset:1024 sc1")
    emit(f"v_add_u32 v{vT0}, s{sT1}, v{vL16}",
         f"s_lshl_b32 s{sT4}, s{sRB}, 7", f"s_add_u32 s{sT4}, s{sT4}, {WS_OFL}",
         f"s_lshl_b32 s{sT1}, s{sM}, 3", f"s_add_u32 s{sT1}, s{sT1}, s{sWave}", f"s_lshl_b32 s{sT1}, s{sT1}, 2", f"s_add_u32 s{sT1}, s{sT1}, s{sT4}",
         f"v_mov_b32 v{vT2}, s{sNonce}", f"v_mov_b32 v{vT1}, 0",
         "s_waitcnt vmcnt(0)", "s_mov_b64 exec, 1",
         f"buffer_store_dword v{vT2}, v{vT1}, {sr(S_WS, 4)}, s{sT1} offen sc1", "s_mov_b64 exec, -1",
         "s_barrier",
         f"ds_write_b128 v{vT0}, {vr(P, 4)}", f"ds_write_b128 v{vT0}, {vr(P + 4, 4)} offset:1024",
         "s_waitcnt lgkmcnt(0)", "s_barrier")
    stamp(6)
    ACC = 16
    FR = 48

    def bbase(j, dst):
        emit(f"s_xor_b32 s{sT2}, s{sM}, {j}", f"s_and_b32 s{sT3}, s{sT2}, 1", f"s_lshl_b32 s{sT3}, s{sT3}, 15",
             f"s_lshr_b32 s{sT2}, s{sT2}, 1", f"s_lshl_b32 s{sT2}, s{sT2}, 14", f"s_add_u32 s{sT2}, s{sT2}, s{sT3}",
             f"s_lshr_b32 s{sT3}, s{sWave}, 2", f"s_lshl_b32 s{sT3}, s{sT3}, 13", f"s_add_u32 s{sT2}, s{sT2}, s{sT3}",
             f"v_add_u32 v{dst}, s{sT2}, v{vL16}")

    def mm8(j, addr):
        for i in range(8):
            emit(f"ds_read_b128 {vr(FR + 4 * i, 4)}, v{addr} offset:{i * 1024}")
        for i in range(8):
            acc = ACC + 16 * (i & 1)
            emit(f"s_waitcnt lgkmcnt({7 - i})",
                 f"v_mfma_f32_32x32x16_bf16 {vr(acc, 16)}, {ar(4 * (8 * j + i), 4)}, {vr(FR + 4 * i, 4)}, {'0' if (j == 0 and i < 2) else vr(acc, 16)}")

    for j in range(4):
        bbase(j, 80 + j)
    for j in range(1, 4):
        emit(f"s_xor_b32 s{sT2}, s{sM}, {j}", f"s_and_b32 s{sT3}, s{sT2}, 1", f"s_lshl_b32 s{sT3}, s{sT3}, 15",
             f"s_lshr_b32 s{sT2}, s{sT2}, 1", f"s_lshl_b32 s{sT2}, s{sT2}, 14", f"s_add_u32 s{sT2}, s{sT2}, s{sT3}",
             f"s_lshl_b32 s{sT3}, s{sWave}, 11", f"s_add_u32 s{4 + j}, s{sT2}, s{sT3}",
             f"s_lshl_b32 s{sT0}, s{sRB}, 16", f"s_add_u32 s{sT0}, s{sT0}, s{4 + j}", f"s_add_u32 s{8 + j}, s{sT0}, {WS_OF}")
    mm8(0, 80)
    emit(f"s_cmp_eq_u32 s{sWave}, 0", "s_cbranch_scc0 L_ofl_done",
         f"v_and_b32 v{vT1}, 31, v{vLane}", f"v_lshlrev_b32 v{vT1}, 2, v{vT1}",
         f"s_mov_b32 s{sCnt}, {OPT['spin_limit']}")
    lab("L_ofl")
    emit(f"buffer_load_dword v{vT2}, v{vT1}, {sr(S_WS, 4)}, s{sT4} offen sc1", "s_waitcnt vmcnt(0)",
         f"v_cmp_ne_u32_e64 {sr(sMA, 2)}, s{sNonce}, v{vT2}", "s_nop 3",
         f"s_cmp_eq_u64 {sr(sMA, 2)}, 0", "s_cbranch_scc1 L_ofl_done",
         f"s_sub_u32 s{sCnt}, s{sCnt}, 1", f"s_cmp_lg_u32 s{sCnt}, 0", "s_cbranch_scc1 L_ofl")
    spin_fail(3)
    lab("L_ofl_done")
    emit("s_barrier")
    stamp(7)
    for j in range(1, 4):
        emit(f"s_mov_b32 m0, s{4 + j}", "s_nop 0")
        dma(vL16, S_WS, f"s{8 + j}", sc1=OPT['ld_sc1'])
        dma(vL16, S_WS, f"s{8 + j}", imm=1024, sc1=OPT['ld_sc1'])
    for j in range(1, 4):
        emit(f"s_waitcnt vmcnt({2 * (3 - j)})", "s_barrier")
        mm8(j, 80 + j)
    stamp(8)
    emit(f"s_lshl_b32 s{sT0}, s{sWave}, 11", f"s_add_u32 s{sT0}, s{sT0}, {LDS_RED}",
         f"s_xor_b32 s{sT1}, s{sWave}, 4", f"s_lshl_b32 s{sT1}, s{sT1}, 11", f"s_add_u32 s{sT1}, s{sT1}, {LDS_RED}",
         f"v_add_u32 v{vT0}, s{sT0}, v{vL16}", f"v_add_u32 v{vT3}, s{sT1}, v{vL16}",
         f"v_and_b32 v{vT1}, 31, v{vLane}", f"v_lshlrev_b32 v{vT1}, 10, v{vT1}",
         f"v_lshrrev_b32 v{vT2}, 5, v{vLane}", f"v_lshlrev_b32 v{vT2}, 3, v{vT2}", f"v_add_u32 v{vT1}, v{vT1}, v{vT2}",
         f"s_lshl_b32 s{sT0}, s{sM}, 8", f"s_and_b32 s{sT1}, s{sWave}, 3", f"s_lshl_b32 s{sT1}, s{sT1}, 6",
         f"s_add_u32 s{sT0}, s{sT0}, s{sT1}", f"s_add_u32 s{sT0}, s{sT0}, s{sXbase}",
         "s_nop 7")
    for i in range(16):
        emit(f"v_add_f32 v{ACC + i}, v{ACC + i}, v{ACC + 16 + i}")
    emit(f"s_cmp_ge_u32 s{sWave}, 4", "s_cbranch_scc1 L_red_hi")
    for hi in (0, 1):
        if hi:
            lab("L_red_hi")
        give = 8 if hi == 0 else 0
        keep = 0 if hi == 0 else 8
        emit(f"ds_write_b128 v{vT0}, {vr(ACC + give, 4)}", f"ds_write_b128 v{vT0}, {vr(ACC + give + 4, 4)} offset:1024",
             "s_waitcnt lgkmcnt(0)", "s_barrier",
             f"ds_read_b128 {vr(48, 4)}, v{vT3}", f"ds_read_b128 {vr(52, 4)}, v{vT3} offset:1024",
             "s_waitcnt lgkmcnt(0)")
        for i in range(8):
            emit(f"v_add_f32 v{ACC + keep + i}, v{ACC + keep + i}, v{48 + i}")
        for i in range(4):
            emit(f"v_cvt_pk_bf16_f32 v{64 + i}, v{ACC + keep + 2 * i}, v{ACC + keep + 2 * i + 1}")
        for q in range(2):
            o = (keep // 4 + q) * 16
            emit(f"buffer_store_dwordx2 {vr(64 + 2 * q, 2)}, v{vT1}, {sr(S_OUT, 4)}, s{sT0} offen" + (f" offset:{o}" if o else "") + (" " + OPT["out_pol"] if OPT["out_pol"] else ""))
        if hi == 0:
            emit(f"s_or_b32 s{sT0}, s2, s{sWave}", f"s_cmp_eq_u32 s{sT0}, 0", "s_cbranch_scc0 L_fin",
                 f"v_mov_b32 v{vT0}, s{sNonce}", f"v_mov_b32 v{vT1}, 0", f"s_mov_b32 s{sT0}, {WS_W}", "s_mov_b64 exec, 1",
                 f"buffer_store_dword v{vT0}, v{vT1}, {sr(S_WS, 4)}, s{sT0} offen sc1", "s_mov_b64 exec, -1", "s_branch L_fin")
    lab("L_fin")
    stamp(9)
    emit("s_waitcnt vmcnt(0)")
    lab("L_end")
    emit("s_endpgm")


def build():
    prologue()
    stamp(0)
    front()
    stamp(1)
    q_proj()
    q_finish()
    stamp(2)
    wof_task()
    barrier_a()
    stamp(3)
    kv_rest_loads()
    start_attention()
    stamp(4)
    main_loop()
    stamp(5)
    tail()
    main_blocks()
    slow_path()


HEADER = open(os.path.join(os.path.dirname(os.path.abspath(__file__)), "cdna_kernels", NAME + ".s.ref")).read().split("; Override launch")[0]


def render():
    build()
    out = [HEADER.rstrip("\n"),
           "; Override launch geometry by editing the next line (default: block=256,",
           "; grid=ceil(out_elems/256), lds=0). Harness parses it; keep it on one line.",
           f"; @launch grid=(256,1,1) block=(512,1,1) lds={LDS_TOTAL}",
           '.amdgcn_target "amdgcn-amd-amdhsa--gfx950"', ".text", f".globl {NAME}_kernel", ".p2align 8",
           f".type {NAME}_kernel,@function", f"{NAME}_kernel:"]
    for l in L:
        if l.endswith(":") or l.startswith(";") or l.startswith("."):
            out.append(l)
        else:
            out.append("    " + l)
    out += ['.section .rodata,"a"', ".p2align 6", f".amdhsa_kernel {NAME}_kernel",
            "  .amdhsa_next_free_vgpr 256", "  .amdhsa_next_free_sgpr 102", "  .amdhsa_accum_offset 128",
            "  .amdhsa_group_segment_fixed_size 0", "  .amdhsa_kernarg_size 112", "  .amdhsa_user_sgpr_count 2",
            "  .amdhsa_user_sgpr_kernarg_segment_ptr 1", "  .amdhsa_system_sgpr_workgroup_id_x 1",
            ".end_amdhsa_kernel", ""]
    return "\n".join(out)


if __name__ == "__main__":
    dst = os.environ.get("OUT", os.path.join(os.path.dirname(os.path.abspath(__file__)), "cdna_kernels", NAME + ".s"))
    open(dst, "w").write(render())
    print("wrote", dst, len(L), "lines")
```

```python
import sys, os, struct

NAME = "gated_mix__grouped_kv_mqa__grouped_kv_mqa__prompt"

OPT = dict(
    spin_limit=1 << 18,
    force_slow=False,
    stamps=False,
    ld_sc1=False,
    q_exp=0,
    out_pol='',
    poll_blk=2, poll_step=2,
    late_pf=0,
    xcd_local=0,
    loc_pol='',
    loc_mode=3,
    one_row=0,
    tlb_touch=0,
    dbg_stamps=0,
    T2=1600.0,
    prio_g1=0,
    prio_g2=1,
    g2_drop=6,
    g2_drop_tile=5,
)
for a in sys.argv[1:]:
    if "=" in a:
        k, v = a.split("=", 1)
        if k in OPT:
            OPT[k] = type(OPT[k])(eval(v))
        else:
            raise SystemExit("unknown option " + k)

LDS_WK = 0
LDS_WV = 16384
LDS_WQ = 32768
LDS_XT = 98304
XP = 1040
LDS_GW = LDS_XT + 32 * XP
LDS_WOS = LDS_GW + 1024
LDS_GP = LDS_WOS + 4096
LDS_MISC = LDS_GP + 1024
LDS_TOTAL = LDS_MISC + 256
LDS_OG = 0
LDS_RED = 65536
M_KMAX, M_VMAX, M_FKV, M_FXB, M_FQG1, M_FQD, M_RD = 0, 4, 8, 12, 16, 20, 32

WS_KV = 0
WS_FLAG = 0x40000
WS_KVF = WS_FLAG
WS_WOFF = WS_FLAG + 4096
WS_OFL = WS_FLAG + 0x8000
WS_XID = WS_FLAG + 12288
WS_W = WS_FLAG + 16384
WS_WOF = 0x80000
WS_OF = 0x200000
WS_SIZE = 0x600000

CSCALE = 0x3EB8AA3B
NLOG2E = 0xBFB8AA3B

S_X, S_WQ, S_WK, S_WV, S_WO, S_GW, S_OUT, S_WS = 32, 36, 40, 44, 48, 52, 56, 60
sWave, sRB, sM, sB, sHH, sRot, sNonce = 64, 65, 66, 67, 68, 69, 70
sT0, sT1, sT2, sT3, sT4, sT5 = 71, 72, 73, 74, 75, 76
sS, sK, sSl, sRing, sQoff, sIter = 77, 78, 79, 82, 83, 84
sVM = 80
sXbase = 85
sCnt = 86
sRD = 87
sI1, sI2 = 98, 99
sLoc = 87
sW = 3

sFl, sFB = 100, 101
sMA, sMB = 88, 90
sMC, sMD = 92, 94
sSt = 96

vLane, vL16, vGate, vT0, vT1, vT2, vT3 = 1, 2, 3, 4, 5, 6, 7
Qa, Qb = 8, 12
Oa, Ob = 16, 32
S0, S1 = 48, 64
KF = 80
V0, V1, V0b, V1b = 84, 88, 92, 96
IDX, AK, AV = 100, 101, 102
vNon = 103
vXB, vWA, vA, vMisc = 104, 105, 106, 107
vMa, vMb = 108, 109
vNa, vNb = 110, 111
vGA = 108
vE0 = 112
vRDa, vRDv = 122, 123

L = []
_uid = [0]


def uid():
    _uid[0] += 1
    return _uid[0]


def emit(*lines):
    for l in lines:
        L.append(l)


def lab(name):
    L.append(name + ":")


def vr(b, n):
    return f"v[{b}:{b + n - 1}]"


def ar(b, n):
    return f"a[{b}:{b + n - 1}]"


def sr(b, n):
    return f"s[{b}:{b + n - 1}]"


def cmt(s):
    L.append(f"; ---- {s}")


def stamp(i):
    if not OPT["stamps"]:
        return

    def one(instr, slot):
        emit(f"{instr} {sr(sSt, 2)}", "s_waitcnt lgkmcnt(0)",
             f"s_lshl_b32 s{sSt + 1}, s2, 3", f"s_add_u32 s{sSt + 1}, s{sSt + 1}, s{sWave}", f"s_lshl_b32 s{sSt + 1}, s{sSt + 1}, 7",
             f"s_add_u32 s{sSt + 1}, s{sSt + 1}, {0x700000 + 4 * slot}",
             f"v_mov_b32 v{vE0 + 14}, s{sSt}", f"v_mov_b32 v{vE0 + 15}, s{sSt + 1}",
             f"global_store_dword v{vE0 + 15}, v{vE0 + 14}, s[30:31]")
    one("s_memrealtime", i)
    if i in (0, 9):
        one("s_memtime", 14 if i == 0 else 15)
    if i in (24, 25, 4, 5):
        one("s_memtime", {24: 28, 25: 29, 4: 30, 5: 31}[i])


def dstamp(i, cyc=False):
    if not OPT["dbg_stamps"]:
        return
    n = uid()
    emit(f"s_cmp_eq_u32 s2, {OPT['dbg_stamps'] - 1}", f"s_cbranch_scc0 L_ds{n}", f"s_cmp_eq_u32 s{sWave}, 4", f"s_cbranch_scc0 L_ds{n}",
         f"{'s_memtime' if cyc else 's_memrealtime'} {sr(sSt, 2)}", "s_waitcnt lgkmcnt(0)",
         f"v_mov_b32 v{vE0 + 14}, s{sSt}", f"v_mov_b32 v{vE0 + 15}, {4 * i}",
         f"global_store_dword v{vE0 + 15}, v{vE0 + 14}, s[28:29]")
    lab(f"L_ds{n}")


def stamp_iter():
    if not OPT["stamps"]:
        return
    emit(f"s_memrealtime {sr(sSt, 2)}", "s_waitcnt lgkmcnt(0)",
         f"s_lshl_b32 s{sSt + 1}, s2, 3", f"s_add_u32 s{sSt + 1}, s{sSt + 1}, s{sWave}", f"s_lshl_b32 s{sSt + 1}, s{sSt + 1}, 5",
         f"s_add_u32 s{sSt + 1}, s{sSt + 1}, s{sIter}", f"s_lshl_b32 s{sSt + 1}, s{sSt + 1}, 2",
         f"s_add_u32 s{sSt + 1}, s{sSt + 1}, {0x700000 + 64}",
         f"v_mov_b32 v{vE0 + 14}, s{sSt}", f"v_mov_b32 v{vE0 + 15}, s{sSt + 1}",
         f"global_store_dword v{vE0 + 15}, v{vE0 + 14}, s[30:31]")


def dma(vaddr, srd, soff, m0expr=None, imm=0, sc1=False):
    if m0expr is not None:
        emit(f"s_mov_b32 m0, {m0expr}", "s_nop 0")
    s = f"buffer_load_dwordx4 v{vaddr}, {sr(srd, 4)}, {soff} offen"
    if imm:
        s += f" offset:{imm}"
    if sc1:
        s += " sc1"
    emit(s + " lds")


def spin_fail(code):
    emit(f"v_mov_b32 v{vT0}, {code}", f"v_mov_b32 v{vT1}, 60", f"global_store_dword v{vT1}, v{vT0}, s[28:29]")


def lds_wait(off, val, addr=None):
    n = uid()
    a = f"v{vMisc} offset:{off}" if addr is None else f"v{addr}"
    emit(f"s_mov_b32 s{sCnt}, {OPT['spin_limit']}")
    lab(f"L_lw{n}")
    emit(f"ds_read_b32 v{vT2}, {a}", "s_waitcnt lgkmcnt(0)", f"v_readfirstlane_b32 s{sT5}, v{vT2}", "s_nop 1",
         f"s_cmp_ge_u32 s{sT5}, {val}", f"s_cbranch_scc1 L_lwd{n}", "s_sleep 1",
         f"s_sub_u32 s{sCnt}, s{sCnt}, 1", f"s_cmp_lg_u32 s{sCnt}, 0", f"s_cbranch_scc1 L_lw{n}")
    spin_fail(8 + off)
    lab(f"L_lwd{n}")


def lds_add(off, val, addr=None):
    a = f"v{vMisc}, v{vT2} offset:{off}" if addr is None else f"v{addr}, v{vT2}"
    emit(f"v_mov_b32 v{vT2}, {val}", "s_mov_b64 exec, 1", f"ds_add_u32 {a}", "s_mov_b64 exec, -1")


def prologue():
    cmt("prologue")
    emit("s_cmp_ge_u32 s2, 256", "s_cbranch_scc1 L_end",
         "s_load_dwordx16 s[4:19], s[0:1], 0",
         "s_load_dwordx8 s[20:27], s[0:1], 64",
         "s_load_dwordx4 s[28:31], s[0:1], 96",
         f"v_lshrrev_b32 v{vT0}, 6, v0",
         f"v_and_b32 v{vLane}, 63, v0",
         f"s_and_b32 s3, s2, 7",
         f"v_readfirstlane_b32 s{sWave}, v{vT0}",
         f"s_lshr_b32 s{sRB}, s2, 5",
         f"s_lshl_b32 s{sRot}, s{sRB}, 2",
         f"s_lshl_b32 s{sRB}, s{sRB}, 3",
         f"s_add_u32 s{sRB}, s{sRB}, s3",
         f"s_lshr_b32 s{sM}, s2, 3",
         f"s_and_b32 s{sM}, s{sM}, 3",
         f"s_and_b32 s{sB}, s{sM}, 1",
         f"s_lshr_b32 s{sHH}, s{sM}, 1",
         f"v_lshlrev_b32 v{vL16}, 4, v{vLane}",
         f"s_lshl_b32 s{sXbase}, s{sRB}, 15",
         f"s_lshl_b32 s{sT0}, s{sHH}, 4", f"s_lshl_b32 s{sT1}, s{sWave}, 1", f"s_add_u32 s{sT0}, s{sT0}, s{sT1}",
         f"s_mul_i32 s{sT1}, s{sT0}, {XP}", f"s_add_u32 s{sT1}, s{sT1}, {LDS_XT}",
         f"s_lshl_b32 s{sT2}, s{sT0}, 10", f"s_add_u32 s{sT2}, s{sT2}, s{sXbase}",
         f"s_xor_b32 s{sT0}, s{sT0}, 16",
         f"s_mul_i32 s{sT3}, s{sT0}, {XP}", f"s_add_u32 s{sT3}, s{sT3}, {LDS_XT}",
         f"s_lshl_b32 s{sT4}, s{sT0}, 10", f"s_add_u32 s{sT4}, s{sT4}, s{sXbase}",
         f"v_lshrrev_b32 v{vT0}, 2, v{vLane}", f"v_lshlrev_b32 v{vT0}, 10, v{vT0}",
         f"v_and_b32 v{vT1}, 3, v{vLane}", f"v_lshlrev_b32 v{vT1}, 4, v{vT1}",
         f"v_add_u32 v{vA}, v{vT0}, v{vT1}",
         f"s_lshl_b32 s{sQoff}, s{sHH}, 9", f"s_lshl_b32 s{sT0}, s{sWave}, 6", f"s_add_u32 s{sQoff}, s{sQoff}, s{sT0}",
         f"s_lshl_b32 s{sRing}, s{sWave}, 13", f"s_add_u32 s{sRing}, s{sRing}, {LDS_WQ}",
         f"s_mov_b32 s{S_X + 2}, 0x200000", f"s_mov_b32 s{S_X + 3}, 0x20000",
         f"s_mov_b32 s{S_WQ + 2}, 0x80000", f"s_mov_b32 s{S_WQ + 3}, 0x20000",
         f"s_cmp_eq_u32 s{sB}, 0",
         "s_waitcnt lgkmcnt(0)",
         f"s_mov_b32 s{S_X}, s4", f"s_mov_b32 s{S_X + 1}, s5",
         f"s_cselect_b32 s{S_WQ}, s6, s16", f"s_cselect_b32 s{S_WQ + 1}, s7, s17",
         f"s_cselect_b32 s{S_WK}, s8, s18", f"s_cselect_b32 s{S_WK + 1}, s9, s19",
         f"s_cselect_b32 s{S_WV}, s10, s20", f"s_cselect_b32 s{S_WV + 1}, s11, s21")
    stamp(26)
    dstamp(0)
    for i in range(2):
        emit(f"s_mov_b32 m0, s{sT1}", f"s_add_u32 s{sT1}, s{sT1}, {XP}")
        dma(vL16, S_X, f"s{sT2}")
        if i < 1:
            emit(f"s_add_u32 s{sT2}, s{sT2}, 1024")
    emit(f"s_mov_b32 s{S_WK + 2}, 0x4000", f"s_mov_b32 s{S_WK + 3}, 0x20000",
         f"s_mov_b32 s{S_WV + 2}, 0x4000", f"s_mov_b32 s{S_WV + 3}, 0x20000",
         f"s_lshr_b32 s{sT0}, s2, 4", f"s_add_u32 s{sT0}, s{sT0}, s{sWave}", f"s_and_b32 s{sT0}, s{sT0}, 7",
         f"s_lshl_b32 s{sT0}, s{sT0}, 11",
         f"s_add_u32 s{sT1}, s{sT0}, {LDS_WK}", f"s_mov_b32 m0, s{sT1}", f"s_add_u32 s{sT1}, s{sT0}, {LDS_WV}")
    dma(vL16, S_WK, f"s{sT0}")
    dma(vL16, S_WK, f"s{sT0}", imm=1024)
    emit(f"s_mov_b32 m0, s{sT1}", "s_nop 0")
    dma(vL16, S_WV, f"s{sT0}")
    dma(vL16, S_WV, f"s{sT0}", imm=1024)
    for i in range(2):
        emit(f"s_mov_b32 m0, s{sT3}", f"s_add_u32 s{sT3}, s{sT3}, {XP}")
        dma(vL16, S_X, f"s{sT4}")
        if i < 1:
            emit(f"s_add_u32 s{sT4}, s{sT4}, 1024")
    emit(f"s_cmp_eq_u32 s{sWave}, 2", "s_cbranch_scc0 L_nogw",
         f"s_mov_b32 s{S_GW}, s24", f"s_mov_b32 s{S_GW + 1}, s25", f"s_mov_b32 s{S_GW + 2}, 0x400", f"s_mov_b32 s{S_GW + 3}, 0x20000")
    dma(vL16, S_GW, "0", m0expr=str(LDS_GW))
    lab("L_nogw")
    emit(f"s_load_dword s{sW}, s[30:31], {WS_W:#x}")


def wq_fetch(n):
    for i in range(n):
        emit(f"s_mov_b32 m0, s{sK}", f"s_add_u32 s{sSl}, s{sSl}, 16384", f"s_and_b32 s{sSl}, s{sSl}, 0x7ffff")
        dma(vA, S_WQ, f"s{sSl}")
        emit(f"s_add_u32 s{sK}, s{sK}, 1024")


def nonce():
    emit(f"s_mul_i32 s{sNonce}, s{sW}, 0x9E3779B1", f"s_add_u32 s{sNonce}, s{sNonce}, 0x7F4A7C15")


def front():
    def prefill():
        cmt("wq slots 0..7")
        emit(f"s_add_u32 s{sSl}, s{sRot}, 31", f"s_and_b32 s{sSl}, s{sSl}, 31", f"s_lshl_b32 s{sSl}, s{sSl}, 14",
             f"s_add_u32 s{sSl}, s{sSl}, s{sQoff}", f"s_mov_b32 s{sK}, s{sRing}", f"s_mov_b32 s{sCnt}, 8")
        lab("L_pf")
        wq_fetch(1)
        emit(f"s_sub_u32 s{sCnt}, s{sCnt}, 1", f"s_cmp_lg_u32 s{sCnt}, 0", "s_cbranch_scc1 L_pf")

    def wo_block():
        cmt("wave 3: wo block of the WOF task: rows head_t*16 + 4i + (l>>4), cols q_t*128")
        emit(f"s_cmp_eq_u32 s{sWave}, 3", "s_cbranch_scc0 L_nowo",
             f"v_lshrrev_b32 v{vT0}, 4, v{vLane}", f"v_lshlrev_b32 v{vT0}, 10, v{vT0}",
             f"v_and_b32 v{vT1}, 15, v{vLane}", f"v_lshlrev_b32 v{vT1}, 4, v{vT1}", f"v_add_u32 v{vT0}, v{vT0}, v{vT1}",
             f"s_lshr_b32 s{sT0}, s2, 2", f"s_and_b32 s{sT0}, s{sT0}, 31", f"s_lshl_b32 s{sT0}, s{sT0}, 14",
             f"s_and_b32 s{sT1}, s2, 3", f"s_lshl_b32 s{sT1}, s{sT1}, 8", f"s_add_u32 s{sT0}, s{sT0}, s{sT1}")
        for i in range(4):
            dma(vT0, S_WO, f"s{sT0}", m0expr=str(LDS_WOS + i * 1024))
            if i < 3:
                emit(f"s_add_u32 s{sT0}, s{sT0}, 4096")
        lab("L_nowo")

    if not (OPT["late_pf"] & 1):
        prefill()
    emit(f"s_mov_b32 s{S_WS}, s30", f"s_mov_b32 s{S_WS + 1}, s31", f"s_mov_b32 s{S_WS + 2}, {WS_SIZE}", f"s_mov_b32 s{S_WS + 3}, 0x20000",
         f"s_mov_b32 s{S_OUT}, s26", f"s_mov_b32 s{S_OUT + 1}, s27", f"s_mov_b32 s{S_OUT + 2}, 0x200000", f"s_mov_b32 s{S_OUT + 3}, 0x20000",
         f"s_cmp_lt_u32 s2, 128",
         f"s_cselect_b32 s{S_WO}, s12, s22", f"s_cselect_b32 s{S_WO + 1}, s13, s23",
         f"s_mov_b32 s{S_WO + 2}, 0x80000", f"s_mov_b32 s{S_WO + 3}, 0x20000",
         f"s_mov_b32 s{sVM}, 0x0000ffff", f"s_mov_b32 s{sVM + 1}, 0x0000ffff",
         f"v_mov_b32 v{vMisc}, {LDS_MISC}")
    if not (OPT["late_pf"] & 3):
        wo_block()
    if OPT["tlb_touch"]:
        cmt("wave 6: one dword from every page this workgroup writes later (translation warm-up; the values are unused)")
        emit(f"s_cmp_eq_u32 s{sWave}, 6", "s_cbranch_scc0 L_notouch", f"v_mov_b32 v{vT0}, 0", "s_mov_b64 exec, 1",
             f"s_lshl_b32 s{sT0}, s{sRB}, 11", f"s_lshl_b32 s{sT1}, s{sB}, 17", f"s_add_u32 s{sT0}, s{sT0}, s{sT1}",
             f"buffer_load_dword a120, v{vT0}, {sr(S_WS, 4)}, s{sT0} offen",
             f"s_lshl_b32 s{sT0}, s{sRB}, 16", f"s_add_u32 s{sT0}, s{sT0}, {WS_OF}",
             f"buffer_load_dword a121, v{vT0}, {sr(S_WS, 4)}, s{sT0} offen",
             f"buffer_load_dword a122, v{vT0}, {sr(S_OUT, 4)}, s{sXbase} offen",
             f"s_lshl_b32 s{sT0}, s2, 12", f"s_add_u32 s{sT0}, s{sT0}, {WS_WOF}",
             f"buffer_load_dword a123, v{vT0}, {sr(S_WS, 4)}, s{sT0} offen",
             f"s_mov_b32 s{sT0}, {WS_OFL}",
             f"buffer_load_dword a124, v{vT0}, {sr(S_WS, 4)}, s{sT0} offen",
             "s_mov_b64 exec, -1")
        lab("L_notouch")
    q_setup()
    emit(f"s_waitcnt vmcnt({2 if OPT['late_pf'] & 1 else 10})", "s_barrier")
    stamp(10)
    if OPT["late_pf"] & 1:
        prefill()
    if OPT["late_pf"] & 3:
        wo_block()
    emit(f"s_cmp_ge_u32 s{sWave}, 2", "s_cbranch_scc1 L_bar2")
    kv_proj()
    lab("L_kv_done")
    stamp(12)
    emit("s_waitcnt vmcnt(9)", "s_barrier", "s_branch L_qstart")
    lab("L_bar2")
    emit("s_waitcnt vmcnt(8)", "s_barrier")
    lab("L_qstart")


def kv_proj():
    cmt("K/V projection (waves 0,1)")
    XB = 112
    WA = 116
    ACC = 64
    FR = 0
    emit(f"v_and_b32 v{vT0}, 15, v{vLane}",
         f"v_lshrrev_b32 v{vT1}, 4, v{vLane}",
         f"v_lshlrev_b32 v{vT2}, 4, v{vT1}",
         f"s_mul_i32 s{sT0}, s{sHH}, {16 * XP}", f"s_add_u32 s{sT0}, s{sT0}, {LDS_XT}",
         f"v_mul_u32_u24 v{vT3}, {XP}, v{vT0}",
         f"v_add3_u32 v{XB}, v{vT3}, v{vT2}, s{sT0}",
         f"v_lshlrev_b32 v{vT1}, 8, v{vT1}", f"v_lshlrev_b32 v{vT0}, 3, v{vT0}",
         f"s_and_b32 s{sT0}, s{sWave}, 1", f"s_lshl_b32 s{sT0}, s{sT0}, 14",
         f"v_add3_u32 v{WA}, v{vT1}, v{vT0}, s{sT0}")

    def reads(s):
        f = FR + 8 * (s % 4)
        f += 32
        return [f"ds_read_b128 {ar(f, 4)}, v{XB} offset:{s * 64}",
                f"ds_read_b64_tr_b16 {ar(f + 4, 2)}, v{WA} offset:{LDS_WK + s * 1024}",
                f"ds_read_b64_tr_b16 {ar(f + 6, 2)}, v{WA} offset:{LDS_WK + s * 1024 + 128}"]

    for variant in ("K", "V"):
        if variant == "K":
            emit(f"s_cmp_eq_u32 s{sWave}, 1", "s_cbranch_scc1 L_vproj")
        else:
            lab("L_vproj")
        for s in range(4):
            emit(*reads(s))
        for s in range(16):
            f = 32 + 8 * (s % 4)
            rem = min(3, 15 - s)
            emit(f"s_waitcnt lgkmcnt({3 * rem})")
            acc = ACC + 4 * (s & 1)
            c = "0" if s < 2 else vr(acc, 4)
            if variant == "K":
                emit(f"v_mfma_f32_16x16x32_bf16 {vr(acc, 4)}, {ar(f + 4, 4)}, {ar(f, 4)}, {c}")
            else:
                emit(f"v_mfma_f32_16x16x32_bf16 {vr(acc, 4)}, {ar(f, 4)}, {ar(f + 4, 4)}, {c}")
            if s + 4 < 16:
                emit(*reads(s + 4))
        nonce()
        P = 120
        AD = 117
        if variant == "K":
            emit(f"v_and_b32 v{vT2}, 15, v{vLane}", f"v_bfe_u32 v{vT3}, v{vLane}, 4, 1",
                 f"v_lshlrev_b32 v{vT3}, 5, v{vT3}", f"v_add_u32 v{vT2}, v{vT2}, v{vT3}", f"v_lshlrev_b32 v{AD}, 4, v{vT2}",
                 f"s_lshl_b32 s{sT0}, s{sB}, 17", f"s_lshl_b32 s{sT1}, s{sRB}, 11", f"s_add_u32 s{sT0}, s{sT0}, s{sT1}",
                 f"s_lshl_b32 s{sT1}, s{sHH}, 8", f"s_add_u32 s{sT0}, s{sT0}, s{sT1}",
                 f"s_mov_b32 s{sT2}, {CSCALE:#x}")
            for i in range(4):
                emit(f"v_add_f32 v{ACC + i}, v{ACC + i}, v{ACC + 4 + i}")
            for i in range(4):
                emit(f"v_mul_f32 v{ACC + i}, s{sT2}, v{ACC + i}")
        else:
            emit(f"v_and_b32 v{vT2}, 15, v{vLane}", f"v_lshrrev_b32 v{vT3}, 5, v{vLane}",
                 f"v_lshlrev_b32 v{vT2}, 4, v{vT2}", f"v_lshlrev_b32 v{vT3}, 8, v{vT3}", f"v_add_u32 v{AD}, v{vT2}, v{vT3}",
                 f"s_lshl_b32 s{sT0}, s{sB}, 17", f"s_lshl_b32 s{sT1}, s{sRB}, 11", f"s_add_u32 s{sT0}, s{sT0}, s{sT1}",
                 f"s_lshl_b32 s{sT1}, s{sHH}, 9", f"s_add_u32 s{sT0}, s{sT0}, s{sT1}", f"s_add_u32 s{sT0}, s{sT0}, 1024")
            for i in range(4):
                emit(f"v_add_f32 v{ACC + i}, v{ACC + i}, v{ACC + 4 + i}")
        emit(f"v_cvt_pk_bf16_f32 v{P}, v{ACC}, v{ACC + 1}", f"v_cvt_pk_bf16_f32 v{P + 1}, v{ACC + 2}, v{ACC + 3}", "s_nop 1")
        if variant == "K":
            emit(f"v_permlane32_swap_b32 v{P}, v{P + 2}", f"v_permlane32_swap_b32 v{P + 1}, v{P + 3}",
                 "s_mov_b32 exec_hi, 0",
                 f"buffer_store_dwordx4 {vr(P, 4)}, v{AD}, {sr(S_WS, 4)}, s{sT0} offen sc1",
                 "s_mov_b64 exec, -1")
            emit(f"v_mul_f32 v{vT0}, v{ACC}, v{ACC}")
            for i in range(1, 4):
                emit(f"v_fmac_f32 v{vT0}, v{ACC + i}, v{ACC + i}")
            red = "v_add_f32"
        else:
            emit(f"v_permlane16_swap_b32 v{P}, v{P + 2}", f"v_permlane16_swap_b32 v{P + 1}, v{P + 3}",
                 f"s_mov_b64 exec, {sr(sVM, 2)}",
                 f"buffer_store_dwordx4 {vr(P, 4)}, v{AD}, {sr(S_WS, 4)}, s{sT0} offen sc1",
                 "s_mov_b64 exec, -1")
            emit(f"v_max_f32_e64 v{vT0}, |v{ACC}|, |v{ACC + 1}|", f"v_max3_f32 v{vT0}, |v{ACC + 2}|, |v{ACC + 3}|, v{vT0}")
            red = "v_max_f32"
        emit(f"v_mov_b32 v{vT1}, v{vT0}", "s_nop 1",
             f"v_permlane32_swap_b32 v{vT0}, v{vT1}", "s_nop 1",
             f"{red} v{vT0}, v{vT0}, v{vT1}", "s_nop 0", f"v_mov_b32 v{vT1}, v{vT0}", "s_nop 1",
             f"v_permlane16_swap_b32 v{vT0}, v{vT1}", "s_nop 1",
             f"{red} v{vT0}, v{vT0}, v{vT1}")
        for r in (8, 4, 2, 1):
            emit("s_nop 1", f"v_max_f32_dpp v{vT0}, v{vT0}, v{vT0} row_ror:{r} row_mask:0xf bank_mask:0xf")
        emit(f"s_lshl_b32 s{sT0}, s{sRB}, 1", f"s_add_u32 s{sT0}, s{sT0}, s{sHH}", f"s_lshl_b32 s{sT0}, s{sT0}, 4",
             f"s_lshl_b32 s{sT1}, s{sB}, 11", f"s_add_u32 s{sT0}, s{sT0}, s{sT1}",
             f"s_add_u32 s{sT0}, s{sT0}, {WS_KVF + (0 if variant == 'K' else 8)}",
             f"v_mov_b32 v{P + 5}, v{vT0}", f"v_mov_b32 v{P + 4}, s{sNonce}", f"s_mov_b32 s{sFl}, s{sT0}")
        stamp(11)
        if variant == "K":
            emit("s_branch L_kv_done")


def wof_task():
    cmt("WOF task (wave 3): transpose 4 wo fragments, publish")
    emit(f"s_cmp_eq_u32 s{sWave}, 3", "s_cbranch_scc0 L_wof_done")
    emit(f"v_lshrrev_b32 v{vT0}, 5, v{vLane}", f"v_lshlrev_b32 v{vT0}, 2, v{vT0}",
         f"v_bfe_u32 v{vT1}, v{vLane}, 2, 2", f"v_add_u32 v{vT0}, v{vT0}, v{vT1}", f"v_lshlrev_b32 v{vT0}, 8, v{vT0}",
         f"v_bfe_u32 v{vT1}, v{vLane}, 4, 1", f"v_lshlrev_b32 v{vT1}, 5, v{vT1}",
         f"v_and_b32 v{vT2}, 3, v{vLane}", f"v_lshlrev_b32 v{vT2}, 3, v{vT2}",
         f"v_add3_u32 v{vT0}, v{vT0}, v{vT1}, v{vT2}", f"v_add_u32 v{vT0}, {LDS_WOS}, v{vT0}")
    F = 112
    for f in range(4):
        emit(f"ds_read_b64_tr_b16 {vr(F + 4 * f, 2)}, v{vT0} offset:{f * 64}",
             f"ds_read_b64_tr_b16 {vr(F + 4 * f + 2, 2)}, v{vT0} offset:{f * 64 + 2048}")
    emit(f"s_lshr_b32 s{sT0}, s2, 2", f"s_lshl_b32 s{sT0}, s{sT0}, 14", f"s_and_b32 s{sT1}, s2, 3", f"s_lshl_b32 s{sT1}, s{sT1}, 12",
         f"s_add_u32 s{sT0}, s{sT0}, s{sT1}", f"s_add_u32 s{sT0}, s{sT0}, {WS_WOF}",
         "s_waitcnt lgkmcnt(0)")
    for f in range(4):
        o = f" offset:{f * 1024}" if f else ""
        emit(f"buffer_store_dwordx4 {vr(F + 4 * f, 4)}, v{vL16}, {sr(S_WS, 4)}, s{sT0} offen{o} sc1")
    lab("L_wof_done")


def wof_flag():
    n = uid()
    emit(f"s_cmp_eq_u32 s{sWave}, 3", f"s_cbranch_scc0 L_wf{n}",
         f"s_lshl_b32 s{sT0}, s2, 2", f"s_add_u32 s{sT0}, s{sT0}, {WS_WOFF}",
         f"v_mov_b32 v{vT0}, s{sNonce}", f"v_mov_b32 v{vT1}, 0", "s_mov_b64 exec, 1",
         f"buffer_store_dword v{vT0}, v{vT1}, {sr(S_WS, 4)}, s{sT0} offen sc1", "s_mov_b64 exec, -1")
    lab(f"L_wf{n}")


PF = 118


def poll_issue(areg):
    emit(f"s_lshl_b32 s{sT0}, s{sB}, 11", f"s_add_u32 s{sT0}, s{sT0}, {WS_KVF}",
         f"buffer_load_dwordx4 {ar(areg, 4)}, v{vL16}, {sr(S_WS, 4)}, s{sT0} offen sc1",
         f"buffer_load_dwordx4 {ar(areg + 4, 4)}, v{vL16}, {sr(S_WS, 4)}, s{sT0} offen offset:1024 sc1")


def poll_check(areg, ok):
    F = PF
    for i in range(8):
        emit(f"v_accvgpr_read_b32 v{F + i}, a{areg + i}")
    emit(f"v_cmp_ne_u32_e64 {sr(sMA, 2)}, s{sNonce}, v{F}",
         f"v_cmp_ne_u32_e64 {sr(sMB, 2)}, s{sNonce}, v{F + 2}",
         f"v_cmp_ne_u32_e64 {sr(sMC, 2)}, s{sNonce}, v{F + 4}",
         f"v_cmp_ne_u32_e64 {sr(sMD, 2)}, s{sNonce}, v{F + 6}",
         "s_nop 3",
         f"s_or_b64 {sr(sMA, 2)}, {sr(sMA, 2)}, {sr(sMB, 2)}",
         f"s_or_b64 {sr(sMC, 2)}, {sr(sMC, 2)}, {sr(sMD, 2)}",
         f"s_or_b64 {sr(sMA, 2)}, {sr(sMA, 2)}, {sr(sMC, 2)}",
         f"s_cbranch_scc0 {ok}")


def chunk0_loads():
    F = PF
    emit(f"v_mov_b32 v{vT0}, 0", f"ds_write_b32 v{vMisc}, v{vT0} offset:{M_KMAX}", f"ds_write_b32 v{vMisc}, v{vT0} offset:{M_VMAX}",
         f"s_lshl_b32 s{sT0}, s{sB}, 17", f"s_mov_b32 s{sT1}, 0")
    for g in range(4):
        emit(f"s_mov_b32 m0, s{sT1}", f"s_add_u32 s{sT1}, s{sT1}, 4096")
        for i in range(4):
            dma(vL16, S_WS, f"s{sT0}", imm=1024 * i, sc1=OPT['ld_sc1'])
        if g < 3:
            emit(f"s_add_u32 s{sT0}, s{sT0}, 4096")
    emit(f"v_max_u32 v{F + 1}, v{F + 1}, v{F + 5}", f"v_max_u32 v{F + 3}, v{F + 3}, v{F + 7}",
         f"ds_max_u32 v{vMisc}, v{F + 1} offset:{M_KMAX}", f"ds_max_u32 v{vMisc}, v{F + 3} offset:{M_VMAX}")


def poll_kv():
    cmt("wave 7, late path: poll the K/V flags, fetch key tiles 0..7")
    emit(f"s_cmp_eq_u32 s{sWave}, 7", "s_cbranch_scc0 L_pollkv_done",
         f"s_mov_b32 s{sCnt}, {OPT['spin_limit']}")
    lab("L_pollkv")
    emit("s_waitcnt vmcnt(0)")
    poll_check(24, "L_pollkv_ok")
    poll_issue(24)
    emit(f"s_sub_u32 s{sCnt}, s{sCnt}, 1", f"s_cmp_lg_u32 s{sCnt}, 0", "s_cbranch_scc1 L_pollkv")
    spin_fail(1)
    lab("L_pollkv_ok")
    stamp(13)
    chunk0_loads()
    lab("L_pollkv_done")


def barrier_a():
    emit(f"s_cmp_eq_u32 s{sWave}, 7", "s_cbranch_scc0 L_bara", "s_waitcnt vmcnt(0)")
    lab("L_bara")
    emit("s_waitcnt lgkmcnt(0)", "s_barrier")


GACC = 96
vXG = 116


def q_setup():
    cmt("Q projection: addresses, accumulators; main-loop register init")
    ACC = S0
    emit(f"v_and_b32 v{vT0}, 31, v{vLane}", f"v_lshrrev_b32 v{vT1}, 5, v{vLane}",
         f"v_mul_u32_u24 v{vT0}, {XP}, v{vT0}", f"v_lshlrev_b32 v{vT2}, 4, v{vT1}",
         f"v_add_u32 v{vXB}, v{vT0}, v{vT2}", f"v_add_u32 v{vXB}, {LDS_XT}, v{vXB}",
         f"s_lshl_b32 s{sT0}, s{sWave}, 7", f"s_add_u32 s{sT0}, s{sT0}, {LDS_GW}",
         f"v_add_u32 v{vGA}, s{sT0}, v{vT2}",
         f"v_bfe_u32 v{vT0}, v{vLane}, 2, 2",
         f"v_lshlrev_b32 v{vT2}, 3, v{vT1}", f"v_add_u32 v{vT2}, v{vT2}, v{vT0}", f"v_lshlrev_b32 v{vT2}, 6, v{vT2}",
         f"v_bfe_u32 v{vT1}, v{vLane}, 4, 1", f"v_lshlrev_b32 v{vT1}, 5, v{vT1}",
         f"v_and_b32 v{vT0}, 3, v{vLane}", f"v_lshlrev_b32 v{vT0}, 3, v{vT0}",
         f"v_add3_u32 v{vT2}, v{vT2}, v{vT0}, v{vT1}",
         f"v_add_u32 v{vWA}, s{sRing}, v{vT2}")
    for i in range(16):
        emit(f"v_mov_b32 v{ACC + i}, 0")
    for i in range(16):
        emit(f"v_accvgpr_write_b32 a{i}, 0")
    reg_init()
    emit(f"s_cmp_lt_u32 s{sWave}, 2", f"s_cselect_b32 s{sFB}, 0, 99")


def q_proj():
    cmt("Q projection (per-wave ring)")
    ACC = S0
    QS = 32
    GF = 64

    def reads(s):
        f = QS + 8 * (s & 3)
        return [f"ds_read_b64_tr_b16 {ar(f, 2)}, v{vWA} offset:{(s & 7) * 1024}",
                f"ds_read_b64_tr_b16 {ar(f + 2, 2)}, v{vWA} offset:{(s & 7) * 1024 + 256}",
                f"ds_read_b128 {ar(f + 4, 4)}, v{vXG} offset:{(s & 3) * 32}"]

    def group_addr():
        return [f"v_add_u32 v{vXG}, s{sK}, v{vXB}", f"s_add_u32 s{sK}, s{sK}, 128", f"s_and_b32 s{sK}, s{sK}, 1023"]

    def step(s, last, extra=0):
        f = QS + 8 * (s & 3)
        rd = not (last and s >= 6)
        if last:
            w = {0: 5, 1: 4, 2: 3, 3: 2, 4: 1, 5: 0}.get(s)
            if w is not None:
                w += extra
        else:
            w = 5
        lg = 3 if (rd or (last and s == 6)) else 0
        if last and s == 7:
            lg = 0
        emit((f"s_waitcnt vmcnt({w}) " if w is not None else "s_waitcnt ") + f"lgkmcnt({lg})")
        if s == 4 and not last:
            n = uid()
            emit(f"s_cmp_eq_u32 s{sCnt}, s{sFB}", f"s_cbranch_scc0 L_nf{n}", "s_waitcnt vmcnt(4)",
                 f"v_mov_b32 v{vT0}, 0", "s_mov_b64 exec, 1",
                 f"buffer_store_dwordx2 {vr(124, 2)}, v{vT0}, {sr(S_WS, 4)}, s{sFl} offen sc1", "s_mov_b64 exec, -1")
            stamp(27)
            lab(f"L_nf{n}")
        if s == OPT["poll_step"] and not last:
            n = uid()
            emit(f"s_cmp_eq_u32 s{sCnt}, s{sI2}", f"s_cbranch_scc0 L_ep{n}")
            poll_issue(16)
            lab(f"L_ep{n}")
        if s % 4 == 0:
            emit(f"s_cmp_eq_u32 s{sS}, s{sWave}", "s_cselect_b64 vcc, -1, 0",
                 f"s_add_u32 s{sS}, s{sS}, 1", f"s_and_b32 s{sS}, s{sS}, 7")
        if s % 4 == 2 and rd:
            emit(*group_addr())
        if last and s == 5 and not extra:
            n = uid()
            emit(f"s_cmp_eq_u32 s{sWave}, 7", f"s_cbranch_scc0 L_np{n}")
            poll_issue(24)
            lab(f"L_np{n}")
        if rd and not (OPT["q_exp"] & 1):
            emit(*reads(s + 2))
        acc = vr(ACC, 16) if s % 2 == 0 else ar(0, 16)
        if not (OPT["q_exp"] & 4):
            emit(f"v_mfma_f32_32x32x16_bf16 {acc}, {ar(f, 4)}, {ar(f + 4, 4)}, {acc}")
        if not last:
            emit(f"s_add_u32 m0, s{sRing}, {s * 1024}", f"s_add_u32 s{sSl}, s{sSl}, 16384", f"s_and_b32 s{sSl}, s{sSl}, 0x7ffff")
            if not (OPT["q_exp"] & 2):
                dma(vA, S_WQ, f"s{sSl}")
        n = uid()
        emit(f"s_cbranch_vccz L_ng{n}",
             f"v_mfma_f32_32x32x16_bf16 {ar(GACC, 16)}, {ar(GF + 4 * (s & 3), 4)}, {ar(f + 4, 4)}, {'0' if (s & 3) == 0 else ar(GACC, 16)}")
        lab(f"L_ng{n}")

    emit(f"s_lshl_b32 s{sK}, s{sRot}, 5", f"s_lshr_b32 s{sS}, s{sRot}, 2", f"s_mov_b32 s{sCnt}, 0",
         f"s_cmp_eq_u32 s{sWave}, 7", f"s_cselect_b32 s{sI2}, {OPT['poll_blk']}, 99")
    emit(*group_addr())
    for i in range(4):
        emit(f"ds_read_b128 {ar(GF + 4 * i, 4)}, v{vGA} offset:{32 * i}")
    emit("s_waitcnt vmcnt(6) lgkmcnt(0)")
    nonce()
    if OPT["xcd_local"]:
        emit(f"s_cmp_eq_u32 s{sWave}, 3", "s_cbranch_scc0 L_noxid",
             f"s_getreg_b32 s{sT0}, hwreg(HW_REG_XCC_ID)", f"s_and_b32 s{sT0}, s{sT0}, 15", f"s_or_b32 s{sT0}, s{sT0}, 0x100",
             f"s_xor_b32 s{sT0}, s{sT0}, s{sNonce}", f"v_mov_b32 v{vT0}, s{sT0}", f"v_mov_b32 v{vT1}, 0",
             f"s_lshl_b32 s{sT0}, s2, 2", f"s_add_u32 s{sT0}, s{sT0}, {WS_XID}", "s_mov_b64 exec, 1",
             f"buffer_store_dword v{vT0}, v{vT1}, {sr(S_WS, 4)}, s{sT0} offen sc1", "s_mov_b64 exec, -1")
        lab("L_noxid")
    stamp(24)
    emit(*reads(0))
    emit(*reads(1))
    lab("L_qloop")
    for s in range(8):
        step(s, False)
    emit(f"s_add_u32 s{sCnt}, s{sCnt}, 1", f"s_cmp_lt_u32 s{sCnt}, 3", "s_cbranch_scc1 L_qloop")
    emit(f"s_cmp_eq_u32 s{sWave}, 7", "s_cbranch_scc0 L_qlast", f"s_waitcnt vmcnt({(8 - OPT['poll_step']) + 8 * (2 - OPT['poll_blk'])})")
    poll_check(16, "L_qlast7")
    lab("L_qlast")
    for s in range(8):
        step(s, True)
    stamp(25)
    poll_kv()
    emit("s_branch L_qdone")
    lab("L_qlast7")
    stamp(13)
    chunk0_loads()
    for s in range(8):
        step(s, True, extra=16)
    stamp(25)
    lab("L_qdone")


def q_finish():
    cmt("Q frags + norms, gate partials")
    ACC = S0
    emit(f"v_and_b32 v{vT0}, 31, v{vLane}", f"v_lshlrev_b32 v{vT0}, 5, v{vT0}", f"s_lshl_b32 s{sT0}, s{sWave}, 2",
         f"s_add_u32 s{sT0}, s{sT0}, {LDS_GP}",
         f"v_add_u32 v{vT0}, s{sT0}, v{vT0}",
         "s_nop 7", f"v_accvgpr_read_b32 v{vT1}, a{GACC}")
    emit(f"ds_write_b32 v{vT0}, v{vT1}")
    for i in range(16):
        emit(f"v_accvgpr_read_b32 v{112 + i}, a{i}")
    for i in range(16):
        emit(f"v_add_f32 v{ACC + i}, v{ACC + i}, v{112 + i}")
    for i in range(4):
        emit(f"v_cvt_pk_bf16_f32 v{Qa + i}, v{ACC + 2 * i}, v{ACC + 2 * i + 1}")
    for i in range(4):
        emit(f"v_cvt_pk_bf16_f32 v{Qb + i}, v{ACC + 8 + 2 * i}, v{ACC + 8 + 2 * i + 1}")
    emit(f"v_mul_f32 v{vNa}, v{ACC}, v{ACC}", f"v_mul_f32 v{vNb}, v{ACC + 8}, v{ACC + 8}")
    for i in range(1, 8):
        emit(f"v_fmac_f32 v{vNa}, v{ACC + i}, v{ACC + i}", f"v_fmac_f32 v{vNb}, v{ACC + 8 + i}, v{ACC + 8 + i}")
    emit(f"v_mov_b32 v{vT0}, v{vNa}", f"v_mov_b32 v{vT1}, v{vNb}", "s_nop 1",
         f"v_permlane32_swap_b32 v{vNa}, v{vT0}", f"v_permlane32_swap_b32 v{vNb}, v{vT1}", "s_nop 1",
         f"v_add_f32 v{vNa}, v{vNa}, v{vT0}", f"v_add_f32 v{vNb}, v{vNb}, v{vT1}",
         f"v_max_f32 v{vNa}, v{vNa}, v{vNb}")


def reg_init():
    cmt("main-loop register init")
    for i in range(32):
        emit(f"v_mov_b32 v{Oa + i}, 0")
    for i in range(8):
        emit(f"v_mov_b32 v{S1 + 8 + i}, 0")
    emit(f"v_and_b32 v{vT0}, {27 if not OPT['one_row'] else 31}, v{vLane}",
         f"v_cmp_eq_u32 vcc, 16, v{vT0}", f"v_mov_b32 v{vT1}, 0x3f803f80", "s_nop 0",
         f"v_cndmask_b32 v{V0}, 0, v{vT1}, vcc")
    for i in range(1, 16):
        emit(f"v_mov_b32 v{V0 + i}, v{V0}")
    emit(f"v_mov_b32 v{IDX}, 0xdddddddd",
         f"v_mov_b32 v{AK}, v{vL16}",
         f"v_lshrrev_b32 v{vT0}, 5, v{vLane}", f"v_lshlrev_b32 v{vT0}, 8, v{vT0}",
         f"v_and_b32 v{vT1}, 15, v{vLane}", f"v_lshlrev_b32 v{vT1}, 4, v{vT1}", f"v_add_u32 v{AV}, v{vT0}, v{vT1}",
         "s_nop 0")


def kv_rest_loads():
    cmt("first key tile fragments; remaining K/V tiles -> LDS (waves 0..3: linear range 16384 + wave*28672)")
    emit(f"ds_read_b64 {vr(120, 2)}, v{vMisc}",
         f"ds_read_b128 {vr(KF, 4)}, v{AK}",
         f"s_mov_b64 exec, {sr(sVM, 2)}",
         f"ds_read_b128 {vr(V0, 4)}, v{AV} offset:1024", f"ds_read_b128 {vr(V1, 4)}, v{AV} offset:1536",
         "s_mov_b64 exec, -1")
    emit(f"s_cmp_ge_u32 s{sWave}, 4", "s_cbranch_scc1 L_rest_done",
         f"s_lshl_b32 s{sT0}, s{sB}, 17",
         f"s_mul_i32 s{sT1}, s{sWave}, 28672", f"s_add_u32 s{sT1}, s{sT1}, 16384", f"s_add_u32 s{sT2}, s{sT0}, s{sT1}",
         f"s_mov_b32 s{sCnt}, 7")
    lab("L_rest")
    emit(f"s_mov_b32 m0, s{sT1}", f"s_add_u32 s{sT1}, s{sT1}, 4096")
    for i in range(4):
        dma(vL16, S_WS, f"s{sT2}", imm=1024 * i, sc1=OPT['ld_sc1'])
    emit(f"s_add_u32 s{sT2}, s{sT2}, 4096", f"s_sub_u32 s{sCnt}, s{sCnt}, 1", f"s_cmp_lg_u32 s{sCnt}, 0", "s_cbranch_scc1 L_rest")
    lab("L_rest_done")


def start_attention():
    cmt("path decision, first key tile")
    emit("s_waitcnt lgkmcnt(0)",
         f"v_mfma_f32_32x32x16_bf16 {vr(S0, 16)}, {vr(KF, 4)}, {vr(Qa, 4)}, 0")
    t2 = struct.unpack("<I", struct.pack("<f", OPT["T2"]))[0]
    emit(f"v_mul_f32 v{vT0}, v{vNa}, v120", f"s_mov_b32 s{sT0}, {t2:#x}",
         f"v_cmp_nle_f32_e64 {sr(sMA, 2)}, v{vT0}, s{sT0}",
         f"s_mov_b32 s{sT1}, 0x53800000",
         f"v_cmp_nle_f32_e64 {sr(sMB, 2)}, v121, s{sT1}",
         f"s_mov_b32 s{sT1}, 0x2b800000",
         f"v_cmp_nge_f32_e64 {sr(sMC, 2)}, v121, s{sT1}",
         "s_nop 3",
         f"s_or_b64 {sr(sMA, 2)}, {sr(sMA, 2)}, {sr(sMB, 2)}",
         f"s_or_b64 {sr(sMA, 2)}, {sr(sMA, 2)}, {sr(sMC, 2)}")
    if OPT["force_slow"]:
        emit(f"s_mov_b64 {sr(sMA, 2)}, -1")
    emit(f"s_cmp_ge_u32 s{sWave}, 4", "s_cbranch_scc1 L_prio_g2", f"s_setprio {OPT['prio_g1']}",
         f"s_mov_b32 s{sI1}, 99", "s_branch L_prio_done")
    lab("L_prio_g2")
    emit(f"s_setprio {OPT['prio_g2']}", f"s_mov_b32 s{sI1}, {OPT['g2_drop']}")
    lab("L_prio_done")
    emit(f"s_cmp_lg_u64 {sr(sMA, 2)}, 0", "s_cbranch_scc1 L_slow")


def gate_factor():
    emit(f"v_and_b32 v{vT0}, 31, v{vLane}", f"v_lshlrev_b32 v{vT0}, 5, v{vT0}", f"v_add_u32 v{vT0}, {LDS_GP}, v{vT0}",
         f"ds_read_b128 {vr(112, 4)}, v{vT0}", f"ds_read_b128 {vr(116, 4)}, v{vT0} offset:16",
         f"s_mov_b32 s{sT0}, {NLOG2E:#x}", f"s_xor_b32 s{sT1}, s{sT0}, 0x80000000", f"s_cmp_eq_u32 s{sB}, 0",
         f"s_cselect_b32 s{sT0}, s{sT0}, s{sT1}",
         "s_waitcnt lgkmcnt(0)",
         f"v_add_f32 v112, v112, v113", f"v_add_f32 v114, v114, v115", f"v_add_f32 v116, v116, v117", f"v_add_f32 v118, v118, v119",
         f"v_add_f32 v112, v112, v114", f"v_add_f32 v116, v116, v118", f"v_add_f32 v112, v112, v116",
         f"v_mul_f32 v112, s{sT0}, v112", f"v_exp_f32 v112, v112", "s_nop 0", f"v_add_f32 v112, 1.0, v112",
         f"v_rcp_f32 v{vGate}, v112")


def wo_flag_load():
    emit(f"v_bfe_u32 v{vT0}, v{vLane}, 3, 2", f"v_xor_b32 v{vT0}, s{sM}, v{vT0}",
         f"v_and_b32 v{vT1}, 1, v{vT0}", f"v_lshlrev_b32 v{vT1}, 7, v{vT1}",
         f"v_lshrrev_b32 v{vT0}, 1, v{vT0}", f"v_lshlrev_b32 v{vT0}, 6, v{vT0}",
         f"v_and_b32 v{vT2}, 7, v{vLane}", f"v_lshlrev_b32 v{vT2}, 2, v{vT2}",
         f"v_add3_u32 v{vT0}, v{vT0}, v{vT1}, v{vT2}",
         f"s_lshr_b32 s{sT0}, s{sWave}, 2", f"s_lshl_b32 s{sT0}, s{sT0}, 5", f"s_add_u32 s{sT0}, s{sT0}, s{sM}",
         f"s_lshl_b32 s{sT0}, s{sT0}, 2", f"s_add_u32 s{sT0}, s{sT0}, {WS_WOFF}",
         f"v_lshlrev_b32 v{vT0}, 2, v{vT0}",
         f"buffer_load_dword v{vE0 + 12}, v{vT0}, {sr(S_WS, 4)}, s{sT0} offen sc1")


def xid_load():
    if not OPT["xcd_local"]:
        return
    emit(f"v_and_b32 v{vT1}, 3, v{vLane}", f"v_lshlrev_b32 v{vT1}, 5, v{vT1}",
         f"s_and_b32 s{sT1}, s2, 0xe7", f"s_lshl_b32 s{sT1}, s{sT1}, 2", f"s_add_u32 s{sT1}, s{sT1}, {WS_XID}",
         f"buffer_load_dword v{vE0 + 13}, v{vT1}, {sr(S_WS, 4)}, s{sT1} offen sc1")


def xid_check():
    if not OPT["xcd_local"]:
        emit(f"s_mov_b32 s{sLoc}, 0")
        return
    emit(f"s_getreg_b32 s{sT0}, hwreg(HW_REG_XCC_ID)", f"s_and_b32 s{sT0}, s{sT0}, 15", f"s_or_b32 s{sT0}, s{sT0}, 0x100",
         f"s_xor_b32 s{sT0}, s{sT0}, s{sNonce}",
         f"v_cmp_ne_u32_e64 {sr(sMA, 2)}, s{sT0}, v{vE0 + 13}", "s_nop 3",
         f"s_cmp_eq_u64 {sr(sMA, 2)}, 0", f"s_cselect_b32 s{sLoc}, 1, 0")


def wo_prefetch(tag):
    emit(f"s_mov_b32 s{sCnt}, {OPT['spin_limit']}")
    lab(f"L_wochk_{tag}")
    emit("s_waitcnt vmcnt(0)",
         f"v_cmp_ne_u32_e64 {sr(sMA, 2)}, s{sNonce}, v{vE0 + 12}", "s_nop 3",
         f"s_cmp_eq_u64 {sr(sMA, 2)}, 0", f"s_cbranch_scc1 L_wook_{tag}", "s_sleep 1")
    wo_flag_load()
    emit(f"s_sub_u32 s{sCnt}, s{sCnt}, 1", f"s_cmp_lg_u32 s{sCnt}, 0", f"s_cbranch_scc1 L_wochk_{tag}")
    spin_fail(2)
    lab(f"L_wook_{tag}")
    emit(f"s_and_b32 s{sT1}, s{sWave}, 3", f"s_lshl_b32 s{sT2}, s{sM}, 2", f"s_add_u32 s{sT1}, s{sT1}, s{sT2}",
         f"s_lshl_b32 s{sT1}, s{sT1}, 10",
         f"s_lshr_b32 s{sT2}, s{sWave}, 2", f"s_lshl_b32 s{sT2}, s{sT2}, 17",
         f"s_add_u32 s{sT1}, s{sT1}, s{sT2}", f"s_add_u32 s{sT1}, s{sT1}, {WS_WOF}")
    for j in range(4):
        emit(f"s_xor_b32 s{sT2}, s{sM}, {j}", f"s_and_b32 s{sT3}, s{sT2}, 1", f"s_lshl_b32 s{sT3}, s{sT3}, 19",
             f"s_lshr_b32 s{sT2}, s{sT2}, 1", f"s_lshl_b32 s{sT2}, s{sT2}, 18",
             f"s_add_u32 s{sT0}, s{sT1}, s{sT2}", f"s_add_u32 s{sT0}, s{sT0}, s{sT3}")
        for i in range(8):
            emit(f"buffer_load_dwordx4 {ar(4 * (8 * j + i), 4)}, v{vL16}, {sr(S_WS, 4)}, s{sT0} offen" + (" sc1" if OPT['ld_sc1'] else ""))
            if i < 7:
                emit(f"s_add_u32 s{sT0}, s{sT0}, 16384")


TB = 2048
POS = (2, 5, 11)


def phase(X, Y, QY, OX, OY, sh0, sh1, sh2, VA0, VA1, extra=None):
    for i in range(16):
        if i == POS[0]:
            emit(f"v_smfmac_f32_32x32x32_bf16 {vr(OY, 16)}, {vr(VA1, 4)}, {vr(Y + 8, 8)}, v{IDX}", *sh0)
        if i == POS[1]:
            emit(f"v_mfma_f32_32x32x16_bf16 {vr(Y, 16)}, {vr(KF, 4)}, {vr(QY, 4)}, 0", *sh1)
        if i == POS[2]:
            emit(f"v_smfmac_f32_32x32x32_bf16 {vr(OX, 16)}, {vr(VA0, 4)}, {vr(X, 8)}, v{IDX}", *sh2)
        if extra and i in extra:
            emit(*extra[i])
        emit(f"v_exp_f32 v{X + i}, v{X + i}")


def main_loop():
    cmt("attention, fast path")
    emit(f"s_mov_b32 s{sIter}, 0")
    emit(".p2align 6")
    lab("L_main")
    stamp_iter()
    emit(f"s_cmp_eq_u32 s{sIter}, 1", "s_cbranch_scc1 L_blk_1", f"s_cmp_eq_u32 s{sIter}, 2", "s_cbranch_scc1 L_blk_2")
    lab("L_main_go")
    for t in range(8):
        if t == 6:
            emit(f"s_cmp_eq_u32 s{sIter}, 0", "s_cbranch_scc1 L_blk_bar")
            lab("L_main_t6")
        if t == OPT["g2_drop_tile"]:
            emit(f"s_cmp_eq_u32 s{sIter}, s{sI1}", "s_cbranch_scc1 L_blk_prio")
            lab("L_main_tp")
        c0, c1 = (V0, V1) if t % 2 == 0 else (V0b, V1b)
        n0, n1 = (V0b, V1b) if t % 2 == 0 else (V0, V1)
        both = [f"s_mov_b64 exec, {sr(sVM, 2)}",
                f"ds_read_b128 {vr(n0, 4)}, v{AV} offset:{(t + 1) * TB + 1024}",
                f"ds_read_b128 {vr(n1, 4)}, v{AV} offset:{(t + 1) * TB + 1536}",
                "s_mov_b64 exec, -1"]
        sh1 = [f"ds_read_b128 {vr(KF, 4)}, v{AK} offset:{(t + 1) * TB}"]
        phase(S0, S1, Qb, Oa, Ob, both, sh1, [], c0, n1)
        phase(S1, S0, Qa, Ob, Oa, ["s_waitcnt lgkmcnt(0)"], [], [], c0, c1)
    emit(f"v_add_u32 v{AK}, 0x4000, v{AK}", f"v_add_u32 v{AV}, 0x4000, v{AV}",
         f"s_add_u32 s{sIter}, s{sIter}, 1", f"s_cmp_lt_u32 s{sIter}, 8", "s_cbranch_scc1 L_main")
    emit("s_nop 1", f"v_smfmac_f32_32x32x32_bf16 {vr(Ob, 16)}, {vr(V1b, 4)}, {vr(S1 + 8, 8)}, v{IDX}")
    lab("L_epi")


def main_blocks():
    lab("L_blk_1")
    xid_load()
    wo_flag_load()
    emit("s_branch L_main_go")
    lab("L_blk_2")
    gate_factor()
    emit("s_waitcnt vmcnt(0)")
    xid_check()
    wo_prefetch("f")
    emit("s_branch L_main_go")
    lab("L_blk_bar")
    emit("s_waitcnt vmcnt(0)", "s_barrier")
    wof_flag()
    emit("s_branch L_main_t6")
    lab("L_blk_prio")
    emit("s_setprio 0", "s_branch L_main_tp")


def slow_path():
    cmt("attention, true-max path (online softmax)")
    lab("L_slow")
    emit(f"v_mov_b32 v{vMa}, 0xff800000", f"v_mov_b32 v{vMb}, 0xff800000", f"s_mov_b32 s{sIter}, 0")
    lab("L_slow_loop")
    emit(f"s_cmp_eq_u32 s{sIter}, 6", "s_cbranch_scc0 L_slow_nb", "s_waitcnt vmcnt(0)", "s_barrier")
    wof_flag()
    lab("L_slow_nb")
    emit(f"ds_read_b128 {vr(KF, 4)}, v{AK}",
         f"s_mov_b64 exec, {sr(sVM, 2)}",
         f"ds_read_b128 {vr(V0, 4)}, v{AV} offset:1024", f"ds_read_b128 {vr(V1, 4)}, v{AV} offset:1536",
         "s_mov_b64 exec, -1", "s_waitcnt lgkmcnt(0)")
    for (Q, O, M) in ((Qa, Oa, vMa), (Qb, Ob, vMb)):
        emit(f"v_mfma_f32_32x32x16_bf16 {vr(S0, 16)}, {vr(KF, 4)}, {vr(Q, 4)}, 0", "s_nop 15",
             f"v_max3_f32 v{vT0}, v{S0}, v{S0 + 1}, v{S0 + 2}")
        for i in range(3, 15, 2):
            emit(f"v_max3_f32 v{vT0}, v{vT0}, v{S0 + i}, v{S0 + i + 1}")
        emit(f"v_max_f32 v{vT0}, v{vT0}, v{S0 + 15}", "s_nop 0", f"v_mov_b32 v{vT1}, v{vT0}", "s_nop 1",
             f"v_permlane32_swap_b32 v{vT0}, v{vT1}", "s_nop 1",
             f"v_max3_f32 v{vT0}, v{vT0}, v{vT1}, v{M}",
             f"v_sub_f32 v{vT1}, v{M}, v{vT0}", f"v_exp_f32 v{vT1}, v{vT1}", f"v_mov_b32 v{M}, v{vT0}")
        for i in range(9):
            emit(f"v_mul_f32 v{O + i}, v{vT1}, v{O + i}")
        for i in range(16):
            emit(f"v_sub_f32 v{S0 + i}, v{S0 + i}, v{vT0}")
        for i in range(16):
            emit(f"v_exp_f32 v{S0 + i}, v{S0 + i}")
        emit("s_nop 1",
             f"v_smfmac_f32_32x32x32_bf16 {vr(O, 16)}, {vr(V0, 4)}, {vr(S0, 8)}, v{IDX}",
             f"v_smfmac_f32_32x32x32_bf16 {vr(O, 16)}, {vr(V1, 4)}, {vr(S0 + 8, 8)}, v{IDX}")
    emit(f"v_add_u32 v{AK}, {TB}, v{AK}", f"v_add_u32 v{AV}, {TB}, v{AV}",
         f"s_add_u32 s{sIter}, s{sIter}, 1", f"s_cmp_lt_u32 s{sIter}, 64", "s_cbranch_scc1 L_slow_loop")
    gate_factor()
    emit(f"s_mov_b32 s{sLoc}, 0")
    wo_flag_load()
    wo_prefetch("s")
    emit("s_branch L_epi")


def tail():
    cmt("normalise, gate, publish O fragments (global for the partners, LDS for ourselves)")
    emit("s_nop 15")
    P = 112
    for k, O in enumerate((Oa, Ob)):
        if OPT["one_row"]:
            emit(f"v_mov_b32 v{vT1}, v{O + 8}", "s_nop 1", f"v_permlane32_swap_b32 v{O + 8}, v{vT1}", "s_nop 1")
        emit(f"v_rcp_f32 v{vT0}, v{O + 8}", "s_nop 0", f"v_mul_f32 v{vT0}, v{vT0}, v{vGate}")
        for i in range(8):
            emit(f"v_mul_f32 v{O + i}, v{vT0}, v{O + i}")
        for i in range(4):
            emit(f"v_cvt_pk_bf16_f32 v{P + 4 * k + i}, v{O + 2 * i}, v{O + 2 * i + 1}")
    emit(f"s_lshl_b32 s{sT1}, s{sB}, 15", f"s_lshl_b32 s{sT2}, s{sHH}, 14", f"s_add_u32 s{sT1}, s{sT1}, s{sT2}",
         f"s_lshl_b32 s{sT2}, s{sWave}, 11", f"s_add_u32 s{sT1}, s{sT1}, s{sT2}",
         f"s_lshl_b32 s{sT0}, s{sRB}, 16", f"s_add_u32 s{sT0}, s{sT0}, s{sT1}", f"s_add_u32 s{sT0}, s{sT0}, {WS_OF}",
         f"buffer_store_dwordx4 {vr(P, 4)}, v{vL16}, {sr(S_WS, 4)}, s{sT0} offen sc1",
         f"buffer_store_dwordx4 {vr(P + 4, 4)}, v{vL16}, {sr(S_WS, 4)}, s{sT0} offen offset:1024 sc1")
    emit(f"v_add_u32 v{vT0}, s{sT1}, v{vL16}",
         f"s_lshl_b32 s{sT4}, s{sRB}, 7", f"s_add_u32 s{sT4}, s{sT4}, {WS_OFL}",
         f"s_lshl_b32 s{sT1}, s{sM}, 3", f"s_add_u32 s{sT1}, s{sT1}, s{sWave}", f"s_lshl_b32 s{sT1}, s{sT1}, 2", f"s_add_u32 s{sT1}, s{sT1}, s{sT4}",
         f"v_mov_b32 v{vT2}, s{sNonce}", f"v_mov_b32 v{vT1}, 0",
         "s_waitcnt vmcnt(0)", "s_mov_b64 exec, 1",
         f"buffer_store_dword v{vT2}, v{vT1}, {sr(S_WS, 4)}, s{sT1} offen sc1", "s_mov_b64 exec, -1",
         "s_barrier",
         f"ds_write_b128 v{vT0}, {vr(P, 4)}", f"ds_write_b128 v{vT0}, {vr(P + 4, 4)} offset:1024",
         "s_waitcnt lgkmcnt(0)", "s_barrier")
    stamp(6)
    ACC = 16
    FR = 48

    def bbase(j, dst):
        emit(f"s_xor_b32 s{sT2}, s{sM}, {j}", f"s_and_b32 s{sT3}, s{sT2}, 1", f"s_lshl_b32 s{sT3}, s{sT3}, 15",
             f"s_lshr_b32 s{sT2}, s{sT2}, 1", f"s_lshl_b32 s{sT2}, s{sT2}, 14", f"s_add_u32 s{sT2}, s{sT2}, s{sT3}",
             f"s_lshr_b32 s{sT3}, s{sWave}, 2", f"s_lshl_b32 s{sT3}, s{sT3}, 13", f"s_add_u32 s{sT2}, s{sT2}, s{sT3}",
             f"v_add_u32 v{dst}, s{sT2}, v{vL16}")

    def mm8(j, addr):
        for i in range(8):
            emit(f"ds_read_b128 {vr(FR + 4 * i, 4)}, v{addr} offset:{i * 1024}")
        for i in range(8):
            acc = ACC + 16 * (i & 1)
            emit(f"s_waitcnt lgkmcnt({7 - i})",
                 f"v_mfma_f32_32x32x16_bf16 {vr(acc, 16)}, {ar(4 * (8 * j + i), 4)}, {vr(FR + 4 * i, 4)}, {'0' if (j == 0 and i < 2) else vr(acc, 16)}")

    for j in range(4):
        bbase(j, 80 + j)
    for j in range(1, 4):
        emit(f"s_xor_b32 s{sT2}, s{sM}, {j}", f"s_and_b32 s{sT3}, s{sT2}, 1", f"s_lshl_b32 s{sT3}, s{sT3}, 15",
             f"s_lshr_b32 s{sT2}, s{sT2}, 1", f"s_lshl_b32 s{sT2}, s{sT2}, 14", f"s_add_u32 s{sT2}, s{sT2}, s{sT3}",
             f"s_lshl_b32 s{sT3}, s{sWave}, 11", f"s_add_u32 s{4 + j}, s{sT2}, s{sT3}",
             f"s_lshl_b32 s{sT0}, s{sRB}, 16", f"s_add_u32 s{sT0}, s{sT0}, s{4 + j}", f"s_add_u32 s{8 + j}, s{sT0}, {WS_OF}")
    mm8(0, 80)
    emit(f"s_cmp_eq_u32 s{sWave}, 0", "s_cbranch_scc0 L_ofl_done",
         f"v_and_b32 v{vT1}, 31, v{vLane}", f"v_lshlrev_b32 v{vT1}, 2, v{vT1}",
         f"s_mov_b32 s{sCnt}, {OPT['spin_limit']}")
    lab("L_ofl")
    emit(f"buffer_load_dword v{vT2}, v{vT1}, {sr(S_WS, 4)}, s{sT4} offen sc1", "s_waitcnt vmcnt(0)",
         f"v_cmp_ne_u32_e64 {sr(sMA, 2)}, s{sNonce}, v{vT2}", "s_nop 3",
         f"s_cmp_eq_u64 {sr(sMA, 2)}, 0", "s_cbranch_scc1 L_ofl_done",
         f"s_sub_u32 s{sCnt}, s{sCnt}, 1", f"s_cmp_lg_u32 s{sCnt}, 0", "s_cbranch_scc1 L_ofl")
    spin_fail(3)
    lab("L_ofl_done")
    emit("s_barrier")
    stamp(7)
    for j in range(1, 4):
        emit(f"s_mov_b32 m0, s{4 + j}", "s_nop 0")
        dma(vL16, S_WS, f"s{8 + j}", sc1=OPT['ld_sc1'])
        dma(vL16, S_WS, f"s{8 + j}", imm=1024, sc1=OPT['ld_sc1'])
    for j in range(1, 4):
        emit(f"s_waitcnt vmcnt({2 * (3 - j)})", "s_barrier")
        mm8(j, 80 + j)
    stamp(8)
    emit(f"s_lshl_b32 s{sT0}, s{sWave}, 11", f"s_add_u32 s{sT0}, s{sT0}, {LDS_RED}",
         f"s_xor_b32 s{sT1}, s{sWave}, 4", f"s_lshl_b32 s{sT1}, s{sT1}, 11", f"s_add_u32 s{sT1}, s{sT1}, {LDS_RED}",
         f"v_add_u32 v{vT0}, s{sT0}, v{vL16}", f"v_add_u32 v{vT3}, s{sT1}, v{vL16}",
         f"v_and_b32 v{vT1}, 31, v{vLane}", f"v_lshlrev_b32 v{vT1}, 10, v{vT1}",
         f"v_lshrrev_b32 v{vT2}, 5, v{vLane}", f"v_lshlrev_b32 v{vT2}, 3, v{vT2}", f"v_add_u32 v{vT1}, v{vT1}, v{vT2}",
         f"s_lshl_b32 s{sT0}, s{sM}, 8", f"s_and_b32 s{sT1}, s{sWave}, 3", f"s_lshl_b32 s{sT1}, s{sT1}, 6",
         f"s_add_u32 s{sT0}, s{sT0}, s{sT1}", f"s_add_u32 s{sT0}, s{sT0}, s{sXbase}",
         "s_nop 7")
    for i in range(16):
        emit(f"v_add_f32 v{ACC + i}, v{ACC + i}, v{ACC + 16 + i}")
    emit(f"s_cmp_ge_u32 s{sWave}, 4", "s_cbranch_scc1 L_red_hi")
    for hi in (0, 1):
        if hi:
            lab("L_red_hi")
        give = 8 if hi == 0 else 0
        keep = 0 if hi == 0 else 8
        emit(f"ds_write_b128 v{vT0}, {vr(ACC + give, 4)}", f"ds_write_b128 v{vT0}, {vr(ACC + give + 4, 4)} offset:1024",
             "s_waitcnt lgkmcnt(0)", "s_barrier",
             f"ds_read_b128 {vr(48, 4)}, v{vT3}", f"ds_read_b128 {vr(52, 4)}, v{vT3} offset:1024",
             "s_waitcnt lgkmcnt(0)")
        for i in range(8):
            emit(f"v_add_f32 v{ACC + keep + i}, v{ACC + keep + i}, v{48 + i}")
        for i in range(4):
            emit(f"v_cvt_pk_bf16_f32 v{64 + i}, v{ACC + keep + 2 * i}, v{ACC + keep + 2 * i + 1}")
        for q in range(2):
            o = (keep // 4 + q) * 16
            emit(f"buffer_store_dwordx2 {vr(64 + 2 * q, 2)}, v{vT1}, {sr(S_OUT, 4)}, s{sT0} offen" + (f" offset:{o}" if o else "") + (" " + OPT["out_pol"] if OPT["out_pol"] else ""))
        if hi == 0:
            emit(f"s_or_b32 s{sT0}, s2, s{sWave}", f"s_cmp_eq_u32 s{sT0}, 0", "s_cbranch_scc0 L_fin",
                 f"v_mov_b32 v{vT0}, s{sNonce}", f"v_mov_b32 v{vT1}, 0", f"s_mov_b32 s{sT0}, {WS_W}", "s_mov_b64 exec, 1",
                 f"buffer_store_dword v{vT0}, v{vT1}, {sr(S_WS, 4)}, s{sT0} offen sc1", "s_mov_b64 exec, -1", "s_branch L_fin")
    lab("L_fin")
    stamp(9)
    dstamp(6)
    emit("s_waitcnt vmcnt(0)")
    lab("L_end")
    emit("s_endpgm")


def build():
    prologue()
    stamp(0)
    front()
    stamp(1)
    dstamp(1)
    q_proj()
    q_finish()
    stamp(2)
    dstamp(2)
    wof_task()
    barrier_a()
    stamp(3)
    dstamp(3)
    kv_rest_loads()
    start_attention()
    stamp(4)
    dstamp(4)
    dstamp(8, True)
    main_loop()
    stamp(5)
    dstamp(5)
    dstamp(9, True)
    tail()
    main_blocks()
    slow_path()


HEADER = open(os.path.join(os.path.dirname(os.path.abspath(__file__)), "cdna_kernels", NAME + ".s.ref")).read().split("; Override launch")[0]


def render():
    build()
    out = [HEADER.rstrip("\n"),
           "; Override launch geometry by editing the next line (default: block=256,",
           "; grid=ceil(out_elems/256), lds=0). Harness parses it; keep it on one line.",
           f"; @launch grid=(256,1,1) block=(512,1,1) lds={LDS_TOTAL}",
           '.amdgcn_target "amdgcn-amd-amdhsa--gfx950"', ".text", f".globl {NAME}_kernel", ".p2align 8",
           f".type {NAME}_kernel,@function", f"{NAME}_kernel:"]
    for l in L:
        if l.endswith(":") or l.startswith(";") or l.startswith("."):
            out.append(l)
        else:
            out.append("    " + l)
    out += ['.section .rodata,"a"', ".p2align 6", f".amdhsa_kernel {NAME}_kernel",
            "  .amdhsa_next_free_vgpr 256", "  .amdhsa_next_free_sgpr 102", "  .amdhsa_accum_offset 128",
            "  .amdhsa_group_segment_fixed_size 0", "  .amdhsa_kernarg_size 112", "  .amdhsa_user_sgpr_count 2",
            "  .amdhsa_user_sgpr_kernarg_segment_ptr 1", "  .amdhsa_system_sgpr_workgroup_id_x 1",
            ".end_amdhsa_kernel", ""]
    return "\n".join(out)


if __name__ == "__main__":
    dst = os.environ.get("OUT", os.path.join(os.path.dirname(os.path.abspath(__file__)), "cdna_kernels", NAME + ".s"))
    open(dst, "w").write(render())
    print("wrote", dst, len(L), "lines")
```

```python
import sys, os, struct

NAME = "gated_mix__grouped_kv_mqa__grouped_kv_mqa__prompt"

OPT = dict(
    spin_limit=1 << 18,
    force_slow=False,
    stamps=False,
    ld_sc1=False,
    q_exp=0,
    out_pol='',
    poll_blk=2, poll_step=2,
    late_pf=0,
    xcd_local=0,
    loc_pol='',
    loc_mode=3,
    one_row=0,
    T2=1600.0,
    prio_g1=0,
    prio_g2=1,
    g2_drop=6,
    g2_drop_tile=5,
)
for a in sys.argv[1:]:
    if "=" in a:
        k, v = a.split("=", 1)
        if k in OPT:
            OPT[k] = type(OPT[k])(eval(v))
        else:
            raise SystemExit("unknown option " + k)

LDS_WK = 0
LDS_WV = 16384
LDS_WQ = 32768
LDS_XT = 98304
XP = 1040
LDS_GW = LDS_XT + 32 * XP
LDS_WOS = LDS_GW + 1024
LDS_GP = LDS_WOS + 4096
LDS_MISC = LDS_GP + 1024
LDS_TOTAL = LDS_MISC + 256
LDS_OG = 0
LDS_RED = 65536
M_KMAX, M_VMAX, M_FKV, M_FXB, M_FQG1, M_FQD, M_RD = 0, 4, 8, 12, 16, 20, 32

WS_KV = 0
WS_FLAG = 0x40000
WS_KVF = WS_FLAG
WS_WOFF = WS_FLAG + 4096
WS_OFL = WS_FLAG + 0x8000
WS_XID = WS_FLAG + 12288
WS_W = WS_FLAG + 16384
WS_WOF = 0x80000
WS_OF = 0x200000
WS_SIZE = 0x600000

CSCALE = 0x3EB8AA3B
NLOG2E = 0xBFB8AA3B

S_X, S_WQ, S_WK, S_WV, S_WO, S_GW, S_OUT, S_WS = 32, 36, 40, 44, 48, 52, 56, 60
sWave, sRB, sM, sB, sHH, sRot, sNonce = 64, 65, 66, 67, 68, 69, 70
sT0, sT1, sT2, sT3, sT4, sT5 = 71, 72, 73, 74, 75, 76
sS, sK, sSl, sRing, sQoff, sIter = 77, 78, 79, 82, 83, 84
sVM = 80
sXbase = 85
sCnt = 86
sRD = 87
sI1, sI2 = 98, 99
sLoc = 87
sW = 3

sFl, sFB = 100, 101
sMA, sMB = 88, 90
sMC, sMD = 92, 94
sSt = 96

vLane, vL16, vGate, vT0, vT1, vT2, vT3 = 1, 2, 3, 4, 5, 6, 7
Qa, Qb = 8, 12
Oa, Ob = 16, 32
S0, S1 = 48, 64
KF = 80
V0, V1, V0b, V1b = 84, 88, 92, 96
IDX, AK, AV = 100, 101, 102
vNon = 103
vXB, vWA, vA, vMisc = 104, 105, 106, 107
vMa, vMb = 108, 109
vNa, vNb = 110, 111
vGA = 108
vE0 = 112
vRDa, vRDv = 122, 123

L = []
_uid = [0]


def uid():
    _uid[0] += 1
    return _uid[0]


def emit(*lines):
    for l in lines:
        L.append(l)


def lab(name):
    L.append(name + ":")


def vr(b, n):
    return f"v[{b}:{b + n - 1}]"


def ar(b, n):
    return f"a[{b}:{b + n - 1}]"


def sr(b, n):
    return f"s[{b}:{b + n - 1}]"


def cmt(s):
    L.append(f"; ---- {s}")


def stamp(i):
    if not OPT["stamps"]:
        return

    def one(instr, slot):
        emit(f"{instr} {sr(sSt, 2)}", "s_waitcnt lgkmcnt(0)",
             f"s_lshl_b32 s{sSt + 1}, s2, 3", f"s_add_u32 s{sSt + 1}, s{sSt + 1}, s{sWave}", f"s_lshl_b32 s{sSt + 1}, s{sSt + 1}, 7",
             f"s_add_u32 s{sSt + 1}, s{sSt + 1}, {0x700000 + 4 * slot}",
             f"v_mov_b32 v{vE0 + 14}, s{sSt}", f"v_mov_b32 v{vE0 + 15}, s{sSt + 1}",
             f"global_store_dword v{vE0 + 15}, v{vE0 + 14}, s[30:31]")
    one("s_memrealtime", i)
    if i in (0, 9):
        one("s_memtime", 14 if i == 0 else 15)
    if i in (24, 25, 4, 5):
        one("s_memtime", {24: 28, 25: 29, 4: 30, 5: 31}[i])


def stamp_iter():
    if not OPT["stamps"]:
        return
    emit(f"s_memrealtime {sr(sSt, 2)}", "s_waitcnt lgkmcnt(0)",
         f"s_lshl_b32 s{sSt + 1}, s2, 3", f"s_add_u32 s{sSt + 1}, s{sSt + 1}, s{sWave}", f"s_lshl_b32 s{sSt + 1}, s{sSt + 1}, 5",
         f"s_add_u32 s{sSt + 1}, s{sSt + 1}, s{sIter}", f"s_lshl_b32 s{sSt + 1}, s{sSt + 1}, 2",
         f"s_add_u32 s{sSt + 1}, s{sSt + 1}, {0x700000 + 64}",
         f"v_mov_b32 v{vE0 + 14}, s{sSt}", f"v_mov_b32 v{vE0 + 15}, s{sSt + 1}",
         f"global_store_dword v{vE0 + 15}, v{vE0 + 14}, s[30:31]")


def dma(vaddr, srd, soff, m0expr=None, imm=0, sc1=False):
    if m0expr is not None:
        emit(f"s_mov_b32 m0, {m0expr}", "s_nop 0")
    s = f"buffer_load_dwordx4 v{vaddr}, {sr(srd, 4)}, {soff} offen"
    if imm:
        s += f" offset:{imm}"
    if sc1:
        s += " sc1"
    emit(s + " lds")


def spin_fail(code):
    emit(f"v_mov_b32 v{vT0}, {code}", f"v_mov_b32 v{vT1}, 60", f"global_store_dword v{vT1}, v{vT0}, s[28:29]")


def lds_wait(off, val, addr=None):
    n = uid()
    a = f"v{vMisc} offset:{off}" if addr is None else f"v{addr}"
    emit(f"s_mov_b32 s{sCnt}, {OPT['spin_limit']}")
    lab(f"L_lw{n}")
    emit(f"ds_read_b32 v{vT2}, {a}", "s_waitcnt lgkmcnt(0)", f"v_readfirstlane_b32 s{sT5}, v{vT2}", "s_nop 1",
         f"s_cmp_ge_u32 s{sT5}, {val}", f"s_cbranch_scc1 L_lwd{n}", "s_sleep 1",
         f"s_sub_u32 s{sCnt}, s{sCnt}, 1", f"s_cmp_lg_u32 s{sCnt}, 0", f"s_cbranch_scc1 L_lw{n}")
    spin_fail(8 + off)
    lab(f"L_lwd{n}")


def lds_add(off, val, addr=None):
    a = f"v{vMisc}, v{vT2} offset:{off}" if addr is None else f"v{addr}, v{vT2}"
    emit(f"v_mov_b32 v{vT2}, {val}", "s_mov_b64 exec, 1", f"ds_add_u32 {a}", "s_mov_b64 exec, -1")


def prologue():
    cmt("prologue")
    emit("s_cmp_ge_u32 s2, 256", "s_cbranch_scc1 L_end",
         "s_load_dwordx16 s[4:19], s[0:1], 0",
         "s_load_dwordx8 s[20:27], s[0:1], 64",
         "s_load_dwordx4 s[28:31], s[0:1], 96",
         f"v_lshrrev_b32 v{vT0}, 6, v0",
         f"v_and_b32 v{vLane}, 63, v0",
         f"s_and_b32 s3, s2, 7",
         f"v_readfirstlane_b32 s{sWave}, v{vT0}",
         f"s_lshr_b32 s{sRB}, s2, 5",
         f"s_lshl_b32 s{sRot}, s{sRB}, 2",
         f"s_lshl_b32 s{sRB}, s{sRB}, 3",
         f"s_add_u32 s{sRB}, s{sRB}, s3",
         f"s_lshr_b32 s{sM}, s2, 3",
         f"s_and_b32 s{sM}, s{sM}, 3",
         f"s_and_b32 s{sB}, s{sM}, 1",
         f"s_lshr_b32 s{sHH}, s{sM}, 1",
         f"v_lshlrev_b32 v{vL16}, 4, v{vLane}",
         f"s_lshl_b32 s{sXbase}, s{sRB}, 15",
         f"s_lshl_b32 s{sT0}, s{sHH}, 4", f"s_lshl_b32 s{sT1}, s{sWave}, 1", f"s_add_u32 s{sT0}, s{sT0}, s{sT1}",
         f"s_mul_i32 s{sT1}, s{sT0}, {XP}", f"s_add_u32 s{sT1}, s{sT1}, {LDS_XT}",
         f"s_lshl_b32 s{sT2}, s{sT0}, 10", f"s_add_u32 s{sT2}, s{sT2}, s{sXbase}",
         f"s_xor_b32 s{sT0}, s{sT0}, 16",
         f"s_mul_i32 s{sT3}, s{sT0}, {XP}", f"s_add_u32 s{sT3}, s{sT3}, {LDS_XT}",
         f"s_lshl_b32 s{sT4}, s{sT0}, 10", f"s_add_u32 s{sT4}, s{sT4}, s{sXbase}",
         f"v_lshrrev_b32 v{vT0}, 2, v{vLane}", f"v_lshlrev_b32 v{vT0}, 10, v{vT0}",
         f"v_and_b32 v{vT1}, 3, v{vLane}", f"v_lshlrev_b32 v{vT1}, 4, v{vT1}",
         f"v_add_u32 v{vA}, v{vT0}, v{vT1}",
         f"s_lshl_b32 s{sQoff}, s{sHH}, 9", f"s_lshl_b32 s{sT0}, s{sWave}, 6", f"s_add_u32 s{sQoff}, s{sQoff}, s{sT0}",
         f"s_lshl_b32 s{sRing}, s{sWave}, 13", f"s_add_u32 s{sRing}, s{sRing}, {LDS_WQ}",
         f"s_mov_b32 s{S_X + 2}, 0x200000", f"s_mov_b32 s{S_X + 3}, 0x20000",
         f"s_mov_b32 s{S_WQ + 2}, 0x80000", f"s_mov_b32 s{S_WQ + 3}, 0x20000",
         f"s_cmp_eq_u32 s{sB}, 0",
         "s_waitcnt lgkmcnt(0)",
         f"s_mov_b32 s{S_X}, s4", f"s_mov_b32 s{S_X + 1}, s5",
         f"s_cselect_b32 s{S_WQ}, s6, s16", f"s_cselect_b32 s{S_WQ + 1}, s7, s17",
         f"s_cselect_b32 s{S_WK}, s8, s18", f"s_cselect_b32 s{S_WK + 1}, s9, s19",
         f"s_cselect_b32 s{S_WV}, s10, s20", f"s_cselect_b32 s{S_WV + 1}, s11, s21")
    stamp(26)
    for i in range(2):
        emit(f"s_mov_b32 m0, s{sT1}", f"s_add_u32 s{sT1}, s{sT1}, {XP}")
        dma(vL16, S_X, f"s{sT2}")
        if i < 1:
            emit(f"s_add_u32 s{sT2}, s{sT2}, 1024")
    emit(f"s_mov_b32 s{S_WK + 2}, 0x4000", f"s_mov_b32 s{S_WK + 3}, 0x20000",
         f"s_mov_b32 s{S_WV + 2}, 0x4000", f"s_mov_b32 s{S_WV + 3}, 0x20000",
         f"s_lshr_b32 s{sT0}, s2, 4", f"s_add_u32 s{sT0}, s{sT0}, s{sWave}", f"s_and_b32 s{sT0}, s{sT0}, 7",
         f"s_lshl_b32 s{sT0}, s{sT0}, 11",
         f"s_add_u32 s{sT1}, s{sT0}, {LDS_WK}", f"s_mov_b32 m0, s{sT1}", f"s_add_u32 s{sT1}, s{sT0}, {LDS_WV}")
    dma(vL16, S_WK, f"s{sT0}")
    dma(vL16, S_WK, f"s{sT0}", imm=1024)
    emit(f"s_mov_b32 m0, s{sT1}", "s_nop 0")
    dma(vL16, S_WV, f"s{sT0}")
    dma(vL16, S_WV, f"s{sT0}", imm=1024)
    for i in range(2):
        emit(f"s_mov_b32 m0, s{sT3}", f"s_add_u32 s{sT3}, s{sT3}, {XP}")
        dma(vL16, S_X, f"s{sT4}")
        if i < 1:
            emit(f"s_add_u32 s{sT4}, s{sT4}, 1024")
    emit(f"s_cmp_eq_u32 s{sWave}, 2", "s_cbranch_scc0 L_nogw",
         f"s_mov_b32 s{S_GW}, s24", f"s_mov_b32 s{S_GW + 1}, s25", f"s_mov_b32 s{S_GW + 2}, 0x400", f"s_mov_b32 s{S_GW + 3}, 0x20000")
    dma(vL16, S_GW, "0", m0expr=str(LDS_GW))
    lab("L_nogw")
    emit(f"s_load_dword s{sW}, s[30:31], {WS_W:#x}")


def wq_fetch(n):
    for i in range(n):
        emit(f"s_mov_b32 m0, s{sK}", f"s_add_u32 s{sSl}, s{sSl}, 16384", f"s_and_b32 s{sSl}, s{sSl}, 0x7ffff")
        dma(vA, S_WQ, f"s{sSl}")
        emit(f"s_add_u32 s{sK}, s{sK}, 1024")


def nonce():
    emit(f"s_mul_i32 s{sNonce}, s{sW}, 0x9E3779B1", f"s_add_u32 s{sNonce}, s{sNonce}, 0x7F4A7C15")


def front():
    def prefill():
        cmt("wq slots 0..7")
        emit(f"s_add_u32 s{sSl}, s{sRot}, 31", f"s_and_b32 s{sSl}, s{sSl}, 31", f"s_lshl_b32 s{sSl}, s{sSl}, 14",
             f"s_add_u32 s{sSl}, s{sSl}, s{sQoff}", f"s_mov_b32 s{sK}, s{sRing}", f"s_mov_b32 s{sCnt}, 8")
        lab("L_pf")
        wq_fetch(1)
        emit(f"s_sub_u32 s{sCnt}, s{sCnt}, 1", f"s_cmp_lg_u32 s{sCnt}, 0", "s_cbranch_scc1 L_pf")

    def wo_block():
        cmt("wave 3: wo block of the WOF task: rows head_t*16 + 4i + (l>>4), cols q_t*128")
        emit(f"s_cmp_eq_u32 s{sWave}, 3", "s_cbranch_scc0 L_nowo",
             f"v_lshrrev_b32 v{vT0}, 4, v{vLane}", f"v_lshlrev_b32 v{vT0}, 10, v{vT0}",
             f"v_and_b32 v{vT1}, 15, v{vLane}", f"v_lshlrev_b32 v{vT1}, 4, v{vT1}", f"v_add_u32 v{vT0}, v{vT0}, v{vT1}",
             f"s_lshr_b32 s{sT0}, s2, 2", f"s_and_b32 s{sT0}, s{sT0}, 31", f"s_lshl_b32 s{sT0}, s{sT0}, 14",
             f"s_and_b32 s{sT1}, s2, 3", f"s_lshl_b32 s{sT1}, s{sT1}, 8", f"s_add_u32 s{sT0}, s{sT0}, s{sT1}")
        for i in range(4):
            dma(vT0, S_WO, f"s{sT0}", m0expr=str(LDS_WOS + i * 1024))
            if i < 3:
                emit(f"s_add_u32 s{sT0}, s{sT0}, 4096")
        lab("L_nowo")

    if not (OPT["late_pf"] & 1):
        prefill()
    emit(f"s_mov_b32 s{S_WS}, s30", f"s_mov_b32 s{S_WS + 1}, s31", f"s_mov_b32 s{S_WS + 2}, {WS_SIZE}", f"s_mov_b32 s{S_WS + 3}, 0x20000",
         f"s_mov_b32 s{S_OUT}, s26", f"s_mov_b32 s{S_OUT + 1}, s27", f"s_mov_b32 s{S_OUT + 2}, 0x200000", f"s_mov_b32 s{S_OUT + 3}, 0x20000",
         f"s_cmp_lt_u32 s2, 128",
         f"s_cselect_b32 s{S_WO}, s12, s22", f"s_cselect_b32 s{S_WO + 1}, s13, s23",
         f"s_mov_b32 s{S_WO + 2}, 0x80000", f"s_mov_b32 s{S_WO + 3}, 0x20000",
         f"s_mov_b32 s{sVM}, 0x0000ffff", f"s_mov_b32 s{sVM + 1}, 0x0000ffff",
         f"v_mov_b32 v{vMisc}, {LDS_MISC}")
    if not (OPT["late_pf"] & 3):
        wo_block()
    q_setup()
    emit(f"s_waitcnt vmcnt({2 if OPT['late_pf'] & 1 else 10})", "s_barrier")
    stamp(10)
    if OPT["late_pf"] & 1:
        prefill()
    if OPT["late_pf"] & 3:
        wo_block()
    emit(f"s_cmp_ge_u32 s{sWave}, 2", "s_cbranch_scc1 L_bar2")
    kv_proj()
    lab("L_kv_done")
    stamp(12)
    emit("s_waitcnt vmcnt(9)", "s_barrier", "s_branch L_qstart")
    lab("L_bar2")
    emit("s_waitcnt vmcnt(8)", "s_barrier")
    lab("L_qstart")


def kv_proj():
    cmt("K/V projection (waves 0,1)")
    XB = 112
    WA = 116
    ACC = 64
    FR = 0
    emit(f"v_and_b32 v{vT0}, 15, v{vLane}",
         f"v_lshrrev_b32 v{vT1}, 4, v{vLane}",
         f"v_lshlrev_b32 v{vT2}, 4, v{vT1}",
         f"s_mul_i32 s{sT0}, s{sHH}, {16 * XP}", f"s_add_u32 s{sT0}, s{sT0}, {LDS_XT}",
         f"v_mul_u32_u24 v{vT3}, {XP}, v{vT0}",
         f"v_add3_u32 v{XB}, v{vT3}, v{vT2}, s{sT0}",
         f"v_lshlrev_b32 v{vT1}, 8, v{vT1}", f"v_lshlrev_b32 v{vT0}, 3, v{vT0}",
         f"s_and_b32 s{sT0}, s{sWave}, 1", f"s_lshl_b32 s{sT0}, s{sT0}, 14",
         f"v_add3_u32 v{WA}, v{vT1}, v{vT0}, s{sT0}")

    def reads(s):
        f = FR + 8 * (s % 4)
        f += 32
        return [f"ds_read_b128 {ar(f, 4)}, v{XB} offset:{s * 64}",
                f"ds_read_b64_tr_b16 {ar(f + 4, 2)}, v{WA} offset:{LDS_WK + s * 1024}",
                f"ds_read_b64_tr_b16 {ar(f + 6, 2)}, v{WA} offset:{LDS_WK + s * 1024 + 128}"]

    for variant in ("K", "V"):
        if variant == "K":
            emit(f"s_cmp_eq_u32 s{sWave}, 1", "s_cbranch_scc1 L_vproj")
        else:
            lab("L_vproj")
        for s in range(4):
            emit(*reads(s))
        for s in range(16):
            f = 32 + 8 * (s % 4)
            rem = min(3, 15 - s)
            emit(f"s_waitcnt lgkmcnt({3 * rem})")
            acc = ACC + 4 * (s & 1)
            c = "0" if s < 2 else vr(acc, 4)
            if variant == "K":
                emit(f"v_mfma_f32_16x16x32_bf16 {vr(acc, 4)}, {ar(f + 4, 4)}, {ar(f, 4)}, {c}")
            else:
                emit(f"v_mfma_f32_16x16x32_bf16 {vr(acc, 4)}, {ar(f, 4)}, {ar(f + 4, 4)}, {c}")
            if s + 4 < 16:
                emit(*reads(s + 4))
        nonce()
        P = 120
        AD = 117
        if variant == "K":
            emit(f"v_and_b32 v{vT2}, 15, v{vLane}", f"v_bfe_u32 v{vT3}, v{vLane}, 4, 1",
                 f"v_lshlrev_b32 v{vT3}, 5, v{vT3}", f"v_add_u32 v{vT2}, v{vT2}, v{vT3}", f"v_lshlrev_b32 v{AD}, 4, v{vT2}",
                 f"s_lshl_b32 s{sT0}, s{sB}, 17", f"s_lshl_b32 s{sT1}, s{sRB}, 11", f"s_add_u32 s{sT0}, s{sT0}, s{sT1}",
                 f"s_lshl_b32 s{sT1}, s{sHH}, 8", f"s_add_u32 s{sT0}, s{sT0}, s{sT1}",
                 f"s_mov_b32 s{sT2}, {CSCALE:#x}")
            for i in range(4):
                emit(f"v_add_f32 v{ACC + i}, v{ACC + i}, v{ACC + 4 + i}")
            for i in range(4):
                emit(f"v_mul_f32 v{ACC + i}, s{sT2}, v{ACC + i}")
        else:
            emit(f"v_and_b32 v{vT2}, 15, v{vLane}", f"v_lshrrev_b32 v{vT3}, 5, v{vLane}",
                 f"v_lshlrev_b32 v{vT2}, 4, v{vT2}", f"v_lshlrev_b32 v{vT3}, 8, v{vT3}", f"v_add_u32 v{AD}, v{vT2}, v{vT3}",
                 f"s_lshl_b32 s{sT0}, s{sB}, 17", f"s_lshl_b32 s{sT1}, s{sRB}, 11", f"s_add_u32 s{sT0}, s{sT0}, s{sT1}",
                 f"s_lshl_b32 s{sT1}, s{sHH}, 9", f"s_add_u32 s{sT0}, s{sT0}, s{sT1}", f"s_add_u32 s{sT0}, s{sT0}, 1024")
            for i in range(4):
                emit(f"v_add_f32 v{ACC + i}, v{ACC + i}, v{ACC + 4 + i}")
        emit(f"v_cvt_pk_bf16_f32 v{P}, v{ACC}, v{ACC + 1}", f"v_cvt_pk_bf16_f32 v{P + 1}, v{ACC + 2}, v{ACC + 3}", "s_nop 1")
        if variant == "K":
            emit(f"v_permlane32_swap_b32 v{P}, v{P + 2}", f"v_permlane32_swap_b32 v{P + 1}, v{P + 3}",
                 "s_mov_b32 exec_hi, 0",
                 f"buffer_store_dwordx4 {vr(P, 4)}, v{AD}, {sr(S_WS, 4)}, s{sT0} offen sc1",
                 "s_mov_b64 exec, -1")
            emit(f"v_mul_f32 v{vT0}, v{ACC}, v{ACC}")
            for i in range(1, 4):
                emit(f"v_fmac_f32 v{vT0}, v{ACC + i}, v{ACC + i}")
            red = "v_add_f32"
        else:
            emit(f"v_permlane16_swap_b32 v{P}, v{P + 2}", f"v_permlane16_swap_b32 v{P + 1}, v{P + 3}",
                 f"s_mov_b64 exec, {sr(sVM, 2)}",
                 f"buffer_store_dwordx4 {vr(P, 4)}, v{AD}, {sr(S_WS, 4)}, s{sT0} offen sc1",
                 "s_mov_b64 exec, -1")
            emit(f"v_max_f32_e64 v{vT0}, |v{ACC}|, |v{ACC + 1}|", f"v_max3_f32 v{vT0}, |v{ACC + 2}|, |v{ACC + 3}|, v{vT0}")
            red = "v_max_f32"
        emit(f"v_mov_b32 v{vT1}, v{vT0}", "s_nop 1",
             f"v_permlane32_swap_b32 v{vT0}, v{vT1}", "s_nop 1",
             f"{red} v{vT0}, v{vT0}, v{vT1}", "s_nop 0", f"v_mov_b32 v{vT1}, v{vT0}", "s_nop 1",
             f"v_permlane16_swap_b32 v{vT0}, v{vT1}", "s_nop 1",
             f"{red} v{vT0}, v{vT0}, v{vT1}")
        for r in (8, 4, 2, 1):
            emit("s_nop 1", f"v_max_f32_dpp v{vT0}, v{vT0}, v{vT0} row_ror:{r} row_mask:0xf bank_mask:0xf")
        emit(f"s_lshl_b32 s{sT0}, s{sRB}, 1", f"s_add_u32 s{sT0}, s{sT0}, s{sHH}", f"s_lshl_b32 s{sT0}, s{sT0}, 4",
             f"s_lshl_b32 s{sT1}, s{sB}, 11", f"s_add_u32 s{sT0}, s{sT0}, s{sT1}",
             f"s_add_u32 s{sT0}, s{sT0}, {WS_KVF + (0 if variant == 'K' else 8)}",
             f"v_mov_b32 v{P + 5}, v{vT0}", f"v_mov_b32 v{P + 4}, s{sNonce}", f"s_mov_b32 s{sFl}, s{sT0}")
        stamp(11)
        if variant == "K":
            emit("s_branch L_kv_done")


def wof_task():
    cmt("WOF task (wave 3): transpose 4 wo fragments, publish")
    emit(f"s_cmp_eq_u32 s{sWave}, 3", "s_cbranch_scc0 L_wof_done")
    emit(f"v_lshrrev_b32 v{vT0}, 5, v{vLane}", f"v_lshlrev_b32 v{vT0}, 2, v{vT0}",
         f"v_bfe_u32 v{vT1}, v{vLane}, 2, 2", f"v_add_u32 v{vT0}, v{vT0}, v{vT1}", f"v_lshlrev_b32 v{vT0}, 8, v{vT0}",
         f"v_bfe_u32 v{vT1}, v{vLane}, 4, 1", f"v_lshlrev_b32 v{vT1}, 5, v{vT1}",
         f"v_and_b32 v{vT2}, 3, v{vLane}", f"v_lshlrev_b32 v{vT2}, 3, v{vT2}",
         f"v_add3_u32 v{vT0}, v{vT0}, v{vT1}, v{vT2}", f"v_add_u32 v{vT0}, {LDS_WOS}, v{vT0}")
    F = 112
    for f in range(4):
        emit(f"ds_read_b64_tr_b16 {vr(F + 4 * f, 2)}, v{vT0} offset:{f * 64}",
             f"ds_read_b64_tr_b16 {vr(F + 4 * f + 2, 2)}, v{vT0} offset:{f * 64 + 2048}")
    emit(f"s_lshr_b32 s{sT0}, s2, 2", f"s_lshl_b32 s{sT0}, s{sT0}, 14", f"s_and_b32 s{sT1}, s2, 3", f"s_lshl_b32 s{sT1}, s{sT1}, 12",
         f"s_add_u32 s{sT0}, s{sT0}, s{sT1}", f"s_add_u32 s{sT0}, s{sT0}, {WS_WOF}",
         "s_waitcnt lgkmcnt(0)")
    for f in range(4):
        o = f" offset:{f * 1024}" if f else ""
        emit(f"buffer_store_dwordx4 {vr(F + 4 * f, 4)}, v{vL16}, {sr(S_WS, 4)}, s{sT0} offen{o} sc1")
    lab("L_wof_done")


def wof_flag():
    n = uid()
    emit(f"s_cmp_eq_u32 s{sWave}, 3", f"s_cbranch_scc0 L_wf{n}",
         f"s_lshl_b32 s{sT0}, s2, 2", f"s_add_u32 s{sT0}, s{sT0}, {WS_WOFF}",
         f"v_mov_b32 v{vT0}, s{sNonce}", f"v_mov_b32 v{vT1}, 0", "s_mov_b64 exec, 1",
         f"buffer_store_dword v{vT0}, v{vT1}, {sr(S_WS, 4)}, s{sT0} offen sc1", "s_mov_b64 exec, -1")
    lab(f"L_wf{n}")


PF = 118


def poll_issue(areg):
    emit(f"s_lshl_b32 s{sT0}, s{sB}, 11", f"s_add_u32 s{sT0}, s{sT0}, {WS_KVF}",
         f"buffer_load_dwordx4 {ar(areg, 4)}, v{vL16}, {sr(S_WS, 4)}, s{sT0} offen sc1",
         f"buffer_load_dwordx4 {ar(areg + 4, 4)}, v{vL16}, {sr(S_WS, 4)}, s{sT0} offen offset:1024 sc1")


def poll_check(areg, ok):
    F = PF
    for i in range(8):
        emit(f"v_accvgpr_read_b32 v{F + i}, a{areg + i}")
    emit(f"v_cmp_ne_u32_e64 {sr(sMA, 2)}, s{sNonce}, v{F}",
         f"v_cmp_ne_u32_e64 {sr(sMB, 2)}, s{sNonce}, v{F + 2}",
         f"v_cmp_ne_u32_e64 {sr(sMC, 2)}, s{sNonce}, v{F + 4}",
         f"v_cmp_ne_u32_e64 {sr(sMD, 2)}, s{sNonce}, v{F + 6}",
         "s_nop 3",
         f"s_or_b64 {sr(sMA, 2)}, {sr(sMA, 2)}, {sr(sMB, 2)}",
         f"s_or_b64 {sr(sMC, 2)}, {sr(sMC, 2)}, {sr(sMD, 2)}",
         f"s_or_b64 {sr(sMA, 2)}, {sr(sMA, 2)}, {sr(sMC, 2)}",
         f"s_cbranch_scc0 {ok}")


def chunk0_loads():
    F = PF
    emit(f"v_mov_b32 v{vT0}, 0", f"ds_write_b32 v{vMisc}, v{vT0} offset:{M_KMAX}", f"ds_write_b32 v{vMisc}, v{vT0} offset:{M_VMAX}",
         f"s_lshl_b32 s{sT0}, s{sB}, 17", f"s_mov_b32 s{sT1}, 0")
    for g in range(4):
        emit(f"s_mov_b32 m0, s{sT1}", f"s_add_u32 s{sT1}, s{sT1}, 4096")
        for i in range(4):
            dma(vL16, S_WS, f"s{sT0}", imm=1024 * i, sc1=OPT['ld_sc1'])
        if g < 3:
            emit(f"s_add_u32 s{sT0}, s{sT0}, 4096")
    emit(f"v_max_u32 v{F + 1}, v{F + 1}, v{F + 5}", f"v_max_u32 v{F + 3}, v{F + 3}, v{F + 7}",
         f"ds_max_u32 v{vMisc}, v{F + 1} offset:{M_KMAX}", f"ds_max_u32 v{vMisc}, v{F + 3} offset:{M_VMAX}")


def poll_kv():
    cmt("wave 7, late path: poll the K/V flags, fetch key tiles 0..7")
    emit(f"s_cmp_eq_u32 s{sWave}, 7", "s_cbranch_scc0 L_pollkv_done",
         f"s_mov_b32 s{sCnt}, {OPT['spin_limit']}")
    lab("L_pollkv")
    emit("s_waitcnt vmcnt(0)")
    poll_check(24, "L_pollkv_ok")
    poll_issue(24)
    emit(f"s_sub_u32 s{sCnt}, s{sCnt}, 1", f"s_cmp_lg_u32 s{sCnt}, 0", "s_cbranch_scc1 L_pollkv")
    spin_fail(1)
    lab("L_pollkv_ok")
    stamp(13)
    chunk0_loads()
    lab("L_pollkv_done")


def barrier_a():
    emit(f"s_cmp_eq_u32 s{sWave}, 7", "s_cbranch_scc0 L_bara", "s_waitcnt vmcnt(0)")
    lab("L_bara")
    emit("s_waitcnt lgkmcnt(0)", "s_barrier")


GACC = 96
vXG = 116


def q_setup():
    cmt("Q projection: addresses, accumulators; main-loop register init")
    ACC = S0
    emit(f"v_and_b32 v{vT0}, 31, v{vLane}", f"v_lshrrev_b32 v{vT1}, 5, v{vLane}",
         f"v_mul_u32_u24 v{vT0}, {XP}, v{vT0}", f"v_lshlrev_b32 v{vT2}, 4, v{vT1}",
         f"v_add_u32 v{vXB}, v{vT0}, v{vT2}", f"v_add_u32 v{vXB}, {LDS_XT}, v{vXB}",
         f"s_lshl_b32 s{sT0}, s{sWave}, 7", f"s_add_u32 s{sT0}, s{sT0}, {LDS_GW}",
         f"v_add_u32 v{vGA}, s{sT0}, v{vT2}",
         f"v_bfe_u32 v{vT0}, v{vLane}, 2, 2",
         f"v_lshlrev_b32 v{vT2}, 3, v{vT1}", f"v_add_u32 v{vT2}, v{vT2}, v{vT0}", f"v_lshlrev_b32 v{vT2}, 6, v{vT2}",
         f"v_bfe_u32 v{vT1}, v{vLane}, 4, 1", f"v_lshlrev_b32 v{vT1}, 5, v{vT1}",
         f"v_and_b32 v{vT0}, 3, v{vLane}", f"v_lshlrev_b32 v{vT0}, 3, v{vT0}",
         f"v_add3_u32 v{vT2}, v{vT2}, v{vT0}, v{vT1}",
         f"v_add_u32 v{vWA}, s{sRing}, v{vT2}")
    for i in range(16):
        emit(f"v_mov_b32 v{ACC + i}, 0")
    for i in range(16):
        emit(f"v_accvgpr_write_b32 a{i}, 0")
    reg_init()
    emit(f"s_cmp_lt_u32 s{sWave}, 2", f"s_cselect_b32 s{sFB}, 0, 99")


def q_proj():
    cmt("Q projection (per-wave ring)")
    ACC = S0
    QS = 32
    GF = 64

    def reads(s):
        f = QS + 8 * (s & 3)
        return [f"ds_read_b64_tr_b16 {ar(f, 2)}, v{vWA} offset:{(s & 7) * 1024}",
                f"ds_read_b64_tr_b16 {ar(f + 2, 2)}, v{vWA} offset:{(s & 7) * 1024 + 256}",
                f"ds_read_b128 {ar(f + 4, 4)}, v{vXG} offset:{(s & 3) * 32}"]

    def group_addr():
        return [f"v_add_u32 v{vXG}, s{sK}, v{vXB}", f"s_add_u32 s{sK}, s{sK}, 128", f"s_and_b32 s{sK}, s{sK}, 1023"]

    def step(s, last, extra=0):
        f = QS + 8 * (s & 3)
        rd = not (last and s >= 6)
        if last:
            w = {0: 5, 1: 4, 2: 3, 3: 2, 4: 1, 5: 0}.get(s)
            if w is not None:
                w += extra
        else:
            w = 5
        lg = 3 if (rd or (last and s == 6)) else 0
        if last and s == 7:
            lg = 0
        emit((f"s_waitcnt vmcnt({w}) " if w is not None else "s_waitcnt ") + f"lgkmcnt({lg})")
        if s == 4 and not last:
            n = uid()
            emit(f"s_cmp_eq_u32 s{sCnt}, s{sFB}", f"s_cbranch_scc0 L_nf{n}", "s_waitcnt vmcnt(4)",
                 f"v_mov_b32 v{vT0}, 0", "s_mov_b64 exec, 1",
                 f"buffer_store_dwordx2 {vr(124, 2)}, v{vT0}, {sr(S_WS, 4)}, s{sFl} offen sc1", "s_mov_b64 exec, -1")
            stamp(27)
            lab(f"L_nf{n}")
        if s == OPT["poll_step"] and not last:
            n = uid()
            emit(f"s_cmp_eq_u32 s{sCnt}, s{sI2}", f"s_cbranch_scc0 L_ep{n}")
            poll_issue(16)
            lab(f"L_ep{n}")
        if s % 4 == 0:
            emit(f"s_cmp_eq_u32 s{sS}, s{sWave}", "s_cselect_b64 vcc, -1, 0",
                 f"s_add_u32 s{sS}, s{sS}, 1", f"s_and_b32 s{sS}, s{sS}, 7")
        if s % 4 == 2 and rd:
            emit(*group_addr())
        if last and s == 5 and not extra:
            n = uid()
            emit(f"s_cmp_eq_u32 s{sWave}, 7", f"s_cbranch_scc0 L_np{n}")
            poll_issue(24)
            lab(f"L_np{n}")
        if rd and not (OPT["q_exp"] & 1):
            emit(*reads(s + 2))
        acc = vr(ACC, 16) if s % 2 == 0 else ar(0, 16)
        if not (OPT["q_exp"] & 4):
            emit(f"v_mfma_f32_32x32x16_bf16 {acc}, {ar(f, 4)}, {ar(f + 4, 4)}, {acc}")
        if not last:
            emit(f"s_add_u32 m0, s{sRing}, {s * 1024}", f"s_add_u32 s{sSl}, s{sSl}, 16384", f"s_and_b32 s{sSl}, s{sSl}, 0x7ffff")
            if not (OPT["q_exp"] & 2):
                dma(vA, S_WQ, f"s{sSl}")
        n = uid()
        emit(f"s_cbranch_vccz L_ng{n}",
             f"v_mfma_f32_32x32x16_bf16 {ar(GACC, 16)}, {ar(GF + 4 * (s & 3), 4)}, {ar(f + 4, 4)}, {'0' if (s & 3) == 0 else ar(GACC, 16)}")
        lab(f"L_ng{n}")

    emit(f"s_lshl_b32 s{sK}, s{sRot}, 5", f"s_lshr_b32 s{sS}, s{sRot}, 2", f"s_mov_b32 s{sCnt}, 0",
         f"s_cmp_eq_u32 s{sWave}, 7", f"s_cselect_b32 s{sI2}, {OPT['poll_blk']}, 99")
    emit(*group_addr())
    for i in range(4):
        emit(f"ds_read_b128 {ar(GF + 4 * i, 4)}, v{vGA} offset:{32 * i}")
    emit("s_waitcnt vmcnt(6) lgkmcnt(0)")
    nonce()
    if OPT["xcd_local"]:
        emit(f"s_cmp_eq_u32 s{sWave}, 3", "s_cbranch_scc0 L_noxid",
             f"s_getreg_b32 s{sT0}, hwreg(HW_REG_XCC_ID)", f"s_and_b32 s{sT0}, s{sT0}, 15", f"s_or_b32 s{sT0}, s{sT0}, 0x100",
             f"s_xor_b32 s{sT0}, s{sT0}, s{sNonce}", f"v_mov_b32 v{vT0}, s{sT0}", f"v_mov_b32 v{vT1}, 0",
             f"s_lshl_b32 s{sT0}, s2, 2", f"s_add_u32 s{sT0}, s{sT0}, {WS_XID}", "s_mov_b64 exec, 1",
             f"buffer_store_dword v{vT0}, v{vT1}, {sr(S_WS, 4)}, s{sT0} offen sc1", "s_mov_b64 exec, -1")
        lab("L_noxid")
    stamp(24)
    emit(*reads(0))
    emit(*reads(1))
    lab("L_qloop")
    for s in range(8):
        step(s, False)
    emit(f"s_add_u32 s{sCnt}, s{sCnt}, 1", f"s_cmp_lt_u32 s{sCnt}, 3", "s_cbranch_scc1 L_qloop")
    emit(f"s_cmp_eq_u32 s{sWave}, 7", "s_cbranch_scc0 L_qlast", f"s_waitcnt vmcnt({(8 - OPT['poll_step']) + 8 * (2 - OPT['poll_blk'])})")
    poll_check(16, "L_qlast7")
    lab("L_qlast")
    for s in range(8):
        step(s, True)
    stamp(25)
    poll_kv()
    emit("s_branch L_qdone")
    lab("L_qlast7")
    stamp(13)
    chunk0_loads()
    for s in range(8):
        step(s, True, extra=16)
    stamp(25)
    lab("L_qdone")


def q_finish():
    cmt("Q frags + norms, gate partials")
    ACC = S0
    emit(f"v_and_b32 v{vT0}, 31, v{vLane}", f"v_lshlrev_b32 v{vT0}, 5, v{vT0}", f"s_lshl_b32 s{sT0}, s{sWave}, 2",
         f"s_add_u32 s{sT0}, s{sT0}, {LDS_GP}",
         f"v_add_u32 v{vT0}, s{sT0}, v{vT0}",
         "s_nop 7", f"v_accvgpr_read_b32 v{vT1}, a{GACC}")
    emit(f"ds_write_b32 v{vT0}, v{vT1}")
    for i in range(16):
        emit(f"v_accvgpr_read_b32 v{112 + i}, a{i}")
    for i in range(16):
        emit(f"v_add_f32 v{ACC + i}, v{ACC + i}, v{112 + i}")
    for i in range(4):
        emit(f"v_cvt_pk_bf16_f32 v{Qa + i}, v{ACC + 2 * i}, v{ACC + 2 * i + 1}")
    for i in range(4):
        emit(f"v_cvt_pk_bf16_f32 v{Qb + i}, v{ACC + 8 + 2 * i}, v{ACC + 8 + 2 * i + 1}")
    emit(f"v_mul_f32 v{vNa}, v{ACC}, v{ACC}", f"v_mul_f32 v{vNb}, v{ACC + 8}, v{ACC + 8}")
    for i in range(1, 8):
        emit(f"v_fmac_f32 v{vNa}, v{ACC + i}, v{ACC + i}", f"v_fmac_f32 v{vNb}, v{ACC + 8 + i}, v{ACC + 8 + i}")
    emit(f"v_mov_b32 v{vT0}, v{vNa}", f"v_mov_b32 v{vT1}, v{vNb}", "s_nop 1",
         f"v_permlane32_swap_b32 v{vNa}, v{vT0}", f"v_permlane32_swap_b32 v{vNb}, v{vT1}", "s_nop 1",
         f"v_add_f32 v{vNa}, v{vNa}, v{vT0}", f"v_add_f32 v{vNb}, v{vNb}, v{vT1}",
         f"v_max_f32 v{vNa}, v{vNa}, v{vNb}")


def reg_init():
    cmt("main-loop register init")
    for i in range(32):
        emit(f"v_mov_b32 v{Oa + i}, 0")
    for i in range(8):
        emit(f"v_mov_b32 v{S1 + 8 + i}, 0")
    emit(f"v_and_b32 v{vT0}, {27 if not OPT['one_row'] else 31}, v{vLane}",
         f"v_cmp_eq_u32 vcc, 16, v{vT0}", f"v_mov_b32 v{vT1}, 0x3f803f80", "s_nop 0",
         f"v_cndmask_b32 v{V0}, 0, v{vT1}, vcc")
    for i in range(1, 16):
        emit(f"v_mov_b32 v{V0 + i}, v{V0}")
    emit(f"v_mov_b32 v{IDX}, 0xdddddddd",
         f"v_mov_b32 v{AK}, v{vL16}",
         f"v_lshrrev_b32 v{vT0}, 5, v{vLane}", f"v_lshlrev_b32 v{vT0}, 8, v{vT0}",
         f"v_and_b32 v{vT1}, 15, v{vLane}", f"v_lshlrev_b32 v{vT1}, 4, v{vT1}", f"v_add_u32 v{AV}, v{vT0}, v{vT1}",
         "s_nop 0")


def kv_rest_loads():
    cmt("first key tile fragments; remaining K/V tiles -> LDS (waves 0..3: linear range 16384 + wave*28672)")
    emit(f"ds_read_b64 {vr(120, 2)}, v{vMisc}",
         f"ds_read_b128 {vr(KF, 4)}, v{AK}",
         f"s_mov_b64 exec, {sr(sVM, 2)}",
         f"ds_read_b128 {vr(V0, 4)}, v{AV} offset:1024", f"ds_read_b128 {vr(V1, 4)}, v{AV} offset:1536",
         "s_mov_b64 exec, -1")
    emit(f"s_cmp_ge_u32 s{sWave}, 4", "s_cbranch_scc1 L_rest_done",
         f"s_lshl_b32 s{sT0}, s{sB}, 17",
         f"s_mul_i32 s{sT1}, s{sWave}, 28672", f"s_add_u32 s{sT1}, s{sT1}, 16384", f"s_add_u32 s{sT2}, s{sT0}, s{sT1}",
         f"s_mov_b32 s{sCnt}, 7")
    lab("L_rest")
    emit(f"s_mov_b32 m0, s{sT1}", f"s_add_u32 s{sT1}, s{sT1}, 4096")
    for i in range(4):
        dma(vL16, S_WS, f"s{sT2}", imm=1024 * i, sc1=OPT['ld_sc1'])
    emit(f"s_add_u32 s{sT2}, s{sT2}, 4096", f"s_sub_u32 s{sCnt}, s{sCnt}, 1", f"s_cmp_lg_u32 s{sCnt}, 0", "s_cbranch_scc1 L_rest")
    lab("L_rest_done")


def start_attention():
    cmt("path decision, first key tile")
    emit("s_waitcnt lgkmcnt(0)",
         f"v_mfma_f32_32x32x16_bf16 {vr(S0, 16)}, {vr(KF, 4)}, {vr(Qa, 4)}, 0")
    t2 = struct.unpack("<I", struct.pack("<f", OPT["T2"]))[0]
    emit(f"v_mul_f32 v{vT0}, v{vNa}, v120", f"s_mov_b32 s{sT0}, {t2:#x}",
         f"v_cmp_nle_f32_e64 {sr(sMA, 2)}, v{vT0}, s{sT0}",
         f"s_mov_b32 s{sT1}, 0x53800000",
         f"v_cmp_nle_f32_e64 {sr(sMB, 2)}, v121, s{sT1}",
         f"s_mov_b32 s{sT1}, 0x2b800000",
         f"v_cmp_nge_f32_e64 {sr(sMC, 2)}, v121, s{sT1}",
         "s_nop 3",
         f"s_or_b64 {sr(sMA, 2)}, {sr(sMA, 2)}, {sr(sMB, 2)}",
         f"s_or_b64 {sr(sMA, 2)}, {sr(sMA, 2)}, {sr(sMC, 2)}")
    if OPT["force_slow"]:
        emit(f"s_mov_b64 {sr(sMA, 2)}, -1")
    emit(f"s_cmp_ge_u32 s{sWave}, 4", "s_cbranch_scc1 L_prio_g2", f"s_setprio {OPT['prio_g1']}",
         f"s_mov_b32 s{sI1}, 99", "s_branch L_prio_done")
    lab("L_prio_g2")
    emit(f"s_setprio {OPT['prio_g2']}", f"s_mov_b32 s{sI1}, {OPT['g2_drop']}")
    lab("L_prio_done")
    emit(f"s_cmp_lg_u64 {sr(sMA, 2)}, 0", "s_cbranch_scc1 L_slow")


def gate_factor():
    emit(f"v_and_b32 v{vT0}, 31, v{vLane}", f"v_lshlrev_b32 v{vT0}, 5, v{vT0}", f"v_add_u32 v{vT0}, {LDS_GP}, v{vT0}",
         f"ds_read_b128 {vr(112, 4)}, v{vT0}", f"ds_read_b128 {vr(116, 4)}, v{vT0} offset:16",
         f"s_mov_b32 s{sT0}, {NLOG2E:#x}", f"s_xor_b32 s{sT1}, s{sT0}, 0x80000000", f"s_cmp_eq_u32 s{sB}, 0",
         f"s_cselect_b32 s{sT0}, s{sT0}, s{sT1}",
         "s_waitcnt lgkmcnt(0)",
         f"v_add_f32 v112, v112, v113", f"v_add_f32 v114, v114, v115", f"v_add_f32 v116, v116, v117", f"v_add_f32 v118, v118, v119",
         f"v_add_f32 v112, v112, v114", f"v_add_f32 v116, v116, v118", f"v_add_f32 v112, v112, v116",
         f"v_mul_f32 v112, s{sT0}, v112", f"v_exp_f32 v112, v112", "s_nop 0", f"v_add_f32 v112, 1.0, v112",
         f"v_rcp_f32 v{vGate}, v112")


def wo_flag_load():
    emit(f"v_bfe_u32 v{vT0}, v{vLane}, 3, 2", f"v_xor_b32 v{vT0}, s{sM}, v{vT0}",
         f"v_and_b32 v{vT1}, 1, v{vT0}", f"v_lshlrev_b32 v{vT1}, 7, v{vT1}",
         f"v_lshrrev_b32 v{vT0}, 1, v{vT0}", f"v_lshlrev_b32 v{vT0}, 6, v{vT0}",
         f"v_and_b32 v{vT2}, 7, v{vLane}", f"v_lshlrev_b32 v{vT2}, 2, v{vT2}",
         f"v_add3_u32 v{vT0}, v{vT0}, v{vT1}, v{vT2}",
         f"s_lshr_b32 s{sT0}, s{sWave}, 2", f"s_lshl_b32 s{sT0}, s{sT0}, 5", f"s_add_u32 s{sT0}, s{sT0}, s{sM}",
         f"s_lshl_b32 s{sT0}, s{sT0}, 2", f"s_add_u32 s{sT0}, s{sT0}, {WS_WOFF}",
         f"v_lshlrev_b32 v{vT0}, 2, v{vT0}",
         f"buffer_load_dword v{vE0 + 12}, v{vT0}, {sr(S_WS, 4)}, s{sT0} offen sc1")


def xid_load():
    if not OPT["xcd_local"]:
        return
    emit(f"v_and_b32 v{vT1}, 3, v{vLane}", f"v_lshlrev_b32 v{vT1}, 5, v{vT1}",
         f"s_and_b32 s{sT1}, s2, 0xe7", f"s_lshl_b32 s{sT1}, s{sT1}, 2", f"s_add_u32 s{sT1}, s{sT1}, {WS_XID}",
         f"buffer_load_dword v{vE0 + 13}, v{vT1}, {sr(S_WS, 4)}, s{sT1} offen sc1")


def xid_check():
    if not OPT["xcd_local"]:
        emit(f"s_mov_b32 s{sLoc}, 0")
        return
    emit(f"s_getreg_b32 s{sT0}, hwreg(HW_REG_XCC_ID)", f"s_and_b32 s{sT0}, s{sT0}, 15", f"s_or_b32 s{sT0}, s{sT0}, 0x100",
         f"s_xor_b32 s{sT0}, s{sT0}, s{sNonce}",
         f"v_cmp_ne_u32_e64 {sr(sMA, 2)}, s{sT0}, v{vE0 + 13}", "s_nop 3",
         f"s_cmp_eq_u64 {sr(sMA, 2)}, 0", f"s_cselect_b32 s{sLoc}, 1, 0")


def wo_prefetch(tag):
    emit(f"s_mov_b32 s{sCnt}, {OPT['spin_limit']}")
    lab(f"L_wochk_{tag}")
    emit("s_waitcnt vmcnt(0)",
         f"v_cmp_ne_u32_e64 {sr(sMA, 2)}, s{sNonce}, v{vE0 + 12}", "s_nop 3",
         f"s_cmp_eq_u64 {sr(sMA, 2)}, 0", f"s_cbranch_scc1 L_wook_{tag}", "s_sleep 1")
    wo_flag_load()
    emit(f"s_sub_u32 s{sCnt}, s{sCnt}, 1", f"s_cmp_lg_u32 s{sCnt}, 0", f"s_cbranch_scc1 L_wochk_{tag}")
    spin_fail(2)
    lab(f"L_wook_{tag}")
    emit(f"s_and_b32 s{sT1}, s{sWave}, 3", f"s_lshl_b32 s{sT2}, s{sM}, 2", f"s_add_u32 s{sT1}, s{sT1}, s{sT2}",
         f"s_lshl_b32 s{sT1}, s{sT1}, 10",
         f"s_lshr_b32 s{sT2}, s{sWave}, 2", f"s_lshl_b32 s{sT2}, s{sT2}, 17",
         f"s_add_u32 s{sT1}, s{sT1}, s{sT2}", f"s_add_u32 s{sT1}, s{sT1}, {WS_WOF}")
    for j in range(4):
        emit(f"s_xor_b32 s{sT2}, s{sM}, {j}", f"s_and_b32 s{sT3}, s{sT2}, 1", f"s_lshl_b32 s{sT3}, s{sT3}, 19",
             f"s_lshr_b32 s{sT2}, s{sT2}, 1", f"s_lshl_b32 s{sT2}, s{sT2}, 18",
             f"s_add_u32 s{sT0}, s{sT1}, s{sT2}", f"s_add_u32 s{sT0}, s{sT0}, s{sT3}")
        for i in range(8):
            emit(f"buffer_load_dwordx4 {ar(4 * (8 * j + i), 4)}, v{vL16}, {sr(S_WS, 4)}, s{sT0} offen" + (" sc1" if OPT['ld_sc1'] else ""))
            if i < 7:
                emit(f"s_add_u32 s{sT0}, s{sT0}, 16384")


TB = 2048
POS = (2, 5, 11)


def phase(X, Y, QY, OX, OY, sh0, sh1, sh2, VA0, VA1, extra=None):
    for i in range(16):
        if i == POS[0]:
            emit(f"v_smfmac_f32_32x32x32_bf16 {vr(OY, 16)}, {vr(VA1, 4)}, {vr(Y + 8, 8)}, v{IDX}", *sh0)
        if i == POS[1]:
            emit(f"v_mfma_f32_32x32x16_bf16 {vr(Y, 16)}, {vr(KF, 4)}, {vr(QY, 4)}, 0", *sh1)
        if i == POS[2]:
            emit(f"v_smfmac_f32_32x32x32_bf16 {vr(OX, 16)}, {vr(VA0, 4)}, {vr(X, 8)}, v{IDX}", *sh2)
        if extra and i in extra:
            emit(*extra[i])
        emit(f"v_exp_f32 v{X + i}, v{X + i}")


def main_loop():
    cmt("attention, fast path")
    emit(f"s_mov_b32 s{sIter}, 0")
    emit(".p2align 6")
    lab("L_main")
    stamp_iter()
    emit(f"s_cmp_eq_u32 s{sIter}, 1", "s_cbranch_scc1 L_blk_1", f"s_cmp_eq_u32 s{sIter}, 2", "s_cbranch_scc1 L_blk_2")
    lab("L_main_go")
    for t in range(8):
        if t == 6:
            emit(f"s_cmp_eq_u32 s{sIter}, 0", "s_cbranch_scc1 L_blk_bar")
            lab("L_main_t6")
        if t == OPT["g2_drop_tile"]:
            emit(f"s_cmp_eq_u32 s{sIter}, s{sI1}", "s_cbranch_scc1 L_blk_prio")
            lab("L_main_tp")
        c0, c1 = (V0, V1) if t % 2 == 0 else (V0b, V1b)
        n0, n1 = (V0b, V1b) if t % 2 == 0 else (V0, V1)
        both = [f"s_mov_b64 exec, {sr(sVM, 2)}",
                f"ds_read_b128 {vr(n0, 4)}, v{AV} offset:{(t + 1) * TB + 1024}",
                f"ds_read_b128 {vr(n1, 4)}, v{AV} offset:{(t + 1) * TB + 1536}",
                "s_mov_b64 exec, -1"]
        sh1 = [f"ds_read_b128 {vr(KF, 4)}, v{AK} offset:{(t + 1) * TB}"]
        phase(S0, S1, Qb, Oa, Ob, both, sh1, [], c0, n1)
        phase(S1, S0, Qa, Ob, Oa, ["s_waitcnt lgkmcnt(0)"], [], [], c0, c1)
    emit(f"v_add_u32 v{AK}, 0x4000, v{AK}", f"v_add_u32 v{AV}, 0x4000, v{AV}",
         f"s_add_u32 s{sIter}, s{sIter}, 1", f"s_cmp_lt_u32 s{sIter}, 8", "s_cbranch_scc1 L_main")
    emit("s_nop 1", f"v_smfmac_f32_32x32x32_bf16 {vr(Ob, 16)}, {vr(V1b, 4)}, {vr(S1 + 8, 8)}, v{IDX}")
    lab("L_epi")


def main_blocks():
    lab("L_blk_1")
    xid_load()
    wo_flag_load()
    emit("s_branch L_main_go")
    lab("L_blk_2")
    gate_factor()
    emit("s_waitcnt vmcnt(0)")
    xid_check()
    wo_prefetch("f")
    emit("s_branch L_main_go")
    lab("L_blk_bar")
    emit("s_waitcnt vmcnt(0)", "s_barrier")
    wof_flag()
    emit("s_branch L_main_t6")
    lab("L_blk_prio")
    emit("s_setprio 0", "s_branch L_main_tp")


def slow_path():
    cmt("attention, true-max path (online softmax)")
    lab("L_slow")
    emit(f"v_mov_b32 v{vMa}, 0xff800000", f"v_mov_b32 v{vMb}, 0xff800000", f"s_mov_b32 s{sIter}, 0")
    lab("L_slow_loop")
    emit(f"s_cmp_eq_u32 s{sIter}, 6", "s_cbranch_scc0 L_slow_nb", "s_waitcnt vmcnt(0)", "s_barrier")
    wof_flag()
    lab("L_slow_nb")
    emit(f"ds_read_b128 {vr(KF, 4)}, v{AK}",
         f"s_mov_b64 exec, {sr(sVM, 2)}",
         f"ds_read_b128 {vr(V0, 4)}, v{AV} offset:1024", f"ds_read_b128 {vr(V1, 4)}, v{AV} offset:1536",
         "s_mov_b64 exec, -1", "s_waitcnt lgkmcnt(0)")
    for (Q, O, M) in ((Qa, Oa, vMa), (Qb, Ob, vMb)):
        emit(f"v_mfma_f32_32x32x16_bf16 {vr(S0, 16)}, {vr(KF, 4)}, {vr(Q, 4)}, 0", "s_nop 15",
             f"v_max3_f32 v{vT0}, v{S0}, v{S0 + 1}, v{S0 + 2}")
        for i in range(3, 15, 2):
            emit(f"v_max3_f32 v{vT0}, v{vT0}, v{S0 + i}, v{S0 + i + 1}")
        emit(f"v_max_f32 v{vT0}, v{vT0}, v{S0 + 15}", "s_nop 0", f"v_mov_b32 v{vT1}, v{vT0}", "s_nop 1",
             f"v_permlane32_swap_b32 v{vT0}, v{vT1}", "s_nop 1",
             f"v_max3_f32 v{vT0}, v{vT0}, v{vT1}, v{M}",
             f"v_sub_f32 v{vT1}, v{M}, v{vT0}", f"v_exp_f32 v{vT1}, v{vT1}", f"v_mov_b32 v{M}, v{vT0}")
        for i in range(9):
            emit(f"v_mul_f32 v{O + i}, v{vT1}, v{O + i}")
        for i in range(16):
            emit(f"v_sub_f32 v{S0 + i}, v{S0 + i}, v{vT0}")
        for i in range(16):
            emit(f"v_exp_f32 v{S0 + i}, v{S0 + i}")
        emit("s_nop 1",
             f"v_smfmac_f32_32x32x32_bf16 {vr(O, 16)}, {vr(V0, 4)}, {vr(S0, 8)}, v{IDX}",
             f"v_smfmac_f32_32x32x32_bf16 {vr(O, 16)}, {vr(V1, 4)}, {vr(S0 + 8, 8)}, v{IDX}")
    emit(f"v_add_u32 v{AK}, {TB}, v{AK}", f"v_add_u32 v{AV}, {TB}, v{AV}",
         f"s_add_u32 s{sIter}, s{sIter}, 1", f"s_cmp_lt_u32 s{sIter}, 64", "s_cbranch_scc1 L_slow_loop")
    gate_factor()
    emit(f"s_mov_b32 s{sLoc}, 0")
    wo_flag_load()
    wo_prefetch("s")
    emit("s_branch L_epi")


def tail():
    cmt("normalise, gate, publish O fragments (global for the partners, LDS for ourselves)")
    emit("s_nop 15")
    P = 112
    for k, O in enumerate((Oa, Ob)):
        if OPT["one_row"]:
            emit(f"v_mov_b32 v{vT1}, v{O + 8}", "s_nop 1", f"v_permlane32_swap_b32 v{O + 8}, v{vT1}", "s_nop 1")
        emit(f"v_rcp_f32 v{vT0}, v{O + 8}", "s_nop 0", f"v_mul_f32 v{vT0}, v{vT0}, v{vGate}")
        for i in range(8):
            emit(f"v_mul_f32 v{O + i}, v{vT0}, v{O + i}")
        for i in range(4):
            emit(f"v_cvt_pk_bf16_f32 v{P + 4 * k + i}, v{O + 2 * i}, v{O + 2 * i + 1}")
    emit(f"s_lshl_b32 s{sT1}, s{sB}, 15", f"s_lshl_b32 s{sT2}, s{sHH}, 14", f"s_add_u32 s{sT1}, s{sT1}, s{sT2}",
         f"s_lshl_b32 s{sT2}, s{sWave}, 11", f"s_add_u32 s{sT1}, s{sT1}, s{sT2}",
         f"s_lshl_b32 s{sT0}, s{sRB}, 16", f"s_add_u32 s{sT0}, s{sT0}, s{sT1}", f"s_add_u32 s{sT0}, s{sT0}, {WS_OF}",
         f"buffer_store_dwordx4 {vr(P, 4)}, v{vL16}, {sr(S_WS, 4)}, s{sT0} offen sc1",
         f"buffer_store_dwordx4 {vr(P + 4, 4)}, v{vL16}, {sr(S_WS, 4)}, s{sT0} offen offset:1024 sc1")
    emit(f"v_add_u32 v{vT0}, s{sT1}, v{vL16}",
         f"s_lshl_b32 s{sT4}, s{sRB}, 7", f"s_add_u32 s{sT4}, s{sT4}, {WS_OFL}",
         f"s_lshl_b32 s{sT1}, s{sM}, 3", f"s_add_u32 s{sT1}, s{sT1}, s{sWave}", f"s_lshl_b32 s{sT1}, s{sT1}, 2", f"s_add_u32 s{sT1}, s{sT1}, s{sT4}",
         f"v_mov_b32 v{vT2}, s{sNonce}", f"v_mov_b32 v{vT1}, 0",
         "s_waitcnt vmcnt(0)", "s_mov_b64 exec, 1",
         f"buffer_store_dword v{vT2}, v{vT1}, {sr(S_WS, 4)}, s{sT1} offen sc1", "s_mov_b64 exec, -1",
         "s_barrier",
         f"ds_write_b128 v{vT0}, {vr(P, 4)}", f"ds_write_b128 v{vT0}, {vr(P + 4, 4)} offset:1024",
         "s_waitcnt lgkmcnt(0)", "s_barrier")
    stamp(6)
    ACC = 16
    FR = 48

    def bbase(j, dst):
        emit(f"s_xor_b32 s{sT2}, s{sM}, {j}", f"s_and_b32 s{sT3}, s{sT2}, 1", f"s_lshl_b32 s{sT3}, s{sT3}, 15",
             f"s_lshr_b32 s{sT2}, s{sT2}, 1", f"s_lshl_b32 s{sT2}, s{sT2}, 14", f"s_add_u32 s{sT2}, s{sT2}, s{sT3}",
             f"s_lshr_b32 s{sT3}, s{sWave}, 2", f"s_lshl_b32 s{sT3}, s{sT3}, 13", f"s_add_u32 s{sT2}, s{sT2}, s{sT3}",
             f"v_add_u32 v{dst}, s{sT2}, v{vL16}")

    def mm8(j, addr):
        for i in range(8):
            emit(f"ds_read_b128 {vr(FR + 4 * i, 4)}, v{addr} offset:{i * 1024}")
        for i in range(8):
            acc = ACC + 16 * (i & 1)
            emit(f"s_waitcnt lgkmcnt({7 - i})",
                 f"v_mfma_f32_32x32x16_bf16 {vr(acc, 16)}, {ar(4 * (8 * j + i), 4)}, {vr(FR + 4 * i, 4)}, {'0' if (j == 0 and i < 2) else vr(acc, 16)}")

    for j in range(4):
        bbase(j, 80 + j)
    for j in range(1, 4):
        emit(f"s_xor_b32 s{sT2}, s{sM}, {j}", f"s_and_b32 s{sT3}, s{sT2}, 1", f"s_lshl_b32 s{sT3}, s{sT3}, 15",
             f"s_lshr_b32 s{sT2}, s{sT2}, 1", f"s_lshl_b32 s{sT2}, s{sT2}, 14", f"s_add_u32 s{sT2}, s{sT2}, s{sT3}",
             f"s_lshl_b32 s{sT3}, s{sWave}, 11", f"s_add_u32 s{4 + j}, s{sT2}, s{sT3}",
             f"s_lshl_b32 s{sT0}, s{sRB}, 16", f"s_add_u32 s{sT0}, s{sT0}, s{4 + j}", f"s_add_u32 s{8 + j}, s{sT0}, {WS_OF}")
    mm8(0, 80)
    emit(f"s_cmp_eq_u32 s{sWave}, 0", "s_cbranch_scc0 L_ofl_done",
         f"v_and_b32 v{vT1}, 31, v{vLane}", f"v_lshlrev_b32 v{vT1}, 2, v{vT1}",
         f"s_mov_b32 s{sCnt}, {OPT['spin_limit']}")
    lab("L_ofl")
    emit(f"buffer_load_dword v{vT2}, v{vT1}, {sr(S_WS, 4)}, s{sT4} offen sc1", "s_waitcnt vmcnt(0)",
         f"v_cmp_ne_u32_e64 {sr(sMA, 2)}, s{sNonce}, v{vT2}", "s_nop 3",
         f"s_cmp_eq_u64 {sr(sMA, 2)}, 0", "s_cbranch_scc1 L_ofl_done",
         f"s_sub_u32 s{sCnt}, s{sCnt}, 1", f"s_cmp_lg_u32 s{sCnt}, 0", "s_cbranch_scc1 L_ofl")
    spin_fail(3)
    lab("L_ofl_done")
    emit("s_barrier")
    stamp(7)
    for j in range(1, 4):
        emit(f"s_mov_b32 m0, s{4 + j}", "s_nop 0")
        dma(vL16, S_WS, f"s{8 + j}", sc1=OPT['ld_sc1'])
        dma(vL16, S_WS, f"s{8 + j}", imm=1024, sc1=OPT['ld_sc1'])
    for j in range(1, 4):
        emit(f"s_waitcnt vmcnt({2 * (3 - j)})", "s_barrier")
        mm8(j, 80 + j)
    stamp(8)
    emit(f"s_lshl_b32 s{sT0}, s{sWave}, 11", f"s_add_u32 s{sT0}, s{sT0}, {LDS_RED}",
         f"s_xor_b32 s{sT1}, s{sWave}, 4", f"s_lshl_b32 s{sT1}, s{sT1}, 11", f"s_add_u32 s{sT1}, s{sT1}, {LDS_RED}",
         f"v_add_u32 v{vT0}, s{sT0}, v{vL16}", f"v_add_u32 v{vT3}, s{sT1}, v{vL16}",
         f"v_and_b32 v{vT1}, 31, v{vLane}", f"v_lshlrev_b32 v{vT1}, 10, v{vT1}",
         f"v_lshrrev_b32 v{vT2}, 5, v{vLane}", f"v_lshlrev_b32 v{vT2}, 3, v{vT2}", f"v_add_u32 v{vT1}, v{vT1}, v{vT2}",
         f"s_lshl_b32 s{sT0}, s{sM}, 8", f"s_and_b32 s{sT1}, s{sWave}, 3", f"s_lshl_b32 s{sT1}, s{sT1}, 6",
         f"s_add_u32 s{sT0}, s{sT0}, s{sT1}", f"s_add_u32 s{sT0}, s{sT0}, s{sXbase}",
         "s_nop 7")
    for i in range(16):
        emit(f"v_add_f32 v{ACC + i}, v{ACC + i}, v{ACC + 16 + i}")
    emit(f"s_cmp_ge_u32 s{sWave}, 4", "s_cbranch_scc1 L_red_hi")
    for hi in (0, 1):
        if hi:
            lab("L_red_hi")
        give = 8 if hi == 0 else 0
        keep = 0 if hi == 0 else 8
        emit(f"ds_write_b128 v{vT0}, {vr(ACC + give, 4)}", f"ds_write_b128 v{vT0}, {vr(ACC + give + 4, 4)} offset:1024",
             "s_waitcnt lgkmcnt(0)", "s_barrier",
             f"ds_read_b128 {vr(48, 4)}, v{vT3}", f"ds_read_b128 {vr(52, 4)}, v{vT3} offset:1024",
             "s_waitcnt lgkmcnt(0)")
        for i in range(8):
            emit(f"v_add_f32 v{ACC + keep + i}, v{ACC + keep + i}, v{48 + i}")
        for i in range(4):
            emit(f"v_cvt_pk_bf16_f32 v{64 + i}, v{ACC + keep + 2 * i}, v{ACC + keep + 2 * i + 1}")
        for q in range(2):
            o = (keep // 4 + q) * 16
            emit(f"buffer_store_dwordx2 {vr(64 + 2 * q, 2)}, v{vT1}, {sr(S_OUT, 4)}, s{sT0} offen" + (f" offset:{o}" if o else "") + (" " + OPT["out_pol"] if OPT["out_pol"] else ""))
        if hi == 0:
            emit(f"s_or_b32 s{sT0}, s2, s{sWave}", f"s_cmp_eq_u32 s{sT0}, 0", "s_cbranch_scc0 L_fin",
                 f"v_mov_b32 v{vT0}, s{sNonce}", f"v_mov_b32 v{vT1}, 0", f"s_mov_b32 s{sT0}, {WS_W}", "s_mov_b64 exec, 1",
                 f"buffer_store_dword v{vT0}, v{vT1}, {sr(S_WS, 4)}, s{sT0} offen sc1", "s_mov_b64 exec, -1", "s_branch L_fin")
    lab("L_fin")
    stamp(9)
    emit("s_waitcnt vmcnt(0)")
    lab("L_end")
    emit("s_endpgm")


def build():
    prologue()
    stamp(0)
    front()
    stamp(1)
    q_proj()
    q_finish()
    stamp(2)
    wof_task()
    barrier_a()
    stamp(3)
    kv_rest_loads()
    start_attention()
    stamp(4)
    main_loop()
    stamp(5)
    tail()
    main_blocks()
    slow_path()


HEADER = open(os.path.join(os.path.dirname(os.path.abspath(__file__)), "cdna_kernels", NAME + ".s.ref")).read().split("; Override launch")[0]


def render():
    build()
    out = [HEADER.rstrip("\n"),
           "; Override launch geometry by editing the next line (default: block=256,",
           "; grid=ceil(out_elems/256), lds=0). Harness parses it; keep it on one line.",
           f"; @launch grid=(256,1,1) block=(512,1,1) lds={LDS_TOTAL}",
           '.amdgcn_target "amdgcn-amd-amdhsa--gfx950"', ".text", f".globl {NAME}_kernel", ".p2align 8",
           f".type {NAME}_kernel,@function", f"{NAME}_kernel:"]
    for l in L:
        if l.endswith(":") or l.startswith(";") or l.startswith("."):
            out.append(l)
        else:
            out.append("    " + l)
    out += ['.section .rodata,"a"', ".p2align 6", f".amdhsa_kernel {NAME}_kernel",
            "  .amdhsa_next_free_vgpr 256", "  .amdhsa_next_free_sgpr 102", "  .amdhsa_accum_offset 128",
            "  .amdhsa_group_segment_fixed_size 0", "  .amdhsa_kernarg_size 112", "  .amdhsa_user_sgpr_count 2",
            "  .amdhsa_user_sgpr_kernarg_segment_ptr 1", "  .amdhsa_system_sgpr_workgroup_id_x 1",
            ".end_amdhsa_kernel", ""]
    return "\n".join(out)


if __name__ == "__main__":
    dst = os.environ.get("OUT", os.path.join(os.path.dirname(os.path.abspath(__file__)), "cdna_kernels", NAME + ".s"))
    open(dst, "w").write(render())
    print("wrote", dst, len(L), "lines")
```
